```python
import torch

def _softmax(x, axis=-1):
    return torch.softmax(x, dim=axis)
def _gelu(x):
    return torch.nn.functional.gelu(x, approximate="tanh")
def _silu(x):
    return torch.nn.functional.silu(x)
def _sigmoid(x):
    return torch.sigmoid(x)
def _layernorm(x, axis=-1, eps=1e-5):
    m = x.mean(dim=axis, keepdim=True)
    v = x.var(dim=axis, keepdim=True, unbiased=False)
    return (x - m) / torch.sqrt(v + eps)
def _scatter_add(tgt, idx, src, axis=0):
    return tgt.clone().index_add_(axis, idx, src)
def _segment_sum(src, seg, n):
    out = torch.zeros((n,) + src.shape[1:], dtype=src.dtype)
    return out.index_add_(0, seg, src)
def _pad(x, pw):
    flat = tuple(v for pair in reversed(pw) for v in pair)
    return torch.nn.functional.pad(x, flat)

kernel_name = 'parallel_sum__sliding_block_cached__mixer_channel_mlp__decode'

def setup_inputs():

    _w = (lambda a: (lambda t: t.to(torch.bfloat16) if t.is_floating_point() else t)(torch.as_tensor(a)))
    def _A_setup():
        B, Sq, D = 1, 1, 576
        Hq, Hkv, Sk, Dh = 32, 16, 65536, 128
        assert Hq % Hkv == 0, (Hq, Hkv)
        return {
            "x": _w((lambda *s: torch.randn(*s, dtype=torch.bfloat16) * 0.05)(B, Sq, D)),
            "k_cache": _w((lambda *s: torch.randn(*s, dtype=torch.bfloat16) * 3.2)(B, Hkv, Sk, Dh)),
            "v_cache": _w((lambda *s: torch.randn(*s, dtype=torch.bfloat16) * 0.4)(B, Hkv, Sk, Dh)),
            "wq": _w((lambda *s: torch.randn(*s, dtype=torch.bfloat16) * 3.2)(D, Hq * Dh) * (D ** -0.5)),
            "wo": _w((lambda *s: torch.randn(*s, dtype=torch.bfloat16) * 0.4)(Hq * Dh, D) * ((Hq * Dh) ** -0.5)),
        }
    _A_in = _A_setup()

    def _B_setup():
        B, S, D, F = 1, 1, 576, 4608
        return {
            "x": _w((lambda *s: torch.randn(*s, dtype=torch.bfloat16) * 0.05)(B, S, D)),
            "w1": _w((lambda *s: torch.randn(*s, dtype=torch.bfloat16) * 3.2)(D, F) * (D ** -0.5)),
            "b1": _w((lambda *s: torch.randn(*s, dtype=torch.bfloat16) * 0.8)(F)),
            "w2": _w((lambda *s: torch.randn(*s, dtype=torch.bfloat16) * 0.1)(F, D) * (F ** -0.5)),
            "b2": _w((lambda *s: torch.randn(*s, dtype=torch.bfloat16) * 0.1)(D)),
        }
    _B_in = _B_setup()

    return {
        "A_x": _A_in["x"],
        "A_k_cache": _A_in["k_cache"],
        "A_v_cache": _A_in["v_cache"],
        "A_wq": _A_in["wq"],
        "A_wo": _A_in["wo"],
        "B_x": _B_in["x"],
        "B_w1": _B_in["w1"],
        "B_b1": _B_in["b1"],
        "B_w2": _B_in["w2"],
        "B_b2": _B_in["b2"],
    }

def reference(A_x, A_k_cache, A_v_cache, A_wq, A_wo, B_x, B_w1, B_b1, B_w2, B_b2):
    def _A_ref(x, k_cache, v_cache, wq, wo):
        B, Sq, D = x.shape
        Hq, Dh = 32, 128
        Hkv, Sk = k_cache.shape[1], k_cache.shape[2]
        W = min(4096, max(256, Sk // 4))
        rep = Hq // Hkv
        q = (lambda x, *d: x.permute(*d))((x @ wq).reshape(B, Sq, Hq, Dh), 0, 2, 1, 3)
        k = (lambda x, n, axis: torch.repeat_interleave(x, n, dim=axis))(k_cache[:, :, Sk - W:, :], rep, axis=1)
        v = (lambda x, n, axis: torch.repeat_interleave(x, n, dim=axis))(v_cache[:, :, Sk - W:, :], rep, axis=1)
        scores = torch.einsum("bhqd,bhkd->bhqk", q, k) * (Dh ** -0.5)
        p = _softmax(scores, axis=-1)
        o = torch.einsum("bhqk,bhkd->bhqd", p, v)
        return (lambda x, *d: x.permute(*d))(o, 0, 2, 1, 3).reshape(B, Sq, Hq * Dh) @ wo

    def _B_ref(x, w1, b1, w2, b2):
        y = _layernorm(x, axis=-1)
        h = _gelu(torch.einsum("bsd,df->bsf", y, w1) + b1)
        return torch.einsum("bsf,fd->bsd", h, w2) + b2

    x = A_x
    xn = _layernorm(x, axis=-1)
    return x + _A_ref(xn, A_k_cache, A_v_cache, A_wq, A_wo) + _B_ref(xn, B_w1, B_b1, B_w2, B_b2)
```

```python
import sys
NAME = "parallel_sum__sliding_block_cached__mixer_channel_mlp__decode"
out = sys.argv[1]
opts = set(sys.argv[2:])
PROF = "prof" in opts
NT = " nt"
SPINMAX = 400000
def optint(p, d):
    for o in opts:
        if o.startswith(p) and o[len(p):].isdigit(): return int(o[len(p):])
    return d
THR = optint("thr", 0)
PTH = optint("pth", 0)
X2SLEEP = optint("x2s", 2)
WLATE = "wlate" in opts

L = []
def e(s): L.append("    " + s)
def lab(s): L.append(s + ":")
def nop(n): e(f"s_nop {n}")

OB1, OB2, OB3 = 0, 2 << 20, 4 << 20
INV = 0x40000000
NRED = 72
XN_T = 0
Y_T = 1216
Q_T = 2432
FLG = 3072
CNT, FQ, FC2, FO, NONCE = FLG, FLG+4, FLG+8, FLG+12, FLG+16
ML_T = 3136
NT_T = 3264
PW = 3456
R3_T = 4480
H_T = 4992
OF_T = 5184
HR = 46080
OW = 5632
AB = 13824
LDS_BYTES = 48128
def TB(j, t): return 80 + 4*j + t

nstamp = [0]
def stamp():
    if not PROF: return
    k = nstamp[0]; nstamp[0] += 1
    assert k < 8
    e("s_memrealtime s[92:93]"); e("s_waitcnt lgkmcnt(0)"); e(f"v_mov_b32 v{160+k}, s92")
def stamp_store():
    if not PROF: return
    e("s_lshl_b32 s6, s2, 4"); e("s_add_u32 s6, s6, s3"); e("s_lshl_b32 s6, s6, 6"); e(f"s_add_u32 s6, s6, {16<<20}")
    e("v_mov_b32 v2, s6")
    e("v_cmp_eq_u32 vcc, 0, v1"); e("s_and_saveexec_b64 s[20:21], vcc")
    for q in range(2):
        e(f"buffer_store_dwordx4 v[{160+4*q}:{163+4*q}], v2, s[88:91], 0 offen offset:{16*q}")
    e("s_mov_b64 exec, s[20:21]")

def dpp(op, d, ctrl):
    e(f"{op}_dpp v{d}, v{d}, v{d} {ctrl} row_mask:0xf bank_mask:0xf")

def allreduce(op, regs, tmps, rors=(8, 4, 2, 1), rows=True):
    for r in rors:
        nop(1)
        for v in regs: dpp(op, v, f"row_ror:{r}")
    if rows:
        for sw in ("v_permlane16_swap_b32", "v_permlane32_swap_b32"):
            for v, t in zip(regs, tmps): e(f"v_mov_b32 v{t}, v{v}")
            nop(1)
            for v, t in zip(regs, tmps): e(f"{sw} v{v}, v{t}")
            nop(0)
            for v, t in zip(regs, tmps): e(f"{op} v{v}, v{v}, v{t}")

lbl_id = [0]
def newlab(p):
    lbl_id[0] += 1
    return f"L_{p}_{lbl_id[0]}"

def spin_lds(addr, va, vd, sleep=1):
    l, d = newlab("spin"), newlab("spind")
    e(f"v_mov_b32 v{va}, {addr}"); e("s_mov_b32 s12, 0")
    lab(l)
    e(f"ds_read_b32 v{vd}, v{va}")
    e("s_add_u32 s12, s12, 1")
    e("s_waitcnt lgkmcnt(0)")
    e(f"v_cmp_ne_u32 vcc, 0, v{vd}")
    e(f"s_cmp_gt_u32 s12, {SPINMAX*4}"); e(f"s_cbranch_scc1 {d}")
    e(f"s_cbranch_vccnz {d}")
    e(f"s_sleep {sleep}")
    e(f"s_branch {l}")
    lab(d)

def get_nonce(va, vd):
    l, d = newlab("gn"), newlab("gnd")
    e(f"v_mov_b32 v{va}, {NONCE}"); e("s_mov_b32 s12, 0")
    lab(l)
    e(f"ds_read_b64 v[{vd}:{vd+1}], v{va}")
    e("s_add_u32 s12, s12, 1")
    e("s_waitcnt lgkmcnt(0)")
    e(f"v_cmp_ne_u32 vcc, 0, v{vd}")
    e(f"s_cmp_gt_u32 s12, {SPINMAX*4}"); e(f"s_cbranch_scc1 {d}")
    e(f"s_cbranch_vccnz {d}")
    e("s_sleep 1")
    e(f"s_branch {l}")
    lab(d)
    e(f"v_readfirstlane_b32 s16, v{vd}"); e(f"v_readfirstlane_b32 s17, v{vd+1}")
    nop(1)

def set_flag(addr, va, vd):
    e(f"v_mov_b32 v{va}, {addr}"); e(f"v_mov_b32 v{vd}, 1"); e(f"ds_write_b32 v{va}, v{vd}"); e("s_waitcnt lgkmcnt(0)")

def gran(dst, a, b):
    e(f"v_mov_b32 v{dst}, s16"); e(f"v_mov_b32 v{dst+1}, v{a}"); e(f"v_mov_b32 v{dst+2}, v{b}"); e(f"v_mov_b32 v{dst+3}, s17")

def poll(loads, grans, t0, tags=None, sleep=0):
    l, d = newlab("poll"), newlab("polld")
    e("s_mov_b32 s12, 0")
    lab(l)
    for x in loads: e(x)
    e("s_add_u32 s12, s12, 1")
    e("s_waitcnt vmcnt(0)")
    for n, g in enumerate(grans):
        tl, th = ("s16", "s17") if tags is None else tags[n]
        e(f"v_xor_b32 v{t0+1}, {tl}, v{g}"); e(f"v_xor_b32 v{t0+2}, {th}, v{g+3}")
        if n == 0: e(f"v_or_b32 v{t0}, v{t0+1}, v{t0+2}")
        else: e(f"v_or3_b32 v{t0}, v{t0}, v{t0+1}, v{t0+2}")
    e(f"v_cmp_ne_u32 vcc, 0, v{t0}")
    e(f"s_cmp_gt_u32 s12, {SPINMAX}"); e(f"s_cbranch_scc1 {d}")
    e(f"s_cbranch_vccz {d}")
    if sleep: e(f"s_sleep {sleep}")
    e(f"s_branch {l}")
    lab(d)

nload = [0]
def thr():
    i = nload[0]; nload[0] += 1
    if i >= 16 and WLATE: return
    if PTH:
        if i >= PTH: e(f"s_waitcnt vmcnt({PTH-1})")
        return
    if not THR or i < THR: return
    l = newlab("thr")
    e("s_cmp_lg_u32 s14, 0"); e(f"s_cbranch_scc1 {l}")
    e("ds_read_b32 v9, v8")
    e("s_waitcnt lgkmcnt(0)")
    nop(0)
    e("v_readfirstlane_b32 s14, v9")
    e("s_cmp_lg_u32 s14, 0"); e(f"s_cbranch_scc1 {l}")
    e(f"s_waitcnt vmcnt({THR-1})")
    lab(l)

def srd(d, p, n):
    e(f"s_mov_b32 s{d}, s{p}"); e(f"s_and_b32 s{d+1}, s{p+1}, 0xffff"); e(f"s_mov_b32 s{d+2}, {n}"); e(f"s_mov_b32 s{d+3}, 0x20000")

def unpack9(p, p8):
    for k in range(4):
        e(f"v_lshlrev_b32 v{10+2*k}, 16, v{p+k}"); e(f"v_and_b32 v{11+2*k}, s25, v{p+k}")
    e(f"v_lshlrev_b32 v18, 16, v{p8}")
LNBASE = [104]
def layernorm(outp, out8):
    D = 20
    e(f"v_add_f32 v{LNBASE[0]+0}, v10, v11"); e(f"v_add_f32 v{LNBASE[0]+1}, v12, v13"); e(f"v_add_f32 v{LNBASE[0]+2}, v14, v15"); e(f"v_add_f32 v{LNBASE[0]+3}, v16, v17")
    e(f"v_add_f32 v{LNBASE[0]+0}, v{LNBASE[0]+0}, v{LNBASE[0]+1}"); e(f"v_add_f32 v{LNBASE[0]+2}, v{LNBASE[0]+2}, v{LNBASE[0]+3}"); e(f"v_add_f32 v{LNBASE[0]+0}, v{LNBASE[0]+0}, v18"); e(f"v_add_f32 v{LNBASE[0]+0}, v{LNBASE[0]+0}, v{LNBASE[0]+2}")
    allreduce(f"v_add_f32", [LNBASE[0]], [LNBASE[0]+1])
    e(f"v_mul_f32 v{LNBASE[0]+0}, 0x3ae38e39, v{LNBASE[0]+0}")
    for k in range(9): e(f"v_sub_f32 v{D+k}, v{10+k}, v{LNBASE[0]+0}")
    e(f"v_mul_f32 v{LNBASE[0]+2}, v{D}, v{D}"); e(f"v_mul_f32 v{LNBASE[0]+3}, v{D+1}, v{D+1}"); e(f"v_mul_f32 v{LNBASE[0]+4}, v{D+2}, v{D+2}")
    for k in range(3, 9): e(f"v_fmac_f32 v{LNBASE[0]+2+k%3}, v{D+k}, v{D+k}")
    e(f"v_add_f32 v{LNBASE[0]+2}, v{LNBASE[0]+2}, v{LNBASE[0]+3}"); e(f"v_add_f32 v{LNBASE[0]+2}, v{LNBASE[0]+2}, v{LNBASE[0]+4}")
    allreduce(f"v_add_f32", [LNBASE[0]+2], [LNBASE[0]+1])
    e(f"v_mul_f32 v{LNBASE[0]+2}, 0x3ae38e39, v{LNBASE[0]+2}")
    e(f"v_cvt_pk_bf16_f32 v{LNBASE[0]+1}, v{LNBASE[0]+0}, v{LNBASE[0]+2}")
    e(f"v_lshlrev_b32 v{LNBASE[0]+0}, 16, v{LNBASE[0]+1}"); e(f"v_and_b32 v{LNBASE[0]+2}, s25, v{LNBASE[0]+1}")
    e(f"v_add_f32 v{LNBASE[0]+2}, 0x3727c5ac, v{LNBASE[0]+2}")
    e(f"v_cvt_pk_bf16_f32 v{LNBASE[0]+2}, v{LNBASE[0]+2}, v{LNBASE[0]+2}"); e(f"v_and_b32 v{LNBASE[0]+2}, s25, v{LNBASE[0]+2}")
    e(f"v_sqrt_f32 v{LNBASE[0]+2}, v{LNBASE[0]+2}"); nop(0)
    e(f"v_cvt_pk_bf16_f32 v{LNBASE[0]+2}, v{LNBASE[0]+2}, v{LNBASE[0]+2}"); e(f"v_and_b32 v{LNBASE[0]+2}, s25, v{LNBASE[0]+2}")
    e(f"v_rcp_f32 v{LNBASE[0]+3}, v{LNBASE[0]+2}")
    for k in range(9): e(f"v_sub_f32 v{D+k}, v{10+k}, v{LNBASE[0]+0}")
    for k in range(4): e(f"v_cvt_pk_bf16_f32 v{LNBASE[0]+4+k}, v{D+2*k}, v{D+1+2*k}")
    e(f"v_cvt_pk_bf16_f32 v{LNBASE[0]+8}, v{D+8}, v{D+8}")
    for k in range(4):
        e(f"v_lshlrev_b32 v{D+2*k}, 16, v{LNBASE[0]+4+k}"); e(f"v_and_b32 v{D+1+2*k}, s25, v{LNBASE[0]+4+k}")
    e(f"v_lshlrev_b32 v{D+8}, 16, v{LNBASE[0]+8}")
    for k in range(9): e(f"v_mul_f32 v{10+k}, v{D+k}, v{LNBASE[0]+3}")
    for k in range(9): e(f"v_fma_f32 v{D+k}, -v{10+k}, v{LNBASE[0]+2}, v{D+k}")
    for k in range(9): e(f"v_fmac_f32 v{10+k}, v{D+k}, v{LNBASE[0]+3}")
    for k in range(4): e(f"v_cvt_pk_bf16_f32 v{outp+k}, v{10+2*k}, v{11+2*k}")
    e(f"v_cvt_pk_bf16_f32 v{out8}, v18, v18")

def tile_products(tbl, step, n):
    for c0 in range(0, n, 12):
        m = min(12, n - c0)
        for i in range(m): e(f"ds_read_u16 v{10+i}, v2 offset:{tbl+step*(c0+i)}")
        for i in range(m):
            e(f"s_waitcnt lgkmcnt({m-1-i})")
            e(f"v_lshlrev_b32 v{28+(i&1)}, 16, v{10+i}")
            e(f"s_waitcnt vmcnt({n-1-c0-i})")
            for k in range(4):
                for z in range(2):
                    d = ACC + 2*k + z
                    c = "0" if c0 + i == 0 else f"v{d}"
                    e(f"v_dot2_f32_bf16 v{d}, v{32+4*(c0+i)+k}, v{10+i if z == 0 else 28+(i&1)}, {c}")
        nop(2)
ACC = 104

L.append(f"; @launch grid=(256,1,1) block=(768,1,1) lds={LDS_BYTES}")
L.append('.amdgcn_target "amdgcn-amd-amdhsa--gfx950"')
L.append(".text"); L.append(f".globl {NAME}_kernel"); L.append(".p2align 8")
L.append(f".type {NAME}_kernel,@function"); lab(f"{NAME}_kernel")
e("s_cmp_ge_u32 s2, 256"); e("s_cbranch_scc1 L_end")
e("s_load_dwordx16 s[36:51], s[0:1], 0"); e("s_load_dwordx8 s[52:59], s[0:1], 64"); e("s_load_dwordx2 s[60:61], s[0:1], 96")
e("v_and_b32 v1, 63, v0"); e("v_lshrrev_b32 v2, 6, v0"); nop(1); e("v_readfirstlane_b32 s3, v2")
e("s_lshr_b32 s4, s2, 4"); e("s_and_b32 s5, s2, 15")
e("s_mov_b32 s24, 0x3fb8aa3b"); e("s_mov_b32 s25, 0xffff0000")
e("s_waitcnt lgkmcnt(0)")
srd(88, 60, 1 << 30)
stamp()
ns0 = nstamp[0]
e("s_cmp_ge_u32 s3, 4"); e("s_cbranch_scc1 L_kv")
e("s_cmp_eq_u32 s3, 2"); e("s_cbranch_scc1 L_sync")
e("s_cmp_lg_u32 s3, 0"); e("s_cbranch_scc1 L_h")

srd(72, 42, 576*4096*2)
e("v_lshlrev_b32 v3, 4, v1"); e("global_load_dwordx4 v[4:7], v3, s[36:37]")
e("v_lshlrev_b32 v9, 1, v1"); e("global_load_ushort v8, v9, s[36:37] offset:1024")
e("v_lshrrev_b32 v19, 3, v1"); e("v_and_b32 v2, 7, v1")
e("v_lshlrev_b32 v116, 13, v19"); e("v_lshl_add_u32 v116, v2, 4, v116")
e("s_and_b32 s8, s2, 3"); e("s_mul_i32 s8, s8, 144")
e("s_lshl_b32 s9, s8, 13"); e("s_lshr_b32 s10, s2, 2"); e("s_lshl_b32 s10, s10, 7"); e("s_add_u32 s9, s9, s10")
for i in range(18):
    e(f"buffer_load_dwordx4 v[{32+4*i}:{35+4*i}], v116, s[72:75], s9 offen{NT}")
    if i < 17: e("s_add_u32 s9, s9, 65536")
e("s_barrier")
e("s_waitcnt vmcnt(18)")
stamp()
unpack9(4, 8)
layernorm(4, 8)
e(f"ds_write_b128 v3, v[4:7] offset:{XN_T}"); e(f"ds_write_b16 v9, v8 offset:{XN_T+1024}")
e("s_lshl_b32 s9, s8, 1"); e("v_lshl_add_u32 v2, v19, 1, s9")
e("s_waitcnt lgkmcnt(0)")
get_nonce(30, 114)
tile_products(XN_T, 16, 18)
stamp()
nop(2)
for k in range(4): e(f"v_permlane32_swap_b32 v{104+k}, v{108+k}")
nop(0)
for k in range(4): e(f"v_add_f32 v{104+k}, v{104+k}, v{108+k}")
nop(1)
for k in range(2): e(f"v_permlane16_swap_b32 v{104+k}, v{106+k}")
nop(0)
for k in range(2): e(f"v_add_f32 v{104+k}, v{104+k}, v{106+k}")
nop(1)
for k in range(2): dpp("v_add_f32", 104+k, "row_ror:8")
gran(12, 104, 105)
e("v_and_b32 v2, 7, v1"); e("v_lshlrev_b32 v2, 6, v2"); e("v_lshrrev_b32 v10, 5, v1"); e("v_lshl_add_u32 v2, v10, 5, v2")
e("v_bfe_u32 v10, v1, 4, 1"); e("v_lshl_add_u32 v2, v10, 4, v2")
e("s_lshl_b32 s9, s2, 13")
e("v_and_b32 v10, 8, v1"); e("v_cmp_eq_u32 vcc, 0, v10"); e("s_and_saveexec_b64 s[20:21], vcc")
e("buffer_store_dwordx4 v[12:15], v2, s[88:91], s9 offen sc1")
e("s_mov_b64 exec, s[20:21]")
stamp()
e("s_lshl_b32 s9, s4, 17"); e("v_and_b32 v3, 31, v1"); e("v_lshlrev_b32 v3, 4, v3"); e("v_lshrrev_b32 v10, 5, v1"); e("v_lshl_add_u32 v3, v10, 15, v3")
loads = []
for i2 in range(2):
    for rb in range(4):
        n = 4*i2 + rb
        loads.append(f"s_add_u32 s10, s9, {8192*(8*i2+rb)}")
        loads.append(f"buffer_load_dwordx4 v[{32+4*n}:{35+4*n}], v3, s[88:91], s10 offen sc1")
poll(loads, [32+4*x for x in range(8)], 20)
stamp()
for i2 in range(2):
    b0 = 32 + 16*i2
    for k in (1, 2): e(f"v_add_f32 v{b0+k}, v{b0+k}, v{b0+4+k}"); e(f"v_add_f32 v{b0+8+k}, v{b0+8+k}, v{b0+12+k}")
for i2 in range(2):
    b0 = 32 + 16*i2
    for k in (1, 2): e(f"v_add_f32 v{b0+k}, v{b0+k}, v{b0+8+k}")
e("v_cvt_pk_bf16_f32 v32, v33, v34"); e("v_cvt_pk_bf16_f32 v33, v49, v50")
e("v_lshlrev_b32 v4, 2, v1")
e(f"ds_write_b32 v4, v32 offset:{Q_T}"); e(f"ds_write_b32 v4, v33 offset:{Q_T+256}")
e("s_waitcnt lgkmcnt(0)")
set_flag(FQ, 10, 11)
stamp()
e("v_lshrrev_b32 v4, 2, v1"); e("v_lshlrev_b32 v4, 12, v4")
e("v_and_b32 v5, 3, v1"); e("v_lshl_add_u32 v5, v5, 4, v4")
e("s_lshl_b32 s9, s4, 16"); e(f"s_add_u32 s9, s9, {OB2}")
e("s_lshr_b32 s11, s5, 2"); e("s_lshl_b32 s10, s11, 8"); e("s_add_u32 s10, s10, s9")
e("s_lshr_b32 s11, s5, 3"); e("s_lshl_b32 s11, s11, 4"); e("s_add_u32 s11, s11, s9")
spin_lds(FO, 10, 11, sleep=2)
loads = []
for q in range(4):
    loads.append(f"buffer_load_dwordx4 v[{32+8*q}:{35+8*q}], v5, s[88:91], s10 offen offset:{64*q} sc1")
    loads.append(f"buffer_load_dwordx4 v[{36+8*q}:{39+8*q}], v5, s[88:91], s10 offen offset:{1024+64*q} sc1")
loads.append("buffer_load_dwordx4 v[64:67], v4, s[88:91], s11 offen offset:2048 sc1")
poll(loads, [32+4*x for x in range(9)], 20, sleep=X2SLEEP)
stamp()
e("v_mov_b32 v68, v65")
allreduce("v_max_f32", [68], [69], rors=(4, 8))
e("v_sub_f32 v65, v65, v68"); e("v_mul_f32 v65, s24, v65"); e("v_exp_f32 v65, v65"); nop(0)
e("v_mul_f32 v66, v65, v66")
DR = [32+8*q+k for q in range(4) for k in (1, 2, 5, 6)]
for k in DR: e(f"v_mul_f32 v{k}, v65, v{k}")
allreduce("v_add_f32", DR + [66], list(range(72, 89)), rors=(4, 8))
e("v_rcp_f32 v66, v66"); nop(0)
for k in DR: e(f"v_mul_f32 v{k}, v66, v{k}")
for q in range(4):
    e(f"v_cvt_pk_bf16_f32 v{72+2*q}, v{33+8*q}, v{34+8*q}"); e(f"v_cvt_pk_bf16_f32 v{73+2*q}, v{37+8*q}, v{38+8*q}")
e("v_mov_b32 v80, 0"); e("v_mov_b32 v81, 0")
e("v_lshlrev_b32 v4, 3, v1")
e("v_cmp_gt_u32 vcc, 4, v1"); e("s_and_saveexec_b64 s[20:21], vcc")
for q in range(4): e(f"ds_write_b64 v4, v[{72+2*q}:{73+2*q}] offset:{OF_T+32*q}")
for q in range(4, 6): e(f"ds_write_b64 v4, v[80:81] offset:{OF_T+32*q}")
e("s_mov_b64 exec, s[20:21]")
e("s_waitcnt lgkmcnt(0)")
e("s_barrier")
stamp()
stamp_store()
e("s_endpgm")

lab("L_h")
nstamp[0] = ns0
e("s_cmp_eq_u32 s3, 1"); e("s_cbranch_scc1 L_h1")
e("s_barrier")
e("s_endpgm")
lab("L_h1")
srd(80, 48, 576*4608*2)
e("v_lshlrev_b32 v3, 4, v1"); e("global_load_dwordx4 v[4:7], v3, s[36:37]")
e("v_lshlrev_b32 v9, 1, v1"); e("global_load_ushort v8, v9, s[36:37] offset:1024")
e("v_mul_u32_u24 v140, 3641, v1"); e("v_lshrrev_b32 v140, 16, v140")
e("v_mul_u32_u24 v141, 18, v140"); e("v_sub_u32 v141, v1, v141")
e("s_movk_i32 s12, 9216"); e("v_mul_lo_u32 v142, v140, s12"); e("v_lshl_add_u32 v142, v141, 4, v142")
e(f"v_mov_b32 v2, {INV}"); e("v_cmp_gt_u32 vcc, 54, v1"); nop(1); e("v_cndmask_b32 v142, v2, v142, vcc")
e("s_and_b32 s8, s5, 7"); e("s_mul_i32 s8, s8, 72")
e("s_mul_i32 s9, s8, 9216"); e("s_mul_i32 s10, s4, 576"); e("s_add_u32 s9, s9, s10"); e("s_lshr_b32 s10, s5, 3"); e("s_mul_i32 s10, s10, 288"); e("s_add_u32 s9, s9, s10")
for i in range(24):
    e(f"buffer_load_dwordx4 v[{32+4*i}:{35+4*i}], v142, s[80:83], s9 offen{NT}")
    if i < 23: e(f"s_add_u32 s9, s9, {3*9216}")
e("s_barrier")
e("s_waitcnt vmcnt(24)")
stamp()
LNBASE[0] = 144
unpack9(4, 8); layernorm(4, 8); unpack9(4, 8); layernorm(4, 8)
LNBASE[0] = 104
e(f"ds_write_b128 v3, v[4:7] offset:{Y_T}"); e(f"ds_write_b16 v9, v8 offset:{Y_T+1024}")
e("s_lshl_b32 s9, s8, 1"); e("v_min_u32 v2, 2, v140"); e("v_lshl_add_u32 v2, v2, 1, s9")
e("s_waitcnt lgkmcnt(0)")
get_nonce(30, 144)
ACC = 128
tile_products(Y_T, 6, 24)
stamp()
e("v_lshlrev_b32 v2, 5, v1")
e(f"ds_write_b128 v2, v[{ACC}:{ACC+3}] offset:{HR}"); e(f"ds_write_b128 v2, v[{ACC+4}:{ACC+7}] offset:{HR+16}")
ACC = 104
e("v_lshlrev_b32 v2, 3, v1")
e("s_waitcnt lgkmcnt(0)")
for n in range(2):
    for sub in range(3): e(f"ds_read_b64 v[{32+8*n+2*sub}:{33+8*n+2*sub}], v2 offset:{HR+512*n+576*sub}")
e("s_waitcnt lgkmcnt(0)")
for n in range(2):
    for k in range(2): e(f"v_add_f32 v{32+8*n+k}, v{32+8*n+k}, v{34+8*n+k}"); e(f"v_add_f32 v{32+8*n+k}, v{32+8*n+k}, v{36+8*n+k}")
gran(12, 32, 33); gran(16, 40, 41)
e("v_lshlrev_b32 v2, 4, v1")
e("s_lshl_b32 s9, s2, 13")
e("buffer_store_dwordx4 v[12:15], v2, s[88:91], s9 offen offset:1024 sc1")
e("v_cmp_gt_u32 vcc, 8, v1"); e("s_and_saveexec_b64 s[20:21], vcc")
e("buffer_store_dwordx4 v[16:19], v2, s[88:91], s9 offen offset:2048 sc1")
e("s_mov_b64 exec, s[20:21]")
e("v_min_u32 v7, 35, v1")
e("s_lshr_b32 s8, s5, 2")
e("s_mul_i32 s9, s4, 576"); e("s_mul_i32 s10, s8, 144"); e("s_add_u32 s9, s9, s10"); e("v_lshl_add_u32 v6, v7, 2, s9")
e("global_load_dword v30, v6, s[50:51]")
stamp()
e("v_lshlrev_b32 v7, 4, v7")
e("s_lshl_b32 s9, s4, 17"); e("s_lshr_b32 s10, s5, 3"); e("s_lshl_b32 s10, s10, 16"); e("s_add_u32 s9, s9, s10")
e("s_and_b32 s10, s8, 1"); e("s_mul_i32 s10, s10, 576"); e("s_add_u32 s9, s9, s10")
spin_lds(FQ, 10, 11, sleep=4)
loads = []
for i in range(8):
    loads.append(f"s_add_u32 s10, s9, {8192*i + 1024}")
    loads.append(f"buffer_load_dwordx4 v[{32+4*i}:{35+4*i}], v7, s[88:91], s10 offen sc1")
poll(loads, [32+4*i for i in range(8)], 20, sleep=2)
stamp()
for st in (4, 2, 1):
    for p in range(st):
        for k in (1, 2): e(f"v_add_f32 v{32+4*p+k}, v{32+4*p+k}, v{32+4*(p+st)+k}")
e("v_cvt_pk_bf16_f32 v35, v33, v34"); e("v_lshlrev_b32 v33, 16, v35"); e("v_and_b32 v34, s25, v35")
e("v_lshlrev_b32 v36, 16, v30"); e("v_and_b32 v37, s25, v30")
e("v_add_f32 v33, v33, v36"); e("v_add_f32 v34, v34, v37")
e("v_cvt_pk_bf16_f32 v35, v33, v34"); e("v_lshlrev_b32 v33, 16, v35"); e("v_and_b32 v34, s25, v35")
for r in (33, 34):
    t = r + 7
    u = r + 9
    e(f"v_mul_f32 v{t}, v{r}, v{r}"); e(f"v_mul_f32 v{t}, v{t}, v{r}"); e(f"v_mov_b32 v{u}, v{r}"); e(f"v_fmac_f32 v{u}, 0x3d372713, v{t}")
    e(f"v_mul_f32 v{u}, 0x40135761, v{u}"); e(f"v_exp_f32 v{u}, v{u}"); nop(0); e(f"v_add_f32 v{u}, 1.0, v{u}"); e(f"v_rcp_f32 v{u}, v{u}"); nop(0)
    e(f"v_fma_f32 v{u}, -2.0, v{u}, 1.0")
    e(f"v_add_f32 v{u}, 1.0, v{u}"); e(f"v_mul_f32 v{t}, 0.5, v{r}"); e(f"v_mul_f32 v{u}, v{t}, v{u}")
e("v_cvt_pk_bf16_f32 v35, v42, v43")
e("v_cmp_gt_u32 vcc, 36, v1"); nop(1); e("v_cndmask_b32 v35, 0, v35, vcc")
e("v_lshlrev_b32 v4, 2, v1")
e("v_cmp_gt_u32 vcc, 48, v1"); e("s_and_saveexec_b64 s[20:21], vcc")
e(f"ds_write_b32 v4, v35 offset:{H_T}")
e("s_mov_b64 exec, s[20:21]")
e("s_waitcnt lgkmcnt(0)")
stamp()
stamp_store()
e("s_endpgm")

lab("L_sync")
nstamp[0] = ns0
e("s_memrealtime s[16:17]")
e("s_and_b32 s9, s4, 3"); e("s_lshl_b32 s9, s9, 6"); e("s_lshr_b32 s10, s4, 2"); e("s_lshl_b32 s10, s10, 3"); e("s_add_u32 s9, s9, s10")
e("v_mov_b32 v2, s9"); e("v_mov_b32 v6, 0"); e("v_mov_b32 v7, 0")
for k in range(4): e(f"v_mov_b32 v{8+k}, 0")
e(f"v_mov_b32 v12, {FLG}")
e("s_waitcnt lgkmcnt(0)")
e("s_or_b32 s16, s16, 1")
e("v_mov_b32 v4, s16"); e("v_mov_b32 v5, s17")
e("v_cmp_eq_u32 vcc, 0, v1"); e("s_and_saveexec_b64 s[20:21], vcc")
e("global_atomic_cmpswap_x2 v[14:15], v2, v[4:7], s[58:59] sc0")
e("s_mov_b64 exec, s[20:21]")
e("ds_write_b128 v12, v[8:11]"); e("ds_write_b128 v12, v[8:11] offset:16")
e("s_waitcnt lgkmcnt(0)")
e("s_barrier")
e("s_waitcnt vmcnt(0)")
nop(0)
e("v_readfirstlane_b32 s10, v14"); e("v_readfirstlane_b32 s11, v15")
e("s_cmp_eq_u32 s10, 0"); e("s_cselect_b32 s16, s16, s10"); e("s_cselect_b32 s17, s17, s11")
e("v_mov_b32 v4, s16"); e("v_mov_b32 v5, s17"); e(f"v_mov_b32 v12, {NONCE}")
e("ds_write_b64 v12, v[4:5]")
e("s_waitcnt lgkmcnt(0)")
stamp()
e(f"s_cmp_ge_u32 s2, {NRED}"); e("s_cbranch_scc1 L_w2end")
spin_lds(FQ, 12, 13, sleep=8)
e("v_and_b32 v2, 15, v1"); e("v_and_b32 v3, 3, v2"); e("v_lshlrev_b32 v3, 6, v3"); e("v_lshrrev_b32 v4, 2, v2"); e("v_lshl_add_u32 v3, v4, 3, v3")
l_, d_ = newlab("np"), newlab("npd")
e("s_mov_b32 s12, 0")
lab(l_)
e("global_load_dwordx2 v[4:5], v3, s[58:59] sc1")
e("s_add_u32 s12, s12, 1")
e("s_waitcnt vmcnt(0)")
e("v_cmp_eq_u32 vcc, 0, v4")
e(f"s_cmp_gt_u32 s12, {SPINMAX}"); e(f"s_cbranch_scc1 {d_}")
e(f"s_cbranch_vccz {d_}")
e("s_sleep 8"); e(f"s_branch {l_}")
lab(d_)
e("v_lshlrev_b32 v2, 3, v2")
e(f"ds_write_b64 v2, v[4:5] offset:{NT_T}")
e("s_waitcnt lgkmcnt(0)")
set_flag(FC2, 10, 11)
lab("L_w2end")
stamp()
stamp_store()
e("s_endpgm")

lab("L_kv")
nstamp[0] = ns0
srd(64, 38, 268435456); srd(68, 40, 268435456); srd(76, 44, 4096*576*2); srd(84, 52, 4608*576*2)
e("s_sub_u32 s7, s3, 4")
e("s_lshl_b32 s9, s4, 24"); e("s_lshl_b32 s10, s5, 16"); e("s_add_u32 s9, s9, s10"); e(f"s_add_u32 s9, s9, {61440*256}")
e("s_lshl_b32 s10, s7, 13"); e("s_add_u32 s9, s9, s10"); e("s_add_u32 s10, s9, 4096")
e("v_and_b32 v10, 15, v1"); e("v_lshrrev_b32 v11, 4, v1")
e("v_lshlrev_b32 v3, 8, v10"); e("v_lshl_add_u32 v3, v11, 4, v3")
e("v_lshlrev_b32 v12, 11, v11"); e("v_lshl_add_u32 v12, v10, 4, v12")
KR, VR = 16, 48
e("s_barrier")
e("s_mov_b32 s14, 0"); e(f"v_mov_b32 v8, {FQ}")
for T in range(2):
    for b_ in range(4):
        i = 4*T + b_
        thr()
        e(f"buffer_load_dwordx4 v[{KR+4*i}:{KR+3+4*i}], v3, s[64:67], s{9+T} offen offset:{b_*64}{NT}")
for i in range(8):
    thr()
    e(f"buffer_load_dwordx4 v[{VR+4*i}:{VR+3+4*i}], v12, s[68:71], s9 offen offset:{i*256}{NT}")
WR = 128
def wloads():
    e("v_subrev_u32 v13, 256, v0")
    e("v_mul_u32_u24 v14, 3641, v13"); e("v_lshrrev_b32 v14, 16, v14")
    e("v_mul_u32_u24 v15, 18, v14"); e("v_sub_u32 v15, v13, v15")
    e("v_mul_u32_u24 v4, 1152, v14"); e("v_lshl_add_u32 v4, v15, 4, v4")
    e(f"v_mov_b32 v7, {INV}"); e("v_cmp_gt_u32 vcc, 28, v14"); nop(1); e("v_cndmask_b32 v4, v7, v4, vcc")
    e("v_cmp_gt_u32 vcc, 16, v14"); nop(1); e("v_cndmask_b32 v5, v7, v4, vcc")
    e("v_cmp_gt_u32 vcc, 8, v14"); nop(1); e("v_cndmask_b32 v6, v7, v4, vcc")
    e("s_lshr_b32 s13, s2, 2"); e("s_and_b32 s15, s2, 3"); e("s_mul_i32 s15, s15, 288")
    e(f"s_mul_i32 s9, s13, {72*1152}"); e("s_add_u32 s9, s9, s15"); e(f"s_add_u32 s10, s9, {28*1152}"); e(f"s_add_u32 s11, s9, {56*1152}")
    thr(); e(f"buffer_load_dwordx4 v[{WR}:{WR+3}], v4, s[84:87], s9 offen{NT}")
    thr(); e(f"buffer_load_dwordx4 v[{WR+4}:{WR+7}], v4, s[84:87], s10 offen{NT}")
    thr(); e(f"buffer_load_dwordx4 v[{WR+8}:{WR+11}], v5, s[84:87], s11 offen{NT}")
    e(f"s_mul_i32 s9, s13, {64*1152}"); e("s_add_u32 s9, s9, s15"); e(f"s_add_u32 s10, s9, {28*1152}"); e(f"s_add_u32 s11, s9, {56*1152}")
    thr(); e(f"buffer_load_dwordx4 v[{WR+12}:{WR+15}], v4, s[76:79], s9 offen{NT}")
    thr(); e(f"buffer_load_dwordx4 v[{WR+16}:{WR+19}], v4, s[76:79], s10 offen{NT}")
    thr(); e(f"buffer_load_dwordx4 v[{WR+20}:{WR+23}], v6, s[76:79], s11 offen{NT}")
    e(f"s_min_u32 s13, s2, {NRED-1}"); e("s_lshl_b32 s13, s13, 4"); e("v_and_b32 v6, 1, v1"); e("v_lshlrev_b32 v6, 3, v6"); e(f"v_add_u32 v{WR+28}, s13, v6")
    e(f"global_load_dwordx2 v[{WR+24}:{WR+25}], v{WR+28}, s[36:37]"); e(f"global_load_dwordx2 v[{WR+26}:{WR+27}], v{WR+28}, s[54:55]")

if not WLATE: wloads()
e("v_cmp_eq_u32 s[28:29], 1, v11"); e("v_cmp_eq_u32 s[30:31], 2, v11"); e("v_cmp_eq_u32 s[32:33], 3, v11")
e("s_mov_b32 s27, 0x3db504f3"); e("s_mov_b32 s34, 0x05040100"); e("s_mov_b32 s35, 0x07060302")
spin_lds(FQ, 4, 5, sleep=2)
get_nonce(4, 6)
stamp()
e("v_and_b32 v4, 1, v1"); e("v_lshlrev_b32 v4, 8, v4"); e("v_lshl_add_u32 v4, v11, 4, v4")
for b_ in range(4): e(f"ds_read_b128 v[{96+4*b_}:{99+4*b_}], v4 offset:{Q_T+64*b_}")
e("s_waitcnt lgkmcnt(0)")
e(f"s_waitcnt vmcnt({8 if WLATE else 16})")
stamp()
for T in range(2):
    for b_ in range(4):
        i = 4*T + b_
        c = "0" if b_ == 0 else f"v[{80+4*T}:{83+4*T}]"
        e(f"v_mfma_f32_16x16x32_bf16 v[{80+4*T}:{83+4*T}], v[{96+4*b_}:{99+4*b_}], v[{KR+4*i}:{KR+3+4*i}], {c}")
nop(7); nop(1)
SS = [80, 81, 84, 85]
e("v_cvt_pk_bf16_f32 v16, v80, v81"); e("v_cvt_pk_bf16_f32 v17, v84, v85")
e("v_lshlrev_b32 v80, 16, v16"); e("v_and_b32 v81, s25, v16"); e("v_lshlrev_b32 v84, 16, v17"); e("v_and_b32 v85, s25, v17")
for r in SS: e(f"v_mul_f32 v{r}, s27, v{r}")
e("v_cvt_pk_bf16_f32 v16, v80, v81"); e("v_cvt_pk_bf16_f32 v17, v84, v85")
e("v_lshlrev_b32 v80, 16, v16"); e("v_and_b32 v81, s25, v16"); e("v_lshlrev_b32 v84, 16, v17"); e("v_and_b32 v85, s25, v17")
e("v_max_f32 v24, v80, v84"); e("v_max_f32 v25, v81, v85")
allreduce("v_max_f32", [24, 25], [], rows=False)
for r in SS: e(f"v_sub_f32 v{r}, v{r}, v{24+(r&1)}")
for r in SS: e(f"v_mul_f32 v{r}, s24, v{r}")
for r in SS: e(f"v_exp_f32 v{r}, v{r}")
nop(0)
e("v_add_f32 v28, v80, v84"); e("v_add_f32 v29, v81, v85")
e("v_cvt_pk_bf16_f32 v16, v80, v81"); e("v_cvt_pk_bf16_f32 v17, v84, v85")
e("s_lshl_b32 s11, s7, 7"); e("v_lshl_add_u32 v5, v10, 1, s11")
e(f"ds_write_b16 v5, v16 offset:{PW}"); e(f"ds_write_b16_d16_hi v5, v16 offset:{PW+64}")
e(f"ds_write_b16 v5, v17 offset:{PW+32}"); e(f"ds_write_b16_d16_hi v5, v17 offset:{PW+96}")
e("v_and_b32 v6, 1, v1"); e("v_lshlrev_b32 v6, 6, v6"); e("v_lshl_add_u32 v6, v11, 4, v6"); e("v_add_u32 v6, s11, v6")
allreduce("v_add_f32", [28, 29], [], rows=False)
e("s_waitcnt lgkmcnt(0)")
e(f"ds_read_b128 v[20:23], v6 offset:{PW}")
for t in range(4):
    e(f"s_waitcnt vmcnt({(6 if WLATE else 14)-2*t})")
    if WLATE and t == 3: wloads()
    for d2 in range(4):
        lo, hi = VR+4*(2*t)+d2, VR+4*(2*t+1)+d2
        e(f"v_perm_b32 v{TB(2*d2, t)}, v{hi}, v{lo}, s34")
        e(f"v_perm_b32 v{TB(2*d2+1, t)}, v{hi}, v{lo}, s35")
e("s_waitcnt lgkmcnt(0)")
nop(1)
for j in range(8):
    e(f"v_mfma_f32_16x16x32_bf16 v[{VR+4*j}:{VR+3+4*j}], v[20:23], v[{TB(j,0)}:{TB(j,3)}], 0")
stamp()
nop(7); nop(1)
for k in range(4): e(f"v_cndmask_b32 v{32+k}, v{VR+4*k}, v{VR+4*(k+4)}, s[28:29]")
for k in range(4): e(f"v_cndmask_b32 v{32+k}, v{32+k}, v{VR+4*k+1}, s[30:31]")
for k in range(4): e(f"v_cndmask_b32 v{32+k}, v{32+k}, v{VR+4*(k+4)+1}, s[32:33]")
e("v_lshrrev_b32 v5, 1, v11"); e("v_lshlrev_b32 v5, 9, v5"); e("v_lshl_add_u32 v5, v10, 5, v5")
e("v_and_b32 v6, 1, v11"); e("v_lshl_add_u32 v5, v6, 4, v5")
e("s_lshl_b32 s11, s7, 10"); e("v_add_u32 v5, s11, v5")
e(f"ds_write_b128 v5, v[32:35] offset:{OW}")
e("v_mov_b32 v36, v24"); e("v_mov_b32 v37, v28"); e("v_mov_b32 v38, v25"); e("v_mov_b32 v39, v29")
e("s_lshl_b32 s11, s7, 4"); e("v_mov_b32 v6, s11")
e(f"ds_write_b128 v6, v[36:39] offset:{ML_T}")
e("v_mov_b32 v7, 1"); e(f"v_mov_b32 v6, {CNT}")
e("s_waitcnt lgkmcnt(0)")
e("v_cmp_eq_u32 vcc, 0, v1"); e("s_and_saveexec_b64 s[20:21], vcc")
e("ds_add_rtn_u32 v7, v6, v7")
e("s_waitcnt lgkmcnt(0)")
e("s_mov_b64 exec, s[20:21]")
nop(0)
e("v_readfirstlane_b32 s11, v7")
e("s_cmp_lg_u32 s11, 7"); e("s_cbranch_scc1 L_kv_done")
e("v_mov_b32 v6, 0")
for w in range(8): e(f"ds_read_b128 v[{16+4*w}:{19+4*w}], v6 offset:{ML_T+16*w}")
e("v_lshlrev_b32 v5, 4, v1")
for w in range(8): e(f"ds_read_b128 v[{48+4*w}:{51+4*w}], v5 offset:{OW+1024*w}")
e("v_cmp_gt_u32 vcc, 32, v1")
e("s_waitcnt lgkmcnt(8)")
nop(0)
for w in range(8):
    e(f"v_cndmask_b32 v{80+w}, v{18+4*w}, v{16+4*w}, vcc")
    e(f"v_cndmask_b32 v{88+w}, v{19+4*w}, v{17+4*w}, vcc")
e("v_max3_f32 v8, v80, v81, v82"); e("v_max3_f32 v9, v83, v84, v85"); e("v_max3_f32 v8, v8, v86, v87"); e("v_max_f32 v8, v8, v9")
for w in range(8): e(f"v_sub_f32 v{80+w}, v{80+w}, v8")
for w in range(8): e(f"v_mul_f32 v{80+w}, s24, v{80+w}")
for w in range(8): e(f"v_exp_f32 v{80+w}, v{80+w}")
nop(0)
e("v_mul_f32 v9, v80, v88")
for w in range(1, 8): e(f"v_fmac_f32 v9, v{80+w}, v{88+w}")
e("s_waitcnt lgkmcnt(0)")
for k in range(4): e(f"v_mul_f32 v{96+k}, v80, v{48+k}")
for w in range(1, 8):
    for k in range(4): e(f"v_fmac_f32 v{96+k}, v{80+w}, v{48+4*w+k}")
gran(100, 96, 97); gran(104, 98, 99); gran(108, 8, 9)
e("s_lshl_b32 s11, s2, 12"); e(f"s_add_u32 s11, s11, {OB2}")
e("buffer_store_dwordx4 v[100:103], v5, s[88:91], s11 offen sc1")
e("buffer_store_dwordx4 v[104:107], v5, s[88:91], s11 offen offset:1024 sc1")
e("v_lshrrev_b32 v6, 5, v1"); e("v_lshlrev_b32 v6, 4, v6")
e("v_and_b32 v7, 31, v1"); e("v_cmp_eq_u32 vcc, 0, v7"); e("s_and_saveexec_b64 s[20:21], vcc")
e("buffer_store_dwordx4 v[108:111], v6, s[88:91], s11 offen offset:2048 sc1")
e("s_mov_b64 exec, s[20:21]")
set_flag(FO, 6, 7)
lab("L_kv_done")
stamp()
e("s_barrier")
stamp()
e("v_lshlrev_b32 v26, 1, v14")
for i in range(3):
    e(f"ds_read_u16 v{16+i}, v26 offset:{H_T+56*i}"); e(f"ds_read_u16 v{19+i}, v26 offset:{OF_T+56*i}")
e("s_waitcnt lgkmcnt(0)")
for i in range(6): e(f"v_lshlrev_b32 v{32+i}, 16, v{16+i}")
e("s_waitcnt vmcnt(0)")
for part in range(2):
    for i in range(3):
        for k in range(4):
            for z in range(2):
                d = 48 + 8*part + 2*k + z
                c = "0" if i == 0 else f"v{d}"
                e(f"v_dot2_f32_bf16 v{d}, v{WR+12*part+4*i+k}, v{(16 if z == 0 else 32)+3*part+i}, {c}")
nop(2)
e("v_mul_u32_u24 v27, 1152, v14"); e("v_lshl_add_u32 v27, v15, 5, v27")
e("v_cmp_gt_u32 vcc, 28, v14"); e("s_and_saveexec_b64 s[22:23], vcc")
e(f"ds_write_b128 v27, v[56:59] offset:{AB}"); e(f"ds_write_b128 v27, v[60:63] offset:{AB+16}")
e(f"ds_write_b128 v27, v[48:51] offset:{AB+576}"); e(f"ds_write_b128 v27, v[52:55] offset:{AB+592}")
e("s_mov_b64 exec, s[22:23]")
e("s_waitcnt lgkmcnt(0)")
e("s_barrier")
e("s_cmp_gt_u32 s7, 4"); e("s_cbranch_scc1 L_p3done")
e("v_cmp_gt_u32 vcc, 288, v13"); e("s_and_saveexec_b64 s[20:21], vcc")
e("v_lshrrev_b32 v4, 1, v13")
e("v_lshrrev_b32 v5, 3, v4"); e("v_lshlrev_b32 v5, 5, v5")
e("v_and_b32 v6, 1, v4"); e("v_lshl_add_u32 v5, v6, 4, v5")
e("v_bfe_u32 v6, v4, 1, 1"); e("v_lshl_add_u32 v5, v6, 3, v5")
e("v_bfe_u32 v6, v4, 2, 1"); e("v_mul_u32_u24 v6, 576, v6"); e("v_add_u32 v5, v5, v6")
e("v_and_b32 v6, 1, v13"); e(f"v_mul_u32_u24 v6, {14*1152}, v6"); e("v_add_u32 v8, v5, v6")
for w in range(14): e(f"ds_read_b64 v[{32+2*w}:{33+2*w}], v8 offset:{AB+1152*w}")
for st, cnt in ((7, 0),):
    pass
e("s_waitcnt lgkmcnt(7)")
for w in range(1, 7):
    for k in range(2): e(f"v_add_f32 v{32+k}, v{32+k}, v{32+2*w+k}")
e("s_waitcnt lgkmcnt(0)")
for w in range(8, 14):
    for k in range(2): e(f"v_add_f32 v{46+k}, v{46+k}, v{32+2*w+k}")
for k in range(2): e(f"v_add_f32 v{32+k}, v{32+k}, v{46+k}")
nop(1)
for k in range(2): dpp("v_add_f32", 32+k, "quad_perm:[1,0,3,2]")
gran(64, 32, 33)
e("s_lshl_b32 s9, s2, 12"); e(f"s_add_u32 s9, s9, {OB3}"); e("v_lshlrev_b32 v3, 4, v4")
e("v_and_b32 v6, 1, v13"); e("v_cmp_eq_u32 vcc, 0, v6"); e("s_and_b64 exec, exec, vcc")
e("buffer_store_dwordx4 v[64:67], v3, s[88:91], s9 offen sc1")
e("s_mov_b64 exec, s[20:21]")
lab("L_p3done")
stamp()
e(f"s_cmp_ge_u32 s2, {NRED}"); e("s_cbranch_scc1 L_fdone")
spin_lds(FC2, 4, 5)
e("s_mul_i32 s10, s2, 3641"); e("s_lshr_b32 s10, s10, 16"); e("s_mul_i32 s11, s10, 18"); e("s_sub_u32 s11, s2, s11")
e("v_lshrrev_b32 v4, 3, v13"); e("v_lshrrev_b32 v6, 2, v4"); e("v_lshlrev_b32 v6, 3, v6")
e(f"ds_read_b64 v[72:73], v6 offset:{NT_T}")
e("v_lshlrev_b32 v4, 14, v4"); e("v_and_b32 v5, 7, v13"); e("v_lshl_add_u32 v4, v5, 4, v4")
e("s_lshl_b32 s9, s10, 12"); e("s_lshl_b32 s11, s11, 7"); e("s_add_u32 s9, s9, s11"); e(f"s_add_u32 s9, s9, {OB3}")
e("s_waitcnt lgkmcnt(0)")
poll(["buffer_load_dwordx4 v[48:51], v4, s[88:91], s9 offen sc1"], [48], 40, tags=[("v72", "v73")])
e("v_mov_b32 v32, v49"); e("v_mov_b32 v33, v50")
allreduce("v_add_f32", [32, 33], [64, 65], rors=(8,))
e("s_lshl_b32 s9, s7, 6"); e("v_lshl_add_u32 v5, v1, 3, s9")
e("v_cmp_gt_u32 vcc, 8, v1"); e("s_and_saveexec_b64 s[20:21], vcc")
e(f"ds_write_b64 v5, v[32:33] offset:{R3_T}")
e("s_mov_b64 exec, s[20:21]")
e("s_waitcnt lgkmcnt(0)")
e("s_barrier")
e("s_cmp_lg_u32 s7, 0"); e("s_cbranch_scc1 L_fdone")
e("v_and_b32 v5, 1, v1"); e("v_lshlrev_b32 v5, 3, v5")
for w in range(8):
    for q in range(4): e(f"ds_read_b64 v[{48+8*w+2*q}:{49+8*w+2*q}], v5 offset:{R3_T+64*w+16*q}")
for w in range(1, 8):
    e(f"s_waitcnt lgkmcnt({min(15, 28-4*w)})")
    for k in range(8): e(f"v_add_f32 v{48+k}, v{48+k}, v{48+8*w+k}")
for k in range(4): e(f"v_mov_b32 v{64+k}, v{52+k}")
def rne4(r):
    e(f"v_cvt_pk_bf16_f32 v80, v{r}, v{r+1}"); e(f"v_cvt_pk_bf16_f32 v81, v{r+2}, v{r+3}")
    e(f"v_lshlrev_b32 v{r}, 16, v80"); e(f"v_and_b32 v{r+1}, s25, v80"); e(f"v_lshlrev_b32 v{r+2}, 16, v81"); e(f"v_and_b32 v{r+3}, s25, v81")
rne4(48); rne4(64)
X, B2 = WR+24, WR+26
e(f"v_lshlrev_b32 v52, 16, v{X}"); e(f"v_and_b32 v53, s25, v{X}"); e(f"v_lshlrev_b32 v54, 16, v{X+1}"); e(f"v_and_b32 v55, s25, v{X+1}")
e(f"v_lshlrev_b32 v56, 16, v{B2}"); e(f"v_and_b32 v57, s25, v{B2}"); e(f"v_lshlrev_b32 v58, 16, v{B2+1}"); e(f"v_and_b32 v59, s25, v{B2+1}")
for k in range(4): e(f"v_add_f32 v{48+k}, v{52+k}, v{48+k}"); e(f"v_add_f32 v{64+k}, v{64+k}, v{56+k}")
rne4(48); rne4(64)
for k in range(4): e(f"v_add_f32 v{48+k}, v{48+k}, v{64+k}")
e("v_cvt_pk_bf16_f32 v80, v48, v49"); e("v_cvt_pk_bf16_f32 v81, v50, v51")
e("v_cmp_gt_u32 vcc, 2, v1"); e("s_and_saveexec_b64 s[20:21], vcc")
e(f"global_store_dwordx2 v{WR+28}, v[80:81], s[56:57]")
e("s_mov_b64 exec, s[20:21]")
lab("L_fdone")
stamp()
stamp_store()
lab("L_end")
e("s_endpgm")
L += ['.section .rodata,"a"', ".p2align 6", f".amdhsa_kernel {NAME}_kernel", "  .amdhsa_next_free_vgpr 168", "  .amdhsa_next_free_sgpr 102",
      "  .amdhsa_accum_offset 168", "  .amdhsa_group_segment_fixed_size 0", "  .amdhsa_kernarg_size 104", "  .amdhsa_user_sgpr_count 2",
      "  .amdhsa_user_sgpr_kernarg_segment_ptr 1", "  .amdhsa_system_sgpr_workgroup_id_x 1", ".end_amdhsa_kernel"]
open(out, "w").write("\n".join(L) + "\n")
```

```python
import sys
NAME = "parallel_sum__sliding_block_cached__mixer_channel_mlp__decode"
out = sys.argv[1]
opts = set(sys.argv[2:])
PROF = "prof" in opts
NT = " nt"
SPINMAX = 400000
def optint(p, d):
    for o in opts:
        if o.startswith(p) and o[len(p):].isdigit(): return int(o[len(p):])
    return d
THR = optint("thr", 0)
PTH = optint("pth", 0)
X2SLEEP = optint("x2s", 2)
WFO = "wfo" in opts
WLATE = "wlate" in opts or WFO
HLATE = "fv" if "hfv" in opts else ("fo" if "hfo" in opts else ("fq" if "hfq" in opts else ""))

L = []
def e(s): L.append("    " + s)
def lab(s): L.append(s + ":")
def nop(n): e(f"s_nop {n}")

OB1, OB2, OB3 = 0, 2 << 20, 4 << 20
INV = 0x40000000
NRED = 72
XN_T = 0
Y_T = 1216
Q_T = 2432
FLG = 3072
CNT, FQ, FC2, FO, NONCE, FV = FLG, FLG+4, FLG+8, FLG+12, FLG+16, FLG+24
ML_T = 3136
NT_T = 3264
PW = 3456
R3_T = 4480
H_T = 4992
OF_T = 5184
HR = 46080
OW = 5632
AB = 13824
LDS_BYTES = 48128
def TB(j, t): return 80 + 4*j + t

nstamp = [0]
def stamp():
    if not PROF: return
    k = nstamp[0]; nstamp[0] += 1
    assert k < 8
    e("s_memrealtime s[92:93]"); e("s_waitcnt lgkmcnt(0)"); e(f"v_mov_b32 v{160+k}, s92")
def stamp_store():
    if not PROF: return
    e("s_lshl_b32 s6, s2, 4"); e("s_add_u32 s6, s6, s3"); e("s_lshl_b32 s6, s6, 6"); e(f"s_add_u32 s6, s6, {16<<20}")
    e("v_mov_b32 v2, s6")
    e("v_cmp_eq_u32 vcc, 0, v1"); e("s_and_saveexec_b64 s[20:21], vcc")
    for q in range(2):
        e(f"buffer_store_dwordx4 v[{160+4*q}:{163+4*q}], v2, s[88:91], 0 offen offset:{16*q}")
    e("s_mov_b64 exec, s[20:21]")

def dpp(op, d, ctrl):
    e(f"{op}_dpp v{d}, v{d}, v{d} {ctrl} row_mask:0xf bank_mask:0xf")

def allreduce(op, regs, tmps, rors=(8, 4, 2, 1), rows=True):
    for r in rors:
        nop(1)
        for v in regs: dpp(op, v, f"row_ror:{r}")
    if rows:
        for sw in ("v_permlane16_swap_b32", "v_permlane32_swap_b32"):
            for v, t in zip(regs, tmps): e(f"v_mov_b32 v{t}, v{v}")
            nop(1)
            for v, t in zip(regs, tmps): e(f"{sw} v{v}, v{t}")
            nop(0)
            for v, t in zip(regs, tmps): e(f"{op} v{v}, v{v}, v{t}")

lbl_id = [0]
def newlab(p):
    lbl_id[0] += 1
    return f"L_{p}_{lbl_id[0]}"

def spin_lds(addr, va, vd, sleep=1):
    l, d = newlab("spin"), newlab("spind")
    e(f"v_mov_b32 v{va}, {addr}"); e("s_mov_b32 s12, 0")
    lab(l)
    e(f"ds_read_b32 v{vd}, v{va}")
    e("s_add_u32 s12, s12, 1")
    e("s_waitcnt lgkmcnt(0)")
    e(f"v_cmp_ne_u32 vcc, 0, v{vd}")
    e(f"s_cmp_gt_u32 s12, {SPINMAX*4}"); e(f"s_cbranch_scc1 {d}")
    e(f"s_cbranch_vccnz {d}")
    e(f"s_sleep {sleep}")
    e(f"s_branch {l}")
    lab(d)

def get_nonce(va, vd):
    l, d = newlab("gn"), newlab("gnd")
    e(f"v_mov_b32 v{va}, {NONCE}"); e("s_mov_b32 s12, 0")
    lab(l)
    e(f"ds_read_b64 v[{vd}:{vd+1}], v{va}")
    e("s_add_u32 s12, s12, 1")
    e("s_waitcnt lgkmcnt(0)")
    e(f"v_cmp_ne_u32 vcc, 0, v{vd}")
    e(f"s_cmp_gt_u32 s12, {SPINMAX*4}"); e(f"s_cbranch_scc1 {d}")
    e(f"s_cbranch_vccnz {d}")
    e("s_sleep 1")
    e(f"s_branch {l}")
    lab(d)
    e(f"v_readfirstlane_b32 s16, v{vd}"); e(f"v_readfirstlane_b32 s17, v{vd+1}")
    nop(1)

def set_flag(addr, va, vd):
    e(f"v_mov_b32 v{va}, {addr}"); e(f"v_mov_b32 v{vd}, 1"); e(f"ds_write_b32 v{va}, v{vd}"); e("s_waitcnt lgkmcnt(0)")

def gran(dst, a, b):
    e(f"v_mov_b32 v{dst}, s16"); e(f"v_mov_b32 v{dst+1}, v{a}"); e(f"v_mov_b32 v{dst+2}, v{b}"); e(f"v_mov_b32 v{dst+3}, s17")

def poll(loads, grans, t0, tags=None, sleep=0):
    l, d = newlab("poll"), newlab("polld")
    e("s_mov_b32 s12, 0")
    lab(l)
    for x in loads: e(x)
    e("s_add_u32 s12, s12, 1")
    e("s_waitcnt vmcnt(0)")
    for n, g in enumerate(grans):
        tl, th = ("s16", "s17") if tags is None else tags[n]
        e(f"v_xor_b32 v{t0+1}, {tl}, v{g}"); e(f"v_xor_b32 v{t0+2}, {th}, v{g+3}")
        if n == 0: e(f"v_or_b32 v{t0}, v{t0+1}, v{t0+2}")
        else: e(f"v_or3_b32 v{t0}, v{t0}, v{t0+1}, v{t0+2}")
    e(f"v_cmp_ne_u32 vcc, 0, v{t0}")
    e(f"s_cmp_gt_u32 s12, {SPINMAX}"); e(f"s_cbranch_scc1 {d}")
    e(f"s_cbranch_vccz {d}")
    if sleep: e(f"s_sleep {sleep}")
    e(f"s_branch {l}")
    lab(d)

nload = [0]
def thr():
    i = nload[0]; nload[0] += 1
    if i >= 16 and WLATE: return
    if PTH:
        if i >= PTH: e(f"s_waitcnt vmcnt({PTH-1})")
        return
    if not THR or i < THR: return
    l = newlab("thr")
    e("s_cmp_lg_u32 s14, 0"); e(f"s_cbranch_scc1 {l}")
    e("ds_read_b32 v9, v8")
    e("s_waitcnt lgkmcnt(0)")
    nop(0)
    e("v_readfirstlane_b32 s14, v9")
    e("s_cmp_lg_u32 s14, 0"); e(f"s_cbranch_scc1 {l}")
    e(f"s_waitcnt vmcnt({THR-1})")
    lab(l)

def srd(d, p, n):
    e(f"s_mov_b32 s{d}, s{p}"); e(f"s_and_b32 s{d+1}, s{p+1}, 0xffff"); e(f"s_mov_b32 s{d+2}, {n}"); e(f"s_mov_b32 s{d+3}, 0x20000")

def unpack9(p, p8):
    for k in range(4):
        e(f"v_lshlrev_b32 v{10+2*k}, 16, v{p+k}"); e(f"v_and_b32 v{11+2*k}, s25, v{p+k}")
    e(f"v_lshlrev_b32 v18, 16, v{p8}")
LNBASE = [104]
def layernorm(outp, out8):
    D = 20
    e(f"v_add_f32 v{LNBASE[0]+0}, v10, v11"); e(f"v_add_f32 v{LNBASE[0]+1}, v12, v13"); e(f"v_add_f32 v{LNBASE[0]+2}, v14, v15"); e(f"v_add_f32 v{LNBASE[0]+3}, v16, v17")
    e(f"v_add_f32 v{LNBASE[0]+0}, v{LNBASE[0]+0}, v{LNBASE[0]+1}"); e(f"v_add_f32 v{LNBASE[0]+2}, v{LNBASE[0]+2}, v{LNBASE[0]+3}"); e(f"v_add_f32 v{LNBASE[0]+0}, v{LNBASE[0]+0}, v18"); e(f"v_add_f32 v{LNBASE[0]+0}, v{LNBASE[0]+0}, v{LNBASE[0]+2}")
    allreduce(f"v_add_f32", [LNBASE[0]], [LNBASE[0]+1])
    e(f"v_mul_f32 v{LNBASE[0]+0}, 0x3ae38e39, v{LNBASE[0]+0}")
    for k in range(9): e(f"v_sub_f32 v{D+k}, v{10+k}, v{LNBASE[0]+0}")
    e(f"v_mul_f32 v{LNBASE[0]+2}, v{D}, v{D}"); e(f"v_mul_f32 v{LNBASE[0]+3}, v{D+1}, v{D+1}"); e(f"v_mul_f32 v{LNBASE[0]+4}, v{D+2}, v{D+2}")
    for k in range(3, 9): e(f"v_fmac_f32 v{LNBASE[0]+2+k%3}, v{D+k}, v{D+k}")
    e(f"v_add_f32 v{LNBASE[0]+2}, v{LNBASE[0]+2}, v{LNBASE[0]+3}"); e(f"v_add_f32 v{LNBASE[0]+2}, v{LNBASE[0]+2}, v{LNBASE[0]+4}")
    allreduce(f"v_add_f32", [LNBASE[0]+2], [LNBASE[0]+1])
    e(f"v_mul_f32 v{LNBASE[0]+2}, 0x3ae38e39, v{LNBASE[0]+2}")
    e(f"v_cvt_pk_bf16_f32 v{LNBASE[0]+1}, v{LNBASE[0]+0}, v{LNBASE[0]+2}")
    e(f"v_lshlrev_b32 v{LNBASE[0]+0}, 16, v{LNBASE[0]+1}"); e(f"v_and_b32 v{LNBASE[0]+2}, s25, v{LNBASE[0]+1}")
    e(f"v_add_f32 v{LNBASE[0]+2}, 0x3727c5ac, v{LNBASE[0]+2}")
    e(f"v_cvt_pk_bf16_f32 v{LNBASE[0]+2}, v{LNBASE[0]+2}, v{LNBASE[0]+2}"); e(f"v_and_b32 v{LNBASE[0]+2}, s25, v{LNBASE[0]+2}")
    e(f"v_sqrt_f32 v{LNBASE[0]+2}, v{LNBASE[0]+2}"); nop(0)
    e(f"v_cvt_pk_bf16_f32 v{LNBASE[0]+2}, v{LNBASE[0]+2}, v{LNBASE[0]+2}"); e(f"v_and_b32 v{LNBASE[0]+2}, s25, v{LNBASE[0]+2}")
    e(f"v_rcp_f32 v{LNBASE[0]+3}, v{LNBASE[0]+2}")
    for k in range(9): e(f"v_sub_f32 v{D+k}, v{10+k}, v{LNBASE[0]+0}")
    for k in range(4): e(f"v_cvt_pk_bf16_f32 v{LNBASE[0]+4+k}, v{D+2*k}, v{D+1+2*k}")
    e(f"v_cvt_pk_bf16_f32 v{LNBASE[0]+8}, v{D+8}, v{D+8}")
    for k in range(4):
        e(f"v_lshlrev_b32 v{D+2*k}, 16, v{LNBASE[0]+4+k}"); e(f"v_and_b32 v{D+1+2*k}, s25, v{LNBASE[0]+4+k}")
    e(f"v_lshlrev_b32 v{D+8}, 16, v{LNBASE[0]+8}")
    for k in range(9): e(f"v_mul_f32 v{10+k}, v{D+k}, v{LNBASE[0]+3}")
    for k in range(9): e(f"v_fma_f32 v{D+k}, -v{10+k}, v{LNBASE[0]+2}, v{D+k}")
    for k in range(9): e(f"v_fmac_f32 v{10+k}, v{D+k}, v{LNBASE[0]+3}")
    for k in range(4): e(f"v_cvt_pk_bf16_f32 v{outp+k}, v{10+2*k}, v{11+2*k}")
    e(f"v_cvt_pk_bf16_f32 v{out8}, v18, v18")

def tile_products(tbl, step, n):
    for c0 in range(0, n, 12):
        m = min(12, n - c0)
        for i in range(m): e(f"ds_read_u16 v{10+i}, v2 offset:{tbl+step*(c0+i)}")
        for i in range(m):
            e(f"s_waitcnt lgkmcnt({m-1-i})")
            e(f"v_lshlrev_b32 v{28+(i&1)}, 16, v{10+i}")
            e(f"s_waitcnt vmcnt({n-1-c0-i})")
            for k in range(4):
                for z in range(2):
                    d = ACC + 2*k + z
                    c = "0" if c0 + i == 0 else f"v{d}"
                    e(f"v_dot2_f32_bf16 v{d}, v{32+4*(c0+i)+k}, v{10+i if z == 0 else 28+(i&1)}, {c}")
        nop(2)
ACC = 104

L.append(f"; @launch grid=(256,1,1) block=(768,1,1) lds={LDS_BYTES}")
L.append('.amdgcn_target "amdgcn-amd-amdhsa--gfx950"')
L.append(".text"); L.append(f".globl {NAME}_kernel"); L.append(".p2align 8")
L.append(f".type {NAME}_kernel,@function"); lab(f"{NAME}_kernel")
e("s_cmp_ge_u32 s2, 256"); e("s_cbranch_scc1 L_end")
e("s_load_dwordx16 s[36:51], s[0:1], 0"); e("s_load_dwordx8 s[52:59], s[0:1], 64"); e("s_load_dwordx2 s[60:61], s[0:1], 96")
e("v_and_b32 v1, 63, v0"); e("v_lshrrev_b32 v2, 6, v0"); nop(1); e("v_readfirstlane_b32 s3, v2")
e("s_lshr_b32 s4, s2, 4"); e("s_and_b32 s5, s2, 15")
e("s_mov_b32 s24, 0x3fb8aa3b"); e("s_mov_b32 s25, 0xffff0000")
e("s_waitcnt lgkmcnt(0)")
srd(88, 60, 1 << 30)
stamp()
ns0 = nstamp[0]
e("s_cmp_ge_u32 s3, 4"); e("s_cbranch_scc1 L_kv")
e("s_cmp_eq_u32 s3, 2"); e("s_cbranch_scc1 L_sync")
e("s_cmp_lg_u32 s3, 0"); e("s_cbranch_scc1 L_h")

srd(72, 42, 576*4096*2)
e("v_lshlrev_b32 v3, 4, v1"); e("global_load_dwordx4 v[4:7], v3, s[36:37]")
e("v_lshlrev_b32 v9, 1, v1"); e("global_load_ushort v8, v9, s[36:37] offset:1024")
e("v_lshrrev_b32 v19, 3, v1"); e("v_and_b32 v2, 7, v1")
e("v_lshlrev_b32 v116, 13, v19"); e("v_lshl_add_u32 v116, v2, 4, v116")
e("s_and_b32 s8, s2, 3"); e("s_mul_i32 s8, s8, 144")
e("s_lshl_b32 s9, s8, 13"); e("s_lshr_b32 s10, s2, 2"); e("s_lshl_b32 s10, s10, 7"); e("s_add_u32 s9, s9, s10")
for i in range(18):
    e(f"buffer_load_dwordx4 v[{32+4*i}:{35+4*i}], v116, s[72:75], s9 offen{NT}")
    if i < 17: e("s_add_u32 s9, s9, 65536")
e("s_barrier")
e("s_waitcnt vmcnt(18)")
stamp()
unpack9(4, 8)
layernorm(4, 8)
e(f"ds_write_b128 v3, v[4:7] offset:{XN_T}"); e(f"ds_write_b16 v9, v8 offset:{XN_T+1024}")
e("s_lshl_b32 s9, s8, 1"); e("v_lshl_add_u32 v2, v19, 1, s9")
e("s_waitcnt lgkmcnt(0)")
get_nonce(30, 114)
tile_products(XN_T, 16, 18)
stamp()
nop(2)
for k in range(4): e(f"v_permlane32_swap_b32 v{104+k}, v{108+k}")
nop(0)
for k in range(4): e(f"v_add_f32 v{104+k}, v{104+k}, v{108+k}")
nop(1)
for k in range(2): e(f"v_permlane16_swap_b32 v{104+k}, v{106+k}")
nop(0)
for k in range(2): e(f"v_add_f32 v{104+k}, v{104+k}, v{106+k}")
nop(1)
for k in range(2): dpp("v_add_f32", 104+k, "row_ror:8")
gran(12, 104, 105)
e("v_and_b32 v2, 7, v1"); e("v_lshlrev_b32 v2, 6, v2"); e("v_lshrrev_b32 v10, 5, v1"); e("v_lshl_add_u32 v2, v10, 5, v2")
e("v_bfe_u32 v10, v1, 4, 1"); e("v_lshl_add_u32 v2, v10, 4, v2")
e("s_lshl_b32 s9, s2, 13")
e("v_and_b32 v10, 8, v1"); e("v_cmp_eq_u32 vcc, 0, v10"); e("s_and_saveexec_b64 s[20:21], vcc")
e("buffer_store_dwordx4 v[12:15], v2, s[88:91], s9 offen sc1")
e("s_mov_b64 exec, s[20:21]")
stamp()
e("s_lshl_b32 s9, s4, 17"); e("v_and_b32 v3, 31, v1"); e("v_lshlrev_b32 v3, 4, v3"); e("v_lshrrev_b32 v10, 5, v1"); e("v_lshl_add_u32 v3, v10, 15, v3")
loads = []
for i2 in range(2):
    for rb in range(4):
        n = 4*i2 + rb
        loads.append(f"s_add_u32 s10, s9, {8192*(8*i2+rb)}")
        loads.append(f"buffer_load_dwordx4 v[{32+4*n}:{35+4*n}], v3, s[88:91], s10 offen sc1")
poll(loads, [32+4*x for x in range(8)], 20)
stamp()
for i2 in range(2):
    b0 = 32 + 16*i2
    for k in (1, 2): e(f"v_add_f32 v{b0+k}, v{b0+k}, v{b0+4+k}"); e(f"v_add_f32 v{b0+8+k}, v{b0+8+k}, v{b0+12+k}")
for i2 in range(2):
    b0 = 32 + 16*i2
    for k in (1, 2): e(f"v_add_f32 v{b0+k}, v{b0+k}, v{b0+8+k}")
e("v_cvt_pk_bf16_f32 v32, v33, v34"); e("v_cvt_pk_bf16_f32 v33, v49, v50")
e("v_lshlrev_b32 v4, 2, v1")
e(f"ds_write_b32 v4, v32 offset:{Q_T}"); e(f"ds_write_b32 v4, v33 offset:{Q_T+256}")
e("s_waitcnt lgkmcnt(0)")
set_flag(FQ, 10, 11)
stamp()
e("v_lshrrev_b32 v4, 4, v1"); e("v_lshlrev_b32 v4, 14, v4")
e("v_and_b32 v5, 15, v1"); e("v_lshl_add_u32 v5, v5, 4, v4")
e("s_lshl_b32 s9, s4, 16"); e(f"s_add_u32 s9, s9, {OB2}")
e("s_lshr_b32 s11, s5, 2"); e("s_lshl_b32 s10, s11, 8"); e("s_add_u32 s10, s10, s9")
e("s_lshr_b32 s11, s5, 3"); e("s_lshl_b32 s11, s11, 4"); e("s_add_u32 s11, s11, s9")
spin_lds(FO, 10, 11, sleep=2)
loads = []
for i in range(4):
    loads.append(f"s_add_u32 s13, s10, {4096*i}"); loads.append(f"s_add_u32 s15, s11, {4096*i}")
    loads.append(f"buffer_load_dwordx4 v[{32+12*i}:{35+12*i}], v5, s[88:91], s13 offen sc1")
    loads.append(f"buffer_load_dwordx4 v[{36+12*i}:{39+12*i}], v5, s[88:91], s13 offen offset:1024 sc1")
    loads.append(f"buffer_load_dwordx4 v[{40+12*i}:{43+12*i}], v4, s[88:91], s15 offen offset:2048 sc1")
poll(loads, [32+4*x for x in range(12)], 20, sleep=X2SLEEP)
stamp()
e("v_max3_f32 v84, v41, v53, v65"); e("v_max_f32 v84, v84, v77")
allreduce("v_max_f32", [84], [85], rors=())
for i in range(4): e(f"v_sub_f32 v{41+12*i}, v{41+12*i}, v84")
for i in range(4): e(f"v_mul_f32 v{41+12*i}, s24, v{41+12*i}")
for i in range(4): e(f"v_exp_f32 v{41+12*i}, v{41+12*i}")
nop(0)
for n, k in enumerate((33, 34, 37, 38, 42)): e(f"v_mul_f32 v{86+n}, v41, v{k}")
for i in range(1, 4):
    for n, k in enumerate((33, 34, 37, 38, 42)): e(f"v_fmac_f32 v{86+n}, v{41+12*i}, v{k+12*i}")
allreduce("v_add_f32", [86, 87, 88, 89, 90], [91, 92, 93, 94, 95], rors=())
e("v_rcp_f32 v90, v90"); nop(0)
for k in range(4): e(f"v_mul_f32 v{86+k}, v90, v{86+k}")
e("v_cvt_pk_bf16_f32 v86, v86, v87"); e("v_cvt_pk_bf16_f32 v87, v88, v89")
e("v_cmp_gt_u32 vcc, 16, v1"); nop(1); e("v_cndmask_b32 v86, 0, v86, vcc"); e("v_cndmask_b32 v87, 0, v87, vcc")
e("v_lshlrev_b32 v4, 3, v1")
e("v_cmp_gt_u32 vcc, 24, v1"); e("s_and_saveexec_b64 s[20:21], vcc")
e(f"ds_write_b64 v4, v[86:87] offset:{OF_T}")
e("s_mov_b64 exec, s[20:21]")
e("s_waitcnt lgkmcnt(0)")
e("s_barrier")
stamp()
stamp_store()
e("s_endpgm")

lab("L_h")
nstamp[0] = ns0
e("s_cmp_eq_u32 s3, 1"); e("s_cbranch_scc1 L_h1")
e("s_barrier")
e("s_endpgm")
lab("L_h1")
srd(80, 48, 576*4608*2)
e("v_lshlrev_b32 v3, 4, v1"); e("global_load_dwordx4 v[4:7], v3, s[36:37]")
e("v_lshlrev_b32 v9, 1, v1"); e("global_load_ushort v8, v9, s[36:37] offset:1024")
e("v_mul_u32_u24 v140, 3641, v1"); e("v_lshrrev_b32 v140, 16, v140")
e("v_mul_u32_u24 v141, 18, v140"); e("v_sub_u32 v141, v1, v141")
e("s_movk_i32 s12, 9216"); e("v_mul_lo_u32 v142, v140, s12"); e("v_lshl_add_u32 v142, v141, 4, v142")
e(f"v_mov_b32 v2, {INV}"); e("v_cmp_gt_u32 vcc, 54, v1"); nop(1); e("v_cndmask_b32 v142, v2, v142, vcc")
e("s_and_b32 s8, s5, 7"); e("s_mul_i32 s8, s8, 72")
e("s_mul_i32 s9, s8, 9216"); e("s_mul_i32 s10, s4, 576"); e("s_add_u32 s9, s9, s10"); e("s_lshr_b32 s10, s5, 3"); e("s_mul_i32 s10, s10, 288"); e("s_add_u32 s9, s9, s10")
def hloads():
    for i in range(24):
        e(f"buffer_load_dwordx4 v[{32+4*i}:{35+4*i}], v142, s[80:83], s18 offen{NT}")
        if i < 23: e(f"s_add_u32 s18, s18, {3*9216}")
e("s_mov_b32 s18, s9")
if not HLATE: hloads()
e("s_barrier")
e(f"s_waitcnt vmcnt({0 if HLATE else 24})")
stamp()
LNBASE[0] = 144
unpack9(4, 8); layernorm(4, 8); unpack9(4, 8); layernorm(4, 8)
LNBASE[0] = 104
e(f"ds_write_b128 v3, v[4:7] offset:{Y_T}"); e(f"ds_write_b16 v9, v8 offset:{Y_T+1024}")
e("s_lshl_b32 s9, s8, 1"); e("v_min_u32 v2, 2, v140"); e("v_lshl_add_u32 v2, v2, 1, s9")
e("s_waitcnt lgkmcnt(0)")
get_nonce(30, 144)
if HLATE:
    spin_lds({"fv": FV, "fo": FO, "fq": FQ}[HLATE], 30, 31, sleep=4)
    hloads()
ACC = 128
tile_products(Y_T, 6, 24)
stamp()
e("v_lshlrev_b32 v2, 5, v1")
e(f"ds_write_b128 v2, v[{ACC}:{ACC+3}] offset:{HR}"); e(f"ds_write_b128 v2, v[{ACC+4}:{ACC+7}] offset:{HR+16}")
ACC = 104
e("v_lshlrev_b32 v2, 3, v1")
e("s_waitcnt lgkmcnt(0)")
for n in range(2):
    for sub in range(3): e(f"ds_read_b64 v[{32+8*n+2*sub}:{33+8*n+2*sub}], v2 offset:{HR+512*n+576*sub}")
e("s_waitcnt lgkmcnt(0)")
for n in range(2):
    for k in range(2): e(f"v_add_f32 v{32+8*n+k}, v{32+8*n+k}, v{34+8*n+k}"); e(f"v_add_f32 v{32+8*n+k}, v{32+8*n+k}, v{36+8*n+k}")
gran(12, 32, 33); gran(16, 40, 41)
e("v_lshlrev_b32 v2, 4, v1")
e("s_lshl_b32 s9, s2, 13")
e("buffer_store_dwordx4 v[12:15], v2, s[88:91], s9 offen offset:1024 sc1")
e("v_cmp_gt_u32 vcc, 8, v1"); e("s_and_saveexec_b64 s[20:21], vcc")
e("buffer_store_dwordx4 v[16:19], v2, s[88:91], s9 offen offset:2048 sc1")
e("s_mov_b64 exec, s[20:21]")
e("v_min_u32 v7, 35, v1")
e("s_lshr_b32 s8, s5, 2")
e("s_mul_i32 s9, s4, 576"); e("s_mul_i32 s10, s8, 144"); e("s_add_u32 s9, s9, s10"); e("v_lshl_add_u32 v6, v7, 2, s9")
e("global_load_dword v30, v6, s[50:51]")
stamp()
e("v_lshlrev_b32 v7, 4, v7")
e("s_lshl_b32 s9, s4, 17"); e("s_lshr_b32 s10, s5, 3"); e("s_lshl_b32 s10, s10, 16"); e("s_add_u32 s9, s9, s10")
e("s_and_b32 s10, s8, 1"); e("s_mul_i32 s10, s10, 576"); e("s_add_u32 s9, s9, s10")
spin_lds(FQ, 10, 11, sleep=4)
loads = []
for i in range(8):
    loads.append(f"s_add_u32 s10, s9, {8192*i + 1024}")
    loads.append(f"buffer_load_dwordx4 v[{32+4*i}:{35+4*i}], v7, s[88:91], s10 offen sc1")
poll(loads, [32+4*i for i in range(8)], 20, sleep=2)
stamp()
for st in (4, 2, 1):
    for p in range(st):
        for k in (1, 2): e(f"v_add_f32 v{32+4*p+k}, v{32+4*p+k}, v{32+4*(p+st)+k}")
e("v_cvt_pk_bf16_f32 v35, v33, v34"); e("v_lshlrev_b32 v33, 16, v35"); e("v_and_b32 v34, s25, v35")
e("v_lshlrev_b32 v36, 16, v30"); e("v_and_b32 v37, s25, v30")
e("v_add_f32 v33, v33, v36"); e("v_add_f32 v34, v34, v37")
e("v_cvt_pk_bf16_f32 v35, v33, v34"); e("v_lshlrev_b32 v33, 16, v35"); e("v_and_b32 v34, s25, v35")
for r in (33, 34):
    t = r + 7
    u = r + 9
    e(f"v_mul_f32 v{t}, v{r}, v{r}"); e(f"v_mul_f32 v{t}, v{t}, v{r}"); e(f"v_mov_b32 v{u}, v{r}"); e(f"v_fmac_f32 v{u}, 0x3d372713, v{t}")
    e(f"v_mul_f32 v{u}, 0x40135761, v{u}"); e(f"v_exp_f32 v{u}, v{u}"); nop(0); e(f"v_add_f32 v{u}, 1.0, v{u}"); e(f"v_rcp_f32 v{u}, v{u}"); nop(0)
    e(f"v_fma_f32 v{u}, -2.0, v{u}, 1.0")
    e(f"v_add_f32 v{u}, 1.0, v{u}"); e(f"v_mul_f32 v{t}, 0.5, v{r}"); e(f"v_mul_f32 v{u}, v{t}, v{u}")
e("v_cvt_pk_bf16_f32 v35, v42, v43")
e("v_cmp_gt_u32 vcc, 36, v1"); nop(1); e("v_cndmask_b32 v35, 0, v35, vcc")
e("v_lshlrev_b32 v4, 2, v1")
e("v_cmp_gt_u32 vcc, 48, v1"); e("s_and_saveexec_b64 s[20:21], vcc")
e(f"ds_write_b32 v4, v35 offset:{H_T}")
e("s_mov_b64 exec, s[20:21]")
e("s_waitcnt lgkmcnt(0)")
stamp()
stamp_store()
e("s_endpgm")

lab("L_sync")
nstamp[0] = ns0
e("s_memrealtime s[16:17]")
e("s_and_b32 s9, s4, 3"); e("s_lshl_b32 s9, s9, 6"); e("s_lshr_b32 s10, s4, 2"); e("s_lshl_b32 s10, s10, 3"); e("s_add_u32 s9, s9, s10")
e("v_mov_b32 v2, s9"); e("v_mov_b32 v6, 0"); e("v_mov_b32 v7, 0")
for k in range(4): e(f"v_mov_b32 v{8+k}, 0")
e(f"v_mov_b32 v12, {FLG}")
e("s_waitcnt lgkmcnt(0)")
e("s_or_b32 s16, s16, 1")
e("v_mov_b32 v4, s16"); e("v_mov_b32 v5, s17")
e("v_cmp_eq_u32 vcc, 0, v1"); e("s_and_saveexec_b64 s[20:21], vcc")
e("global_atomic_cmpswap_x2 v[14:15], v2, v[4:7], s[58:59] sc0")
e("s_mov_b64 exec, s[20:21]")
e("ds_write_b128 v12, v[8:11]"); e("ds_write_b128 v12, v[8:11] offset:16")
e("s_waitcnt lgkmcnt(0)")
e("s_barrier")
e("s_waitcnt vmcnt(0)")
nop(0)
e("v_readfirstlane_b32 s10, v14"); e("v_readfirstlane_b32 s11, v15")
e("s_cmp_eq_u32 s10, 0"); e("s_cselect_b32 s16, s16, s10"); e("s_cselect_b32 s17, s17, s11")
e("v_mov_b32 v4, s16"); e("v_mov_b32 v5, s17"); e(f"v_mov_b32 v12, {NONCE}")
e("ds_write_b64 v12, v[4:5]")
e("s_waitcnt lgkmcnt(0)")
stamp()
e(f"s_cmp_ge_u32 s2, {NRED}"); e("s_cbranch_scc1 L_w2end")
spin_lds(FQ, 12, 13, sleep=8)
e("v_and_b32 v2, 15, v1"); e("v_and_b32 v3, 3, v2"); e("v_lshlrev_b32 v3, 6, v3"); e("v_lshrrev_b32 v4, 2, v2"); e("v_lshl_add_u32 v3, v4, 3, v3")
l_, d_ = newlab("np"), newlab("npd")
e("s_mov_b32 s12, 0")
lab(l_)
e("global_load_dwordx2 v[4:5], v3, s[58:59] sc1")
e("s_add_u32 s12, s12, 1")
e("s_waitcnt vmcnt(0)")
e("v_cmp_eq_u32 vcc, 0, v4")
e(f"s_cmp_gt_u32 s12, {SPINMAX}"); e(f"s_cbranch_scc1 {d_}")
e(f"s_cbranch_vccz {d_}")
e("s_sleep 8"); e(f"s_branch {l_}")
lab(d_)
e("v_lshlrev_b32 v2, 3, v2")
e(f"ds_write_b64 v2, v[4:5] offset:{NT_T}")
e("s_waitcnt lgkmcnt(0)")
set_flag(FC2, 10, 11)
lab("L_w2end")
stamp()
stamp_store()
e("s_endpgm")

lab("L_kv")
nstamp[0] = ns0
srd(64, 38, 268435456); srd(68, 40, 268435456); srd(76, 44, 4096*576*2); srd(84, 52, 4608*576*2)
e("s_sub_u32 s7, s3, 4")
e("s_lshl_b32 s9, s4, 24"); e("s_lshl_b32 s10, s5, 16"); e("s_add_u32 s9, s9, s10"); e(f"s_add_u32 s9, s9, {61440*256}")
e("s_lshl_b32 s10, s7, 13"); e("s_add_u32 s9, s9, s10"); e("s_add_u32 s10, s9, 4096")
e("v_and_b32 v10, 15, v1"); e("v_lshrrev_b32 v11, 4, v1")
e("v_lshlrev_b32 v3, 8, v10"); e("v_lshl_add_u32 v3, v11, 4, v3")
e("v_lshlrev_b32 v12, 11, v11"); e("v_lshl_add_u32 v12, v10, 4, v12")
KR, VR = 16, 48
e("s_barrier")
e("s_mov_b32 s14, 0"); e(f"v_mov_b32 v8, {FQ}")
for i in range(8):
    thr()
    e(f"buffer_load_dwordx4 v[{KR+4*i}:{KR+3+4*i}], v12, s[64:67], s9 offen offset:{i*256}{NT}")
for i in range(8):
    thr()
    e(f"buffer_load_dwordx4 v[{VR+4*i}:{VR+3+4*i}], v12, s[68:71], s9 offen offset:{i*256}{NT}")
WR = 128
def wloads():
    e("v_subrev_u32 v13, 256, v0")
    e("v_mul_u32_u24 v14, 3641, v13"); e("v_lshrrev_b32 v14, 16, v14")
    e("v_mul_u32_u24 v15, 18, v14"); e("v_sub_u32 v15, v13, v15")
    e("v_mul_u32_u24 v4, 1152, v14"); e("v_lshl_add_u32 v4, v15, 4, v4")
    e(f"v_mov_b32 v7, {INV}"); e("v_cmp_gt_u32 vcc, 28, v14"); nop(1); e("v_cndmask_b32 v4, v7, v4, vcc")
    e("v_cmp_gt_u32 vcc, 16, v14"); nop(1); e("v_cndmask_b32 v5, v7, v4, vcc")
    e("v_cmp_gt_u32 vcc, 8, v14"); nop(1); e("v_cndmask_b32 v6, v7, v4, vcc")
    e("s_lshr_b32 s13, s2, 2"); e("s_and_b32 s15, s2, 3"); e("s_mul_i32 s15, s15, 288")
    e(f"s_mul_i32 s9, s13, {72*1152}"); e("s_add_u32 s9, s9, s15"); e(f"s_add_u32 s10, s9, {28*1152}"); e(f"s_add_u32 s11, s9, {56*1152}")
    thr(); e(f"buffer_load_dwordx4 v[{WR}:{WR+3}], v4, s[84:87], s9 offen{NT}")
    thr(); e(f"buffer_load_dwordx4 v[{WR+4}:{WR+7}], v4, s[84:87], s10 offen{NT}")
    thr(); e(f"buffer_load_dwordx4 v[{WR+8}:{WR+11}], v5, s[84:87], s11 offen{NT}")
    e(f"s_mul_i32 s9, s13, {64*1152}"); e("s_add_u32 s9, s9, s15"); e(f"s_add_u32 s10, s9, {28*1152}"); e(f"s_add_u32 s11, s9, {56*1152}")
    thr(); e(f"buffer_load_dwordx4 v[{WR+12}:{WR+15}], v4, s[76:79], s9 offen{NT}")
    thr(); e(f"buffer_load_dwordx4 v[{WR+16}:{WR+19}], v4, s[76:79], s10 offen{NT}")
    thr(); e(f"buffer_load_dwordx4 v[{WR+20}:{WR+23}], v6, s[76:79], s11 offen{NT}")
    e(f"s_min_u32 s13, s2, {NRED-1}"); e("s_lshl_b32 s13, s13, 4"); e("v_and_b32 v6, 1, v1"); e("v_lshlrev_b32 v6, 3, v6"); e(f"v_add_u32 v{WR+28}, s13, v6")
    e(f"global_load_dwordx2 v[{WR+24}:{WR+25}], v{WR+28}, s[36:37]"); e(f"global_load_dwordx2 v[{WR+26}:{WR+27}], v{WR+28}, s[54:55]")

if not WLATE: wloads()
e("v_cmp_eq_u32 s[28:29], 1, v11"); e("v_cmp_eq_u32 s[30:31], 2, v11"); e("v_cmp_eq_u32 s[32:33], 3, v11")
e("s_mov_b32 s27, 0x3db504f3"); e("s_mov_b32 s34, 0x05040100"); e("s_mov_b32 s35, 0x07060302")
spin_lds(FQ, 4, 5, sleep=2)
get_nonce(4, 6)
stamp()
e("v_lshlrev_b32 v4, 4, v10")
e(f"ds_read_b128 v[96:99], v4 offset:{Q_T}"); e(f"ds_read_b128 v[100:103], v4 offset:{Q_T+256}")
e("v_and_b32 v4, 1, v1"); e("v_cmp_eq_u32 s[18:19], 1, v4")
e("s_waitcnt lgkmcnt(0)")
SR = 80
for i in range(8):
    e(f"s_waitcnt vmcnt({(8 if WLATE else 16)+7-i})")
    if i == 0: stamp()
    for k in range(4):
        for h in range(2):
            d = SR + 2*i + h
            c = "0" if k == 0 else f"v{d}"
            e(f"v_dot2_f32_bf16 v{d}, v{KR+4*i+k}, v{96+4*h+k}, {c}")
nop(2)
allreduce("v_add_f32", [SR + x for x in range(16)], [], rows=False)
for i in range(8): e(f"v_cvt_pk_bf16_f32 v{16+i}, v{SR+2*i}, v{SR+2*i+1}")
for i in range(8):
    e(f"v_lshlrev_b32 v{SR+2*i}, 16, v{16+i}"); e(f"v_and_b32 v{SR+2*i+1}, s25, v{16+i}")
for x in range(16): e(f"v_mul_f32 v{SR+x}, s27, v{SR+x}")
for i in range(8): e(f"v_cvt_pk_bf16_f32 v{16+i}, v{SR+2*i}, v{SR+2*i+1}")
for i in range(8):
    e(f"v_lshlrev_b32 v{SR+2*i}, 16, v{16+i}"); e(f"v_and_b32 v{SR+2*i+1}, s25, v{16+i}")
for h in range(2): e(f"v_max3_f32 v{24+h}, v{SR+h}, v{SR+2+h}, v{SR+4+h}")
for h in range(2): e(f"v_max3_f32 v{26+h}, v{SR+6+h}, v{SR+8+h}, v{SR+10+h}")
for h in range(2): e(f"v_max3_f32 v{24+h}, v{24+h}, v{SR+12+h}, v{SR+14+h}")
for h in range(2): e(f"v_max_f32 v{24+h}, v{24+h}, v{26+h}")
allreduce("v_max_f32", [24, 25], [26, 27], rors=())
for x in range(16): e(f"v_sub_f32 v{SR+x}, v{SR+x}, v{24+(x&1)}")
for x in range(16): e(f"v_mul_f32 v{SR+x}, s24, v{SR+x}")
for x in range(16): e(f"v_exp_f32 v{SR+x}, v{SR+x}")
nop(0)
for h in range(2): e(f"v_add_f32 v{28+h}, v{SR+h}, v{SR+2+h}"); e(f"v_add_f32 v{30+h}, v{SR+4+h}, v{SR+6+h}")
for h in range(2): e(f"v_add_f32 v{32+h}, v{SR+8+h}, v{SR+10+h}"); e(f"v_add_f32 v{34+h}, v{SR+12+h}, v{SR+14+h}")
for h in range(2): e(f"v_add_f32 v{28+h}, v{28+h}, v{30+h}"); e(f"v_add_f32 v{32+h}, v{32+h}, v{34+h}")
for h in range(2): e(f"v_add_f32 v{28+h}, v{28+h}, v{32+h}")
for t in range(4):
    e(f"v_cvt_pk_bf16_f32 v{16+t}, v{SR+4*t}, v{SR+4*t+2}"); e(f"v_cvt_pk_bf16_f32 v{36+t}, v{SR+4*t+1}, v{SR+4*t+3}")
for t in range(4): e(f"v_cndmask_b32 v{20+t}, v{16+t}, v{36+t}, s[18:19]")
allreduce("v_add_f32", [28, 29], [26, 27], rors=())
for t in range(4):
    e(f"s_waitcnt vmcnt({(6 if WLATE else 14)-2*t})")
    if t == 3 and HLATE == "fv":
        e(f"v_mov_b32 v4, {FV}"); e("v_mov_b32 v7, 1"); e("ds_write_b32 v4, v7")
    if WLATE and not WFO and t == 3: wloads()
    for d2 in range(4):
        lo, hi = VR+4*(2*t)+d2, VR+4*(2*t+1)+d2
        e(f"v_perm_b32 v{TB(2*d2, t)}, v{hi}, v{lo}, s34")
        e(f"v_perm_b32 v{TB(2*d2+1, t)}, v{hi}, v{lo}, s35")
nop(1)
for j in range(8):
    e(f"v_mfma_f32_16x16x32_bf16 v[{VR+4*j}:{VR+3+4*j}], v[20:23], v[{TB(j,0)}:{TB(j,3)}], 0")
stamp()
nop(7); nop(1)
for k in range(4): e(f"v_cndmask_b32 v{32+k}, v{VR+4*k}, v{VR+4*(k+4)}, s[28:29]")
for k in range(4): e(f"v_cndmask_b32 v{32+k}, v{32+k}, v{VR+4*k+1}, s[30:31]")
for k in range(4): e(f"v_cndmask_b32 v{32+k}, v{32+k}, v{VR+4*(k+4)+1}, s[32:33]")
e("v_lshrrev_b32 v5, 1, v11"); e("v_lshlrev_b32 v5, 9, v5"); e("v_lshl_add_u32 v5, v10, 5, v5")
e("v_and_b32 v6, 1, v11"); e("v_lshl_add_u32 v5, v6, 4, v5")
e("s_lshl_b32 s11, s7, 10"); e("v_add_u32 v5, s11, v5")
e(f"ds_write_b128 v5, v[32:35] offset:{OW}")
e("v_mov_b32 v36, v24"); e("v_mov_b32 v37, v28"); e("v_mov_b32 v38, v25"); e("v_mov_b32 v39, v29")
e("s_lshl_b32 s11, s7, 4"); e("v_mov_b32 v6, s11")
e(f"ds_write_b128 v6, v[36:39] offset:{ML_T}")
e("v_mov_b32 v7, 1"); e(f"v_mov_b32 v6, {CNT}")
e("s_waitcnt lgkmcnt(0)")
e("v_cmp_eq_u32 vcc, 0, v1"); e("s_and_saveexec_b64 s[20:21], vcc")
e("ds_add_rtn_u32 v7, v6, v7")
e("s_waitcnt lgkmcnt(0)")
e("s_mov_b64 exec, s[20:21]")
nop(0)
e("v_readfirstlane_b32 s11, v7")
e("s_cmp_lg_u32 s11, 7"); e("s_cbranch_scc1 L_kv_done")
e("v_mov_b32 v6, 0")
for w in range(8): e(f"ds_read_b128 v[{16+4*w}:{19+4*w}], v6 offset:{ML_T+16*w}")
e("v_lshlrev_b32 v5, 4, v1")
for w in range(8): e(f"ds_read_b128 v[{48+4*w}:{51+4*w}], v5 offset:{OW+1024*w}")
e("v_cmp_gt_u32 vcc, 32, v1")
e("s_waitcnt lgkmcnt(8)")
nop(0)
for w in range(8):
    e(f"v_cndmask_b32 v{80+w}, v{18+4*w}, v{16+4*w}, vcc")
    e(f"v_cndmask_b32 v{88+w}, v{19+4*w}, v{17+4*w}, vcc")
e("v_max3_f32 v8, v80, v81, v82"); e("v_max3_f32 v9, v83, v84, v85"); e("v_max3_f32 v8, v8, v86, v87"); e("v_max_f32 v8, v8, v9")
for w in range(8): e(f"v_sub_f32 v{80+w}, v{80+w}, v8")
for w in range(8): e(f"v_mul_f32 v{80+w}, s24, v{80+w}")
for w in range(8): e(f"v_exp_f32 v{80+w}, v{80+w}")
nop(0)
e("v_mul_f32 v9, v80, v88")
for w in range(1, 8): e(f"v_fmac_f32 v9, v{80+w}, v{88+w}")
e("s_waitcnt lgkmcnt(0)")
for k in range(4): e(f"v_mul_f32 v{96+k}, v80, v{48+k}")
for w in range(1, 8):
    for k in range(4): e(f"v_fmac_f32 v{96+k}, v{80+w}, v{48+4*w+k}")
gran(100, 96, 97); gran(104, 98, 99); gran(108, 8, 9)
e("s_lshl_b32 s11, s2, 12"); e(f"s_add_u32 s11, s11, {OB2}")
e("buffer_store_dwordx4 v[100:103], v5, s[88:91], s11 offen sc1")
e("buffer_store_dwordx4 v[104:107], v5, s[88:91], s11 offen offset:1024 sc1")
e("v_lshrrev_b32 v6, 5, v1"); e("v_lshlrev_b32 v6, 4, v6")
e("v_and_b32 v7, 31, v1"); e("v_cmp_eq_u32 vcc, 0, v7"); e("s_and_saveexec_b64 s[20:21], vcc")
e("buffer_store_dwordx4 v[108:111], v6, s[88:91], s11 offen offset:2048 sc1")
e("s_mov_b64 exec, s[20:21]")
set_flag(FO, 6, 7)
lab("L_kv_done")
stamp()
if WFO:
    spin_lds(FO, 4, 5, sleep=1)
    wloads()
e("s_barrier")
stamp()
e("v_lshlrev_b32 v26, 1, v14")
for i in range(3):
    e(f"ds_read_u16 v{16+i}, v26 offset:{H_T+56*i}"); e(f"ds_read_u16 v{19+i}, v26 offset:{OF_T+56*i}")
e("s_waitcnt lgkmcnt(0)")
for i in range(6): e(f"v_lshlrev_b32 v{32+i}, 16, v{16+i}")
e("s_waitcnt vmcnt(0)")
for part in range(2):
    for i in range(3):
        for k in range(4):
            for z in range(2):
                d = 48 + 8*part + 2*k + z
                c = "0" if i == 0 else f"v{d}"
                e(f"v_dot2_f32_bf16 v{d}, v{WR+12*part+4*i+k}, v{(16 if z == 0 else 32)+3*part+i}, {c}")
nop(2)
e("v_mul_u32_u24 v27, 1152, v14"); e("v_lshl_add_u32 v27, v15, 5, v27")
e("v_cmp_gt_u32 vcc, 28, v14"); e("s_and_saveexec_b64 s[22:23], vcc")
e(f"ds_write_b128 v27, v[56:59] offset:{AB}"); e(f"ds_write_b128 v27, v[60:63] offset:{AB+16}")
e(f"ds_write_b128 v27, v[48:51] offset:{AB+576}"); e(f"ds_write_b128 v27, v[52:55] offset:{AB+592}")
e("s_mov_b64 exec, s[22:23]")
e("s_waitcnt lgkmcnt(0)")
e("s_barrier")
e("s_cmp_gt_u32 s7, 4"); e("s_cbranch_scc1 L_p3done")
e("v_cmp_gt_u32 vcc, 288, v13"); e("s_and_saveexec_b64 s[20:21], vcc")
e("v_lshrrev_b32 v4, 1, v13")
e("v_lshrrev_b32 v5, 3, v4"); e("v_lshlrev_b32 v5, 5, v5")
e("v_and_b32 v6, 1, v4"); e("v_lshl_add_u32 v5, v6, 4, v5")
e("v_bfe_u32 v6, v4, 1, 1"); e("v_lshl_add_u32 v5, v6, 3, v5")
e("v_bfe_u32 v6, v4, 2, 1"); e("v_mul_u32_u24 v6, 576, v6"); e("v_add_u32 v5, v5, v6")
e("v_and_b32 v6, 1, v13"); e(f"v_mul_u32_u24 v6, {14*1152}, v6"); e("v_add_u32 v8, v5, v6")
for w in range(14): e(f"ds_read_b64 v[{32+2*w}:{33+2*w}], v8 offset:{AB+1152*w}")
for st, cnt in ((7, 0),):
    pass
e("s_waitcnt lgkmcnt(7)")
for w in range(1, 7):
    for k in range(2): e(f"v_add_f32 v{32+k}, v{32+k}, v{32+2*w+k}")
e("s_waitcnt lgkmcnt(0)")
for w in range(8, 14):
    for k in range(2): e(f"v_add_f32 v{46+k}, v{46+k}, v{32+2*w+k}")
for k in range(2): e(f"v_add_f32 v{32+k}, v{32+k}, v{46+k}")
nop(1)
for k in range(2): dpp("v_add_f32", 32+k, "quad_perm:[1,0,3,2]")
gran(64, 32, 33)
e("s_lshl_b32 s9, s2, 12"); e(f"s_add_u32 s9, s9, {OB3}"); e("v_lshlrev_b32 v3, 4, v4")
e("v_and_b32 v6, 1, v13"); e("v_cmp_eq_u32 vcc, 0, v6"); e("s_and_b64 exec, exec, vcc")
e("buffer_store_dwordx4 v[64:67], v3, s[88:91], s9 offen sc1")
e("s_mov_b64 exec, s[20:21]")
lab("L_p3done")
stamp()
e(f"s_cmp_ge_u32 s2, {NRED}"); e("s_cbranch_scc1 L_fdone")
spin_lds(FC2, 4, 5)
e("s_mul_i32 s10, s2, 3641"); e("s_lshr_b32 s10, s10, 16"); e("s_mul_i32 s11, s10, 18"); e("s_sub_u32 s11, s2, s11")
e("v_lshrrev_b32 v4, 3, v13"); e("v_lshrrev_b32 v6, 2, v4"); e("v_lshlrev_b32 v6, 3, v6")
e(f"ds_read_b64 v[72:73], v6 offset:{NT_T}")
e("v_lshlrev_b32 v4, 14, v4"); e("v_and_b32 v5, 7, v13"); e("v_lshl_add_u32 v4, v5, 4, v4")
e("s_lshl_b32 s9, s10, 12"); e("s_lshl_b32 s11, s11, 7"); e("s_add_u32 s9, s9, s11"); e(f"s_add_u32 s9, s9, {OB3}")
e("s_waitcnt lgkmcnt(0)")
poll(["buffer_load_dwordx4 v[48:51], v4, s[88:91], s9 offen sc1"], [48], 40, tags=[("v72", "v73")])
e("v_mov_b32 v32, v49"); e("v_mov_b32 v33, v50")
allreduce("v_add_f32", [32, 33], [64, 65], rors=(8,))
e("s_lshl_b32 s9, s7, 6"); e("v_lshl_add_u32 v5, v1, 3, s9")
e("v_cmp_gt_u32 vcc, 8, v1"); e("s_and_saveexec_b64 s[20:21], vcc")
e(f"ds_write_b64 v5, v[32:33] offset:{R3_T}")
e("s_mov_b64 exec, s[20:21]")
e("s_waitcnt lgkmcnt(0)")
e("s_barrier")
e("s_cmp_lg_u32 s7, 0"); e("s_cbranch_scc1 L_fdone")
e("v_and_b32 v5, 1, v1"); e("v_lshlrev_b32 v5, 3, v5")
for w in range(8):
    for q in range(4): e(f"ds_read_b64 v[{48+8*w+2*q}:{49+8*w+2*q}], v5 offset:{R3_T+64*w+16*q}")
for w in range(1, 8):
    e(f"s_waitcnt lgkmcnt({min(15, 28-4*w)})")
    for k in range(8): e(f"v_add_f32 v{48+k}, v{48+k}, v{48+8*w+k}")
for k in range(4): e(f"v_mov_b32 v{64+k}, v{52+k}")
def rne4(r):
    e(f"v_cvt_pk_bf16_f32 v80, v{r}, v{r+1}"); e(f"v_cvt_pk_bf16_f32 v81, v{r+2}, v{r+3}")
    e(f"v_lshlrev_b32 v{r}, 16, v80"); e(f"v_and_b32 v{r+1}, s25, v80"); e(f"v_lshlrev_b32 v{r+2}, 16, v81"); e(f"v_and_b32 v{r+3}, s25, v81")
rne4(48); rne4(64)
X, B2 = WR+24, WR+26
e(f"v_lshlrev_b32 v52, 16, v{X}"); e(f"v_and_b32 v53, s25, v{X}"); e(f"v_lshlrev_b32 v54, 16, v{X+1}"); e(f"v_and_b32 v55, s25, v{X+1}")
e(f"v_lshlrev_b32 v56, 16, v{B2}"); e(f"v_and_b32 v57, s25, v{B2}"); e(f"v_lshlrev_b32 v58, 16, v{B2+1}"); e(f"v_and_b32 v59, s25, v{B2+1}")
for k in range(4): e(f"v_add_f32 v{48+k}, v{52+k}, v{48+k}"); e(f"v_add_f32 v{64+k}, v{64+k}, v{56+k}")
rne4(48); rne4(64)
for k in range(4): e(f"v_add_f32 v{48+k}, v{48+k}, v{64+k}")
e("v_cvt_pk_bf16_f32 v80, v48, v49"); e("v_cvt_pk_bf16_f32 v81, v50, v51")
e("v_cmp_gt_u32 vcc, 2, v1"); e("s_and_saveexec_b64 s[20:21], vcc")
e(f"global_store_dwordx2 v{WR+28}, v[80:81], s[56:57]")
e("s_mov_b64 exec, s[20:21]")
lab("L_fdone")
stamp()
stamp_store()
lab("L_end")
e("s_endpgm")
L += ['.section .rodata,"a"', ".p2align 6", f".amdhsa_kernel {NAME}_kernel", "  .amdhsa_next_free_vgpr 168", "  .amdhsa_next_free_sgpr 102",
      "  .amdhsa_accum_offset 168", "  .amdhsa_group_segment_fixed_size 0", "  .amdhsa_kernarg_size 104", "  .amdhsa_user_sgpr_count 2",
      "  .amdhsa_user_sgpr_kernarg_segment_ptr 1", "  .amdhsa_system_sgpr_workgroup_id_x 1", ".end_amdhsa_kernel"]
open(out, "w").write("\n".join(L) + "\n")
```

```python
import sys
NAME = "parallel_sum__sliding_block_cached__mixer_channel_mlp__decode"
out = sys.argv[1]
opts = set(sys.argv[2:])
PROF = "prof" in opts
NT = " nt"
SPINMAX = 400000
def optint(p, d):
    for o in opts:
        if o.startswith(p) and o[len(p):].isdigit(): return int(o[len(p):])
    return d
THR = optint("thr", 0)
PTH = optint("pth", 0)
X2SLEEP = optint("x2s", 2)
WFO = "wfo" in opts
WLATE = "wlate" in opts or WFO
HLATE = "fv" if "hfv" in opts else ("fo" if "hfo" in opts else ("fq" if "hfq" in opts else ""))

L = []
def e(s): L.append("    " + s)
def lab(s): L.append(s + ":")
def nop(n): e(f"s_nop {n}")

OB1, OB2, OB3 = 0, 2 << 20, 4 << 20
INV = 0x40000000
NRED = 72
XN_T = 0
Y_T = 1216
Q_T = 2432
FLG = 3072
CNT, FQ, FC2, FO, NONCE, FV, FH = FLG, FLG+4, FLG+8, FLG+12, FLG+16, FLG+24, FLG+28
ML_T = 3136
NT_T = 3264
PW = 3456
R3_T = 4480
H_T = 4992
OF_T = 5184
HR = 47616
OW = 5632
AB = 13824
LDS_BYTES = 49664
def TB(j, t): return 80 + 4*j + t

nstamp = [0]
SB = [160]
def stamp():
    if not PROF: return
    k = nstamp[0]; nstamp[0] += 1
    assert k < 8
    e("s_memrealtime s[92:93]"); e("s_waitcnt lgkmcnt(0)"); e(f"v_mov_b32 v{SB[0]+k}, s92")
def stamp_store():
    if not PROF: return
    e("s_lshl_b32 s6, s2, 4"); e("s_add_u32 s6, s6, s3"); e("s_lshl_b32 s6, s6, 6"); e(f"s_add_u32 s6, s6, {16<<20}")
    e("v_mov_b32 v2, s6")
    e("v_cmp_eq_u32 vcc, 0, v1"); e("s_and_saveexec_b64 s[20:21], vcc")
    for q in range(2):
        e(f"buffer_store_dwordx4 v[{SB[0]+4*q}:{SB[0]+3+4*q}], v2, s[88:91], 0 offen offset:{16*q}")
    e("s_mov_b64 exec, s[20:21]")

def dpp(op, d, ctrl):
    e(f"{op}_dpp v{d}, v{d}, v{d} {ctrl} row_mask:0xf bank_mask:0xf")

def allreduce(op, regs, tmps, rors=(8, 4, 2, 1), rows=True):
    for r in rors:
        nop(1)
        for v in regs: dpp(op, v, f"row_ror:{r}")
    if rows:
        for sw in ("v_permlane16_swap_b32", "v_permlane32_swap_b32"):
            for v, t in zip(regs, tmps): e(f"v_mov_b32 v{t}, v{v}")
            nop(1)
            for v, t in zip(regs, tmps): e(f"{sw} v{v}, v{t}")
            nop(0)
            for v, t in zip(regs, tmps): e(f"{op} v{v}, v{v}, v{t}")

lbl_id = [0]
def newlab(p):
    lbl_id[0] += 1
    return f"L_{p}_{lbl_id[0]}"

def spin_lds(addr, va, vd, sleep=1):
    l, d = newlab("spin"), newlab("spind")
    e(f"v_mov_b32 v{va}, {addr}"); e("s_mov_b32 s12, 0")
    lab(l)
    e(f"ds_read_b32 v{vd}, v{va}")
    e("s_add_u32 s12, s12, 1")
    e("s_waitcnt lgkmcnt(0)")
    e(f"v_cmp_ne_u32 vcc, 0, v{vd}")
    e(f"s_cmp_gt_u32 s12, {SPINMAX*4}"); e(f"s_cbranch_scc1 {d}")
    e(f"s_cbranch_vccnz {d}")
    e(f"s_sleep {sleep}")
    e(f"s_branch {l}")
    lab(d)

def get_nonce(va, vd):
    l, d = newlab("gn"), newlab("gnd")
    e(f"v_mov_b32 v{va}, {NONCE}"); e("s_mov_b32 s12, 0")
    lab(l)
    e(f"ds_read_b64 v[{vd}:{vd+1}], v{va}")
    e("s_add_u32 s12, s12, 1")
    e("s_waitcnt lgkmcnt(0)")
    e(f"v_cmp_ne_u32 vcc, 0, v{vd}")
    e(f"s_cmp_gt_u32 s12, {SPINMAX*4}"); e(f"s_cbranch_scc1 {d}")
    e(f"s_cbranch_vccnz {d}")
    e("s_sleep 1")
    e(f"s_branch {l}")
    lab(d)
    e(f"v_readfirstlane_b32 s16, v{vd}"); e(f"v_readfirstlane_b32 s17, v{vd+1}")
    nop(1)

def set_flag(addr, va, vd):
    e(f"v_mov_b32 v{va}, {addr}"); e(f"v_mov_b32 v{vd}, 1"); e(f"ds_write_b32 v{va}, v{vd}"); e("s_waitcnt lgkmcnt(0)")

def gran(dst, a, b):
    e(f"v_mov_b32 v{dst}, s16"); e(f"v_mov_b32 v{dst+1}, v{a}"); e(f"v_mov_b32 v{dst+2}, v{b}"); e(f"v_mov_b32 v{dst+3}, s17")

def poll(loads, grans, t0, tags=None, sleep=0):
    l, d = newlab("poll"), newlab("polld")
    e("s_mov_b32 s12, 0")
    lab(l)
    for x in loads: e(x)
    e("s_add_u32 s12, s12, 1")
    e("s_waitcnt vmcnt(0)")
    for n, g in enumerate(grans):
        tl, th = ("s16", "s17") if tags is None else tags[n]
        e(f"v_xor_b32 v{t0+1}, {tl}, v{g}"); e(f"v_xor_b32 v{t0+2}, {th}, v{g+3}")
        if n == 0: e(f"v_or_b32 v{t0}, v{t0+1}, v{t0+2}")
        else: e(f"v_or3_b32 v{t0}, v{t0}, v{t0+1}, v{t0+2}")
    e(f"v_cmp_ne_u32 vcc, 0, v{t0}")
    e(f"s_cmp_gt_u32 s12, {SPINMAX}"); e(f"s_cbranch_scc1 {d}")
    e(f"s_cbranch_vccz {d}")
    if sleep: e(f"s_sleep {sleep}")
    e(f"s_branch {l}")
    lab(d)

nload = [0]
def thr():
    i = nload[0]; nload[0] += 1
    if i >= 16 and WLATE: return
    if PTH:
        if i >= PTH: e(f"s_waitcnt vmcnt({PTH-1})")
        return
    if not THR or i < THR: return
    l = newlab("thr")
    e("s_cmp_lg_u32 s14, 0"); e(f"s_cbranch_scc1 {l}")
    e("ds_read_b32 v9, v8")
    e("s_waitcnt lgkmcnt(0)")
    nop(0)
    e("v_readfirstlane_b32 s14, v9")
    e("s_cmp_lg_u32 s14, 0"); e(f"s_cbranch_scc1 {l}")
    e(f"s_waitcnt vmcnt({THR-1})")
    lab(l)

def srd(d, p, n):
    e(f"s_mov_b32 s{d}, s{p}"); e(f"s_and_b32 s{d+1}, s{p+1}, 0xffff"); e(f"s_mov_b32 s{d+2}, {n}"); e(f"s_mov_b32 s{d+3}, 0x20000")

def unpack9(p, p8):
    for k in range(4):
        e(f"v_lshlrev_b32 v{10+2*k}, 16, v{p+k}"); e(f"v_and_b32 v{11+2*k}, s25, v{p+k}")
    e(f"v_lshlrev_b32 v18, 16, v{p8}")
LNBASE = [104]
def layernorm(outp, out8):
    D = 20
    e(f"v_add_f32 v{LNBASE[0]+0}, v10, v11"); e(f"v_add_f32 v{LNBASE[0]+1}, v12, v13"); e(f"v_add_f32 v{LNBASE[0]+2}, v14, v15"); e(f"v_add_f32 v{LNBASE[0]+3}, v16, v17")
    e(f"v_add_f32 v{LNBASE[0]+0}, v{LNBASE[0]+0}, v{LNBASE[0]+1}"); e(f"v_add_f32 v{LNBASE[0]+2}, v{LNBASE[0]+2}, v{LNBASE[0]+3}"); e(f"v_add_f32 v{LNBASE[0]+0}, v{LNBASE[0]+0}, v18"); e(f"v_add_f32 v{LNBASE[0]+0}, v{LNBASE[0]+0}, v{LNBASE[0]+2}")
    allreduce(f"v_add_f32", [LNBASE[0]], [LNBASE[0]+1])
    e(f"v_mul_f32 v{LNBASE[0]+0}, 0x3ae38e39, v{LNBASE[0]+0}")
    for k in range(9): e(f"v_sub_f32 v{D+k}, v{10+k}, v{LNBASE[0]+0}")
    e(f"v_mul_f32 v{LNBASE[0]+2}, v{D}, v{D}"); e(f"v_mul_f32 v{LNBASE[0]+3}, v{D+1}, v{D+1}"); e(f"v_mul_f32 v{LNBASE[0]+4}, v{D+2}, v{D+2}")
    for k in range(3, 9): e(f"v_fmac_f32 v{LNBASE[0]+2+k%3}, v{D+k}, v{D+k}")
    e(f"v_add_f32 v{LNBASE[0]+2}, v{LNBASE[0]+2}, v{LNBASE[0]+3}"); e(f"v_add_f32 v{LNBASE[0]+2}, v{LNBASE[0]+2}, v{LNBASE[0]+4}")
    allreduce(f"v_add_f32", [LNBASE[0]+2], [LNBASE[0]+1])
    e(f"v_mul_f32 v{LNBASE[0]+2}, 0x3ae38e39, v{LNBASE[0]+2}")
    e(f"v_cvt_pk_bf16_f32 v{LNBASE[0]+1}, v{LNBASE[0]+0}, v{LNBASE[0]+2}")
    e(f"v_lshlrev_b32 v{LNBASE[0]+0}, 16, v{LNBASE[0]+1}"); e(f"v_and_b32 v{LNBASE[0]+2}, s25, v{LNBASE[0]+1}")
    e(f"v_add_f32 v{LNBASE[0]+2}, 0x3727c5ac, v{LNBASE[0]+2}")
    e(f"v_cvt_pk_bf16_f32 v{LNBASE[0]+2}, v{LNBASE[0]+2}, v{LNBASE[0]+2}"); e(f"v_and_b32 v{LNBASE[0]+2}, s25, v{LNBASE[0]+2}")
    e(f"v_sqrt_f32 v{LNBASE[0]+2}, v{LNBASE[0]+2}"); nop(0)
    e(f"v_cvt_pk_bf16_f32 v{LNBASE[0]+2}, v{LNBASE[0]+2}, v{LNBASE[0]+2}"); e(f"v_and_b32 v{LNBASE[0]+2}, s25, v{LNBASE[0]+2}")
    e(f"v_rcp_f32 v{LNBASE[0]+3}, v{LNBASE[0]+2}")
    for k in range(9): e(f"v_sub_f32 v{D+k}, v{10+k}, v{LNBASE[0]+0}")
    for k in range(4): e(f"v_cvt_pk_bf16_f32 v{LNBASE[0]+4+k}, v{D+2*k}, v{D+1+2*k}")
    e(f"v_cvt_pk_bf16_f32 v{LNBASE[0]+8}, v{D+8}, v{D+8}")
    for k in range(4):
        e(f"v_lshlrev_b32 v{D+2*k}, 16, v{LNBASE[0]+4+k}"); e(f"v_and_b32 v{D+1+2*k}, s25, v{LNBASE[0]+4+k}")
    e(f"v_lshlrev_b32 v{D+8}, 16, v{LNBASE[0]+8}")
    for k in range(9): e(f"v_mul_f32 v{10+k}, v{D+k}, v{LNBASE[0]+3}")
    for k in range(9): e(f"v_fma_f32 v{D+k}, -v{10+k}, v{LNBASE[0]+2}, v{D+k}")
    for k in range(9): e(f"v_fmac_f32 v{10+k}, v{D+k}, v{LNBASE[0]+3}")
    for k in range(4): e(f"v_cvt_pk_bf16_f32 v{outp+k}, v{10+2*k}, v{11+2*k}")
    e(f"v_cvt_pk_bf16_f32 v{out8}, v18, v18")

def tile_products(tbl, step, n):
    for c0 in range(0, n, 12):
        m = min(12, n - c0)
        for i in range(m): e(f"ds_read_u16 v{10+i}, v2 offset:{tbl+step*(c0+i)}")
        for i in range(m):
            e(f"s_waitcnt lgkmcnt({m-1-i})")
            e(f"v_lshlrev_b32 v{28+(i&1)}, 16, v{10+i}")
            e(f"s_waitcnt vmcnt({n-1-c0-i})")
            for k in range(4):
                for z in range(2):
                    d = ACC + 2*k + z
                    c = "0" if c0 + i == 0 else f"v{d}"
                    e(f"v_dot2_f32_bf16 v{d}, v{32+4*(c0+i)+k}, v{10+i if z == 0 else 28+(i&1)}, {c}")
        nop(2)
ACC = 104

L.append(f"; @launch grid=(256,1,1) block=(768,1,1) lds={LDS_BYTES}")
L.append('.amdgcn_target "amdgcn-amd-amdhsa--gfx950"')
L.append(".text"); L.append(f".globl {NAME}_kernel"); L.append(".p2align 8")
L.append(f".type {NAME}_kernel,@function"); lab(f"{NAME}_kernel")
e("s_cmp_ge_u32 s2, 256"); e("s_cbranch_scc1 L_end")
e("s_load_dwordx16 s[36:51], s[0:1], 0"); e("s_load_dwordx8 s[52:59], s[0:1], 64"); e("s_load_dwordx2 s[60:61], s[0:1], 96")
e("v_and_b32 v1, 63, v0"); e("v_lshrrev_b32 v2, 6, v0"); nop(1); e("v_readfirstlane_b32 s3, v2")
e("s_lshr_b32 s4, s2, 4"); e("s_and_b32 s5, s2, 15")
e("s_mov_b32 s24, 0x3fb8aa3b"); e("s_mov_b32 s25, 0xffff0000")
e("s_waitcnt lgkmcnt(0)")
srd(88, 60, 1 << 30)
stamp()
if PROF: e("v_mov_b32 v112, v160")
ns0 = nstamp[0]
e("s_cmp_ge_u32 s3, 4"); e("s_cbranch_scc1 L_kv")
e("s_cmp_eq_u32 s3, 2"); e("s_cbranch_scc1 L_sync")
e("s_cmp_lg_u32 s3, 0"); e("s_cbranch_scc1 L_h")

srd(72, 42, 576*4096*2)
e("v_lshlrev_b32 v3, 4, v1"); e("global_load_dwordx4 v[4:7], v3, s[36:37]")
e("v_lshlrev_b32 v9, 1, v1"); e("global_load_ushort v8, v9, s[36:37] offset:1024")
e("v_lshrrev_b32 v19, 3, v1"); e("v_and_b32 v2, 7, v1")
e("v_lshlrev_b32 v116, 13, v19"); e("v_lshl_add_u32 v116, v2, 4, v116")
e("s_and_b32 s8, s2, 3"); e("s_mul_i32 s8, s8, 144")
e("s_lshl_b32 s9, s8, 13"); e("s_lshr_b32 s10, s2, 2"); e("s_lshl_b32 s10, s10, 7"); e("s_add_u32 s9, s9, s10")
for i in range(18):
    e(f"buffer_load_dwordx4 v[{32+4*i}:{35+4*i}], v116, s[72:75], s9 offen{NT}")
    if i < 17: e("s_add_u32 s9, s9, 65536")
e("s_barrier")
e("s_waitcnt vmcnt(18)")
stamp()
unpack9(4, 8)
layernorm(4, 8)
e(f"ds_write_b128 v3, v[4:7] offset:{XN_T}"); e(f"ds_write_b16 v9, v8 offset:{XN_T+1024}")
e("s_lshl_b32 s9, s8, 1"); e("v_lshl_add_u32 v2, v19, 1, s9")
e("s_waitcnt lgkmcnt(0)")
get_nonce(30, 114)
tile_products(XN_T, 16, 18)
stamp()
nop(2)
for k in range(4): e(f"v_permlane32_swap_b32 v{104+k}, v{108+k}")
nop(0)
for k in range(4): e(f"v_add_f32 v{104+k}, v{104+k}, v{108+k}")
nop(1)
for k in range(2): e(f"v_permlane16_swap_b32 v{104+k}, v{106+k}")
nop(0)
for k in range(2): e(f"v_add_f32 v{104+k}, v{104+k}, v{106+k}")
nop(1)
for k in range(2): dpp("v_add_f32", 104+k, "row_ror:8")
gran(12, 104, 105)
e("v_and_b32 v2, 7, v1"); e("v_lshlrev_b32 v2, 6, v2"); e("v_lshrrev_b32 v10, 5, v1"); e("v_lshl_add_u32 v2, v10, 5, v2")
e("v_bfe_u32 v10, v1, 4, 1"); e("v_lshl_add_u32 v2, v10, 4, v2")
e("s_lshl_b32 s9, s2, 13")
e("v_and_b32 v10, 8, v1"); e("v_cmp_eq_u32 vcc, 0, v10"); e("s_and_saveexec_b64 s[20:21], vcc")
e("buffer_store_dwordx4 v[12:15], v2, s[88:91], s9 offen sc1")
e("s_mov_b64 exec, s[20:21]")
stamp()
e("s_lshl_b32 s9, s4, 17"); e("v_and_b32 v3, 31, v1"); e("v_lshlrev_b32 v3, 4, v3"); e("v_lshrrev_b32 v10, 5, v1"); e("v_lshl_add_u32 v3, v10, 15, v3")
loads = []
for i2 in range(2):
    for rb in range(4):
        n = 4*i2 + rb
        loads.append(f"s_add_u32 s10, s9, {8192*(8*i2+rb)}")
        loads.append(f"buffer_load_dwordx4 v[{32+4*n}:{35+4*n}], v3, s[88:91], s10 offen sc1")
poll(loads, [32+4*x for x in range(8)], 20)
stamp()
for i2 in range(2):
    b0 = 32 + 16*i2
    for k in (1, 2): e(f"v_add_f32 v{b0+k}, v{b0+k}, v{b0+4+k}"); e(f"v_add_f32 v{b0+8+k}, v{b0+8+k}, v{b0+12+k}")
for i2 in range(2):
    b0 = 32 + 16*i2
    for k in (1, 2): e(f"v_add_f32 v{b0+k}, v{b0+k}, v{b0+8+k}")
e("v_cvt_pk_bf16_f32 v32, v33, v34"); e("v_cvt_pk_bf16_f32 v33, v49, v50")
e("v_lshlrev_b32 v4, 2, v1")
e(f"ds_write_b32 v4, v32 offset:{Q_T}"); e(f"ds_write_b32 v4, v33 offset:{Q_T+256}")
e("s_waitcnt lgkmcnt(0)")
set_flag(FQ, 10, 11)
stamp()
e("v_lshrrev_b32 v4, 4, v1"); e("v_lshlrev_b32 v4, 14, v4")
e("v_and_b32 v5, 15, v1"); e("v_lshl_add_u32 v5, v5, 4, v4")
e("s_lshl_b32 s9, s4, 16"); e(f"s_add_u32 s9, s9, {OB2}")
e("s_lshr_b32 s11, s5, 2"); e("s_lshl_b32 s10, s11, 8"); e("s_add_u32 s10, s10, s9")
e("s_lshr_b32 s11, s5, 3"); e("s_lshl_b32 s11, s11, 4"); e("s_add_u32 s11, s11, s9")
spin_lds(FO, 10, 11, sleep=2)
loads = []
for i in range(4):
    loads.append(f"s_add_u32 s13, s10, {4096*i}"); loads.append(f"s_add_u32 s15, s11, {4096*i}")
    loads.append(f"buffer_load_dwordx4 v[{32+12*i}:{35+12*i}], v5, s[88:91], s13 offen sc1")
    loads.append(f"buffer_load_dwordx4 v[{36+12*i}:{39+12*i}], v5, s[88:91], s13 offen offset:1024 sc1")
    loads.append(f"buffer_load_dwordx4 v[{40+12*i}:{43+12*i}], v4, s[88:91], s15 offen offset:2048 sc1")
poll(loads, [32+4*x for x in range(12)], 20, sleep=X2SLEEP)
stamp()
e("v_max3_f32 v84, v41, v53, v65"); e("v_max_f32 v84, v84, v77")
allreduce("v_max_f32", [84], [85], rors=())
for i in range(4): e(f"v_sub_f32 v{41+12*i}, v{41+12*i}, v84")
for i in range(4): e(f"v_mul_f32 v{41+12*i}, s24, v{41+12*i}")
for i in range(4): e(f"v_exp_f32 v{41+12*i}, v{41+12*i}")
nop(0)
for n, k in enumerate((33, 34, 37, 38, 42)): e(f"v_mul_f32 v{86+n}, v41, v{k}")
for i in range(1, 4):
    for n, k in enumerate((33, 34, 37, 38, 42)): e(f"v_fmac_f32 v{86+n}, v{41+12*i}, v{k+12*i}")
allreduce("v_add_f32", [86, 87, 88, 89, 90], [91, 92, 93, 94, 95], rors=())
e("v_rcp_f32 v90, v90"); nop(0)
for k in range(4): e(f"v_mul_f32 v{86+k}, v90, v{86+k}")
e("v_cvt_pk_bf16_f32 v86, v86, v87"); e("v_cvt_pk_bf16_f32 v87, v88, v89")
e("v_cmp_gt_u32 vcc, 16, v1"); nop(1); e("v_cndmask_b32 v86, 0, v86, vcc"); e("v_cndmask_b32 v87, 0, v87, vcc")
e("v_lshlrev_b32 v4, 3, v1")
e("v_cmp_gt_u32 vcc, 24, v1"); e("s_and_saveexec_b64 s[20:21], vcc")
e(f"ds_write_b64 v4, v[86:87] offset:{OF_T}")
e("s_mov_b64 exec, s[20:21]")
e("s_waitcnt lgkmcnt(0)")
e("s_barrier")
stamp()
stamp_store()
e("s_endpgm")

lab("L_h")
nstamp[0] = ns0
e("s_cmp_eq_u32 s3, 1"); e("s_cbranch_scc1 L_h1")
e("s_barrier")
e("s_endpgm")
lab("L_h1")
srd(80, 48, 576*4608*2)
e("v_lshlrev_b32 v3, 4, v1"); e("global_load_dwordx4 v[4:7], v3, s[36:37]")
e("v_lshlrev_b32 v9, 1, v1"); e("global_load_ushort v8, v9, s[36:37] offset:1024")
e("v_mul_u32_u24 v140, 3641, v1"); e("v_lshrrev_b32 v140, 16, v140")
e("v_mul_u32_u24 v141, 18, v140"); e("v_sub_u32 v141, v1, v141")
e("s_movk_i32 s12, 9216"); e("v_mul_lo_u32 v142, v140, s12"); e("v_lshl_add_u32 v142, v141, 4, v142")
e(f"v_mov_b32 v2, {INV}"); e("v_cmp_gt_u32 vcc, 54, v1"); nop(1); e("v_cndmask_b32 v142, v2, v142, vcc")
e("s_and_b32 s8, s5, 7"); e("s_mul_i32 s8, s8, 72")
e("s_mul_i32 s9, s8, 9216"); e("s_mul_i32 s10, s4, 576"); e("s_add_u32 s9, s9, s10"); e("s_lshr_b32 s10, s5, 3"); e("s_mul_i32 s10, s10, 288"); e("s_add_u32 s9, s9, s10")
def hloads():
    for i in range(24):
        e(f"buffer_load_dwordx4 v[{32+4*i}:{35+4*i}], v142, s[80:83], s18 offen{NT}")
        if i < 23: e(f"s_add_u32 s18, s18, {3*9216}")
e("s_mov_b32 s18, s9")
if not HLATE: hloads()
e("s_barrier")
e(f"s_waitcnt vmcnt({0 if HLATE else 24})")
stamp()
LNBASE[0] = 144
unpack9(4, 8); layernorm(4, 8); unpack9(4, 8); layernorm(4, 8)
LNBASE[0] = 104
e(f"ds_write_b128 v3, v[4:7] offset:{Y_T}"); e(f"ds_write_b16 v9, v8 offset:{Y_T+1024}")
e("s_lshl_b32 s9, s8, 1"); e("v_min_u32 v2, 2, v140"); e("v_lshl_add_u32 v2, v2, 1, s9")
e("s_waitcnt lgkmcnt(0)")
get_nonce(30, 144)
if HLATE:
    spin_lds({"fv": FV, "fo": FO, "fq": FQ}[HLATE], 30, 31, sleep=4)
    hloads()
ACC = 128
tile_products(Y_T, 6, 24)
stamp()
e("v_lshlrev_b32 v2, 5, v1")
e(f"ds_write_b128 v2, v[{ACC}:{ACC+3}] offset:{HR}"); e(f"ds_write_b128 v2, v[{ACC+4}:{ACC+7}] offset:{HR+16}")
ACC = 104
e("v_lshlrev_b32 v2, 3, v1")
e("s_waitcnt lgkmcnt(0)")
for n in range(2):
    for sub in range(3): e(f"ds_read_b64 v[{32+8*n+2*sub}:{33+8*n+2*sub}], v2 offset:{HR+512*n+576*sub}")
e("s_waitcnt lgkmcnt(0)")
for n in range(2):
    for k in range(2): e(f"v_add_f32 v{32+8*n+k}, v{32+8*n+k}, v{34+8*n+k}"); e(f"v_add_f32 v{32+8*n+k}, v{32+8*n+k}, v{36+8*n+k}")
gran(12, 32, 33); gran(16, 40, 41)
e("v_lshlrev_b32 v2, 4, v1")
e("s_lshl_b32 s9, s2, 13")
e("buffer_store_dwordx4 v[12:15], v2, s[88:91], s9 offen offset:1024 sc1")
e("v_cmp_gt_u32 vcc, 8, v1"); e("s_and_saveexec_b64 s[20:21], vcc")
e("buffer_store_dwordx4 v[16:19], v2, s[88:91], s9 offen offset:2048 sc1")
e("s_mov_b64 exec, s[20:21]")
e("v_min_u32 v7, 35, v1")
e("s_lshr_b32 s8, s5, 2")
e("s_mul_i32 s9, s4, 576"); e("s_mul_i32 s10, s8, 144"); e("s_add_u32 s9, s9, s10"); e("v_lshl_add_u32 v6, v7, 2, s9")
e("global_load_dword v30, v6, s[50:51]")
stamp()
e("v_lshlrev_b32 v7, 4, v7")
e("s_lshl_b32 s9, s4, 17"); e("s_lshr_b32 s10, s5, 3"); e("s_lshl_b32 s10, s10, 16"); e("s_add_u32 s9, s9, s10")
e("s_and_b32 s10, s8, 1"); e("s_mul_i32 s10, s10, 576"); e("s_add_u32 s9, s9, s10")
spin_lds(FQ, 10, 11, sleep=4)
loads = []
for i in range(8):
    loads.append(f"s_add_u32 s10, s9, {8192*i + 1024}")
    loads.append(f"buffer_load_dwordx4 v[{32+4*i}:{35+4*i}], v7, s[88:91], s10 offen sc1")
poll(loads, [32+4*i for i in range(8)], 20, sleep=2)
stamp()
for st in (4, 2, 1):
    for p in range(st):
        for k in (1, 2): e(f"v_add_f32 v{32+4*p+k}, v{32+4*p+k}, v{32+4*(p+st)+k}")
e("v_cvt_pk_bf16_f32 v35, v33, v34"); e("v_lshlrev_b32 v33, 16, v35"); e("v_and_b32 v34, s25, v35")
e("v_lshlrev_b32 v36, 16, v30"); e("v_and_b32 v37, s25, v30")
e("v_add_f32 v33, v33, v36"); e("v_add_f32 v34, v34, v37")
e("v_cvt_pk_bf16_f32 v35, v33, v34"); e("v_lshlrev_b32 v33, 16, v35"); e("v_and_b32 v34, s25, v35")
for r in (33, 34):
    t = r + 7
    u = r + 9
    e(f"v_mul_f32 v{t}, v{r}, v{r}"); e(f"v_mul_f32 v{t}, v{t}, v{r}"); e(f"v_mov_b32 v{u}, v{r}"); e(f"v_fmac_f32 v{u}, 0x3d372713, v{t}")
    e(f"v_mul_f32 v{u}, 0x40135761, v{u}"); e(f"v_exp_f32 v{u}, v{u}"); nop(0); e(f"v_add_f32 v{u}, 1.0, v{u}"); e(f"v_rcp_f32 v{u}, v{u}"); nop(0)
    e(f"v_fma_f32 v{u}, -2.0, v{u}, 1.0")
    e(f"v_add_f32 v{u}, 1.0, v{u}"); e(f"v_mul_f32 v{t}, 0.5, v{r}"); e(f"v_mul_f32 v{u}, v{t}, v{u}")
e("v_cvt_pk_bf16_f32 v35, v42, v43")
e("v_cmp_gt_u32 vcc, 36, v1"); nop(1); e("v_cndmask_b32 v35, 0, v35, vcc")
e("v_lshlrev_b32 v4, 2, v1")
e("v_cmp_gt_u32 vcc, 48, v1"); e("s_and_saveexec_b64 s[20:21], vcc")
e(f"ds_write_b32 v4, v35 offset:{H_T}")
e("s_mov_b64 exec, s[20:21]")
e("s_waitcnt lgkmcnt(0)")
set_flag(FH, 10, 11)
stamp()
stamp_store()
e("s_endpgm")

lab("L_sync")
nstamp[0] = ns0
e("s_memrealtime s[16:17]")
e("s_and_b32 s9, s4, 3"); e("s_lshl_b32 s9, s9, 6"); e("s_lshr_b32 s10, s4, 2"); e("s_lshl_b32 s10, s10, 3"); e("s_add_u32 s9, s9, s10")
e("v_mov_b32 v2, s9"); e("v_mov_b32 v6, 0"); e("v_mov_b32 v7, 0")
for k in range(4): e(f"v_mov_b32 v{8+k}, 0")
e(f"v_mov_b32 v12, {FLG}")
e("s_waitcnt lgkmcnt(0)")
e("s_or_b32 s16, s16, 1")
e("v_mov_b32 v4, s16"); e("v_mov_b32 v5, s17")
e("v_cmp_eq_u32 vcc, 0, v1"); e("s_and_saveexec_b64 s[20:21], vcc")
e("global_atomic_cmpswap_x2 v[14:15], v2, v[4:7], s[58:59] sc0")
e("s_mov_b64 exec, s[20:21]")
e("ds_write_b128 v12, v[8:11]"); e("ds_write_b128 v12, v[8:11] offset:16")
e("s_waitcnt lgkmcnt(0)")
e("s_barrier")
e("s_waitcnt vmcnt(0)")
nop(0)
e("v_readfirstlane_b32 s10, v14"); e("v_readfirstlane_b32 s11, v15")
e("s_cmp_eq_u32 s10, 0"); e("s_cselect_b32 s16, s16, s10"); e("s_cselect_b32 s17, s17, s11")
e("v_mov_b32 v4, s16"); e("v_mov_b32 v5, s17"); e(f"v_mov_b32 v12, {NONCE}")
e("ds_write_b64 v12, v[4:5]")
e("s_waitcnt lgkmcnt(0)")
stamp()
e(f"s_cmp_ge_u32 s2, {NRED}"); e("s_cbranch_scc1 L_w2end")
spin_lds(FQ, 12, 13, sleep=8)
e("v_and_b32 v2, 15, v1"); e("v_and_b32 v3, 3, v2"); e("v_lshlrev_b32 v3, 6, v3"); e("v_lshrrev_b32 v4, 2, v2"); e("v_lshl_add_u32 v3, v4, 3, v3")
l_, d_ = newlab("np"), newlab("npd")
e("s_mov_b32 s12, 0")
lab(l_)
e("global_load_dwordx2 v[4:5], v3, s[58:59] sc1")
e("s_add_u32 s12, s12, 1")
e("s_waitcnt vmcnt(0)")
e("v_cmp_eq_u32 vcc, 0, v4")
e(f"s_cmp_gt_u32 s12, {SPINMAX}"); e(f"s_cbranch_scc1 {d_}")
e(f"s_cbranch_vccz {d_}")
e("s_sleep 8"); e(f"s_branch {l_}")
lab(d_)
e("v_lshlrev_b32 v2, 3, v2")
e(f"ds_write_b64 v2, v[4:5] offset:{NT_T}")
e("s_waitcnt lgkmcnt(0)")
set_flag(FC2, 10, 11)
lab("L_w2end")
stamp()
stamp_store()
e("s_endpgm")

lab("L_kv")
nstamp[0] = ns0
SB[0] = 112
srd(64, 38, 268435456); srd(68, 40, 268435456); srd(76, 44, 4096*576*2); srd(84, 52, 4608*576*2)
e("s_sub_u32 s7, s3, 4")
e("s_lshl_b32 s9, s4, 24"); e("s_lshl_b32 s10, s5, 16"); e("s_add_u32 s9, s9, s10"); e(f"s_add_u32 s9, s9, {61440*256}")
e("s_lshl_b32 s10, s7, 13"); e("s_add_u32 s9, s9, s10"); e("s_add_u32 s10, s9, 4096")
e("v_and_b32 v10, 15, v1"); e("v_lshrrev_b32 v11, 4, v1")
e("v_lshlrev_b32 v3, 8, v10"); e("v_lshl_add_u32 v3, v11, 4, v3")
e("v_lshlrev_b32 v12, 11, v11"); e("v_lshl_add_u32 v12, v10, 4, v12")
KR, VR = 16, 48
e("s_barrier")
e("s_mov_b32 s14, 0"); e(f"v_mov_b32 v8, {FQ}")
for i in range(8):
    thr()
    e(f"buffer_load_dwordx4 v[{KR+4*i}:{KR+3+4*i}], v12, s[64:67], s9 offen offset:{i*256}{NT}")
for i in range(8):
    thr()
    e(f"buffer_load_dwordx4 v[{VR+4*i}:{VR+3+4*i}], v12, s[68:71], s9 offen offset:{i*256}{NT}")
WR = 128
def wloads():
    e("v_subrev_u32 v13, 256, v0")
    e("s_and_b32 s15, s2, 3"); e("s_cmp_eq_u32 s15, 3")
    e("s_cselect_b32 s62, 24, 16"); e("s_cselect_b32 s63, 21, 32"); e("s_movk_i32 s12, 4096"); e("s_cselect_b32 s12, 2731, s12")
    e("v_mul_lo_u32 v14, v13, s12"); e("v_lshrrev_b32 v14, 16, v14")
    e("v_mul_lo_u32 v15, v14, s62"); e("v_sub_u32 v15, v13, v15")
    e("v_mul_u32_u24 v4, 1152, v14"); e("v_lshl_add_u32 v4, v15, 4, v4")
    e(f"v_mov_b32 v7, {INV}"); e("v_cmp_gt_u32 vcc, s63, v14"); nop(1); e("v_cndmask_b32 v4, v7, v4, vcc")
    e("s_lshr_b32 s13, s2, 2"); e("s_lshl_b32 s15, s15, 8"); e("s_mul_i32 s11, s63, 1152")
    for mtx, rows, sr, base in ((0, 72, 84, 0), (1, 64, 76, 16)):
        e(f"s_mul_i32 s9, s13, {rows*1152}"); e("s_add_u32 s9, s9, s15"); e("v_mov_b32 v5, v14")
        for i in range(4):
            e(f"v_cmp_gt_u32 vcc, {rows}, v5"); nop(1); e("v_cndmask_b32 v6, v7, v4, vcc")
            thr(); e(f"buffer_load_dwordx4 v[{WR+base+4*i}:{WR+base+3+4*i}], v6, s[{sr}:{sr+3}], s9 offen{NT}")
            if i < 3: e("s_add_u32 s9, s9, s11"); e("v_add_u32 v5, s63, v5")
    e(f"s_min_u32 s13, s2, {NRED-1}"); e("s_lshl_b32 s13, s13, 4"); e("v_and_b32 v6, 1, v1"); e("v_lshlrev_b32 v6, 3, v6"); e(f"v_add_u32 v{WR+36}, s13, v6")
    e(f"global_load_dwordx2 v[{WR+32}:{WR+33}], v{WR+36}, s[36:37]"); e(f"global_load_dwordx2 v[{WR+34}:{WR+35}], v{WR+36}, s[54:55]")

if not WLATE: wloads()
e("v_cmp_eq_u32 s[28:29], 1, v11"); e("v_cmp_eq_u32 s[30:31], 2, v11"); e("v_cmp_eq_u32 s[32:33], 3, v11")
e("s_mov_b32 s27, 0x3db504f3"); e("s_mov_b32 s34, 0x05040100"); e("s_mov_b32 s35, 0x07060302")
spin_lds(FQ, 4, 5, sleep=2)
get_nonce(4, 6)
stamp()
e("v_lshlrev_b32 v4, 4, v10")
e(f"ds_read_b128 v[96:99], v4 offset:{Q_T}"); e(f"ds_read_b128 v[100:103], v4 offset:{Q_T+256}")
e("v_and_b32 v4, 1, v1"); e("v_cmp_eq_u32 s[18:19], 1, v4")
e("s_waitcnt lgkmcnt(0)")
SR = 80
for i in range(8):
    e(f"s_waitcnt vmcnt({(8 if WLATE else 18)+7-i})")
    if i == 0: stamp()
    for k in range(4):
        for h in range(2):
            d = SR + 2*i + h
            c = "0" if k == 0 else f"v{d}"
            e(f"v_dot2_f32_bf16 v{d}, v{KR+4*i+k}, v{96+4*h+k}, {c}")
nop(2)
allreduce("v_add_f32", [SR + x for x in range(16)], [], rows=False)
for i in range(8): e(f"v_cvt_pk_bf16_f32 v{16+i}, v{SR+2*i}, v{SR+2*i+1}")
for i in range(8):
    e(f"v_lshlrev_b32 v{SR+2*i}, 16, v{16+i}"); e(f"v_and_b32 v{SR+2*i+1}, s25, v{16+i}")
for x in range(16): e(f"v_mul_f32 v{SR+x}, s27, v{SR+x}")
for i in range(8): e(f"v_cvt_pk_bf16_f32 v{16+i}, v{SR+2*i}, v{SR+2*i+1}")
for i in range(8):
    e(f"v_lshlrev_b32 v{SR+2*i}, 16, v{16+i}"); e(f"v_and_b32 v{SR+2*i+1}, s25, v{16+i}")
for h in range(2): e(f"v_max3_f32 v{24+h}, v{SR+h}, v{SR+2+h}, v{SR+4+h}")
for h in range(2): e(f"v_max3_f32 v{26+h}, v{SR+6+h}, v{SR+8+h}, v{SR+10+h}")
for h in range(2): e(f"v_max3_f32 v{24+h}, v{24+h}, v{SR+12+h}, v{SR+14+h}")
for h in range(2): e(f"v_max_f32 v{24+h}, v{24+h}, v{26+h}")
allreduce("v_max_f32", [24, 25], [26, 27], rors=())
for x in range(16): e(f"v_sub_f32 v{SR+x}, v{SR+x}, v{24+(x&1)}")
for x in range(16): e(f"v_mul_f32 v{SR+x}, s24, v{SR+x}")
for x in range(16): e(f"v_exp_f32 v{SR+x}, v{SR+x}")
nop(0)
for h in range(2): e(f"v_add_f32 v{28+h}, v{SR+h}, v{SR+2+h}"); e(f"v_add_f32 v{30+h}, v{SR+4+h}, v{SR+6+h}")
for h in range(2): e(f"v_add_f32 v{32+h}, v{SR+8+h}, v{SR+10+h}"); e(f"v_add_f32 v{34+h}, v{SR+12+h}, v{SR+14+h}")
for h in range(2): e(f"v_add_f32 v{28+h}, v{28+h}, v{30+h}"); e(f"v_add_f32 v{32+h}, v{32+h}, v{34+h}")
for h in range(2): e(f"v_add_f32 v{28+h}, v{28+h}, v{32+h}")
for t in range(4):
    e(f"v_cvt_pk_bf16_f32 v{16+t}, v{SR+4*t}, v{SR+4*t+2}"); e(f"v_cvt_pk_bf16_f32 v{36+t}, v{SR+4*t+1}, v{SR+4*t+3}")
for t in range(4): e(f"v_cndmask_b32 v{20+t}, v{16+t}, v{36+t}, s[18:19]")
allreduce("v_add_f32", [28, 29], [26, 27], rors=())
for t in range(4):
    e(f"s_waitcnt vmcnt({(6 if WLATE else 16)-2*t})")
    if t == 3 and HLATE == "fv":
        e(f"v_mov_b32 v4, {FV}"); e("v_mov_b32 v7, 1"); e("ds_write_b32 v4, v7")
    if WLATE and not WFO and t == 3: wloads()
    for d2 in range(4):
        lo, hi = VR+4*(2*t)+d2, VR+4*(2*t+1)+d2
        e(f"v_perm_b32 v{TB(2*d2, t)}, v{hi}, v{lo}, s34")
        e(f"v_perm_b32 v{TB(2*d2+1, t)}, v{hi}, v{lo}, s35")
nop(1)
for j in range(8):
    e(f"v_mfma_f32_16x16x32_bf16 v[{VR+4*j}:{VR+3+4*j}], v[20:23], v[{TB(j,0)}:{TB(j,3)}], 0")
stamp()
nop(7); nop(1)
for k in range(4): e(f"v_cndmask_b32 v{32+k}, v{VR+4*k}, v{VR+4*(k+4)}, s[28:29]")
for k in range(4): e(f"v_cndmask_b32 v{32+k}, v{32+k}, v{VR+4*k+1}, s[30:31]")
for k in range(4): e(f"v_cndmask_b32 v{32+k}, v{32+k}, v{VR+4*(k+4)+1}, s[32:33]")
e("v_lshrrev_b32 v5, 1, v11"); e("v_lshlrev_b32 v5, 9, v5"); e("v_lshl_add_u32 v5, v10, 5, v5")
e("v_and_b32 v6, 1, v11"); e("v_lshl_add_u32 v5, v6, 4, v5")
e("s_lshl_b32 s11, s7, 10"); e("v_add_u32 v5, s11, v5")
e(f"ds_write_b128 v5, v[32:35] offset:{OW}")
e("v_mov_b32 v36, v24"); e("v_mov_b32 v37, v28"); e("v_mov_b32 v38, v25"); e("v_mov_b32 v39, v29")
e("s_lshl_b32 s11, s7, 4"); e("v_mov_b32 v6, s11")
e(f"ds_write_b128 v6, v[36:39] offset:{ML_T}")
e("v_mov_b32 v7, 1"); e(f"v_mov_b32 v6, {CNT}")
e("s_waitcnt lgkmcnt(0)")
e("v_cmp_eq_u32 vcc, 0, v1"); e("s_and_saveexec_b64 s[20:21], vcc")
e("ds_add_rtn_u32 v7, v6, v7")
e("s_waitcnt lgkmcnt(0)")
e("s_mov_b64 exec, s[20:21]")
nop(0)
e("v_readfirstlane_b32 s11, v7")
e("s_cmp_lg_u32 s11, 7"); e("s_cbranch_scc1 L_kv_done")
e("v_mov_b32 v6, 0")
for w in range(8): e(f"ds_read_b128 v[{16+4*w}:{19+4*w}], v6 offset:{ML_T+16*w}")
e("v_lshlrev_b32 v5, 4, v1")
for w in range(8): e(f"ds_read_b128 v[{48+4*w}:{51+4*w}], v5 offset:{OW+1024*w}")
e("v_cmp_gt_u32 vcc, 32, v1")
e("s_waitcnt lgkmcnt(8)")
nop(0)
for w in range(8):
    e(f"v_cndmask_b32 v{80+w}, v{18+4*w}, v{16+4*w}, vcc")
    e(f"v_cndmask_b32 v{88+w}, v{19+4*w}, v{17+4*w}, vcc")
e("v_max3_f32 v8, v80, v81, v82"); e("v_max3_f32 v9, v83, v84, v85"); e("v_max3_f32 v8, v8, v86, v87"); e("v_max_f32 v8, v8, v9")
for w in range(8): e(f"v_sub_f32 v{80+w}, v{80+w}, v8")
for w in range(8): e(f"v_mul_f32 v{80+w}, s24, v{80+w}")
for w in range(8): e(f"v_exp_f32 v{80+w}, v{80+w}")
nop(0)
e("v_mul_f32 v9, v80, v88")
for w in range(1, 8): e(f"v_fmac_f32 v9, v{80+w}, v{88+w}")
e("s_waitcnt lgkmcnt(0)")
for k in range(4): e(f"v_mul_f32 v{96+k}, v80, v{48+k}")
for w in range(1, 8):
    for k in range(4): e(f"v_fmac_f32 v{96+k}, v{80+w}, v{48+4*w+k}")
gran(100, 96, 97); gran(104, 98, 99); gran(108, 8, 9)
e("s_lshl_b32 s11, s2, 12"); e(f"s_add_u32 s11, s11, {OB2}")
e("buffer_store_dwordx4 v[100:103], v5, s[88:91], s11 offen sc1")
e("buffer_store_dwordx4 v[104:107], v5, s[88:91], s11 offen offset:1024 sc1")
e("v_lshrrev_b32 v6, 5, v1"); e("v_lshlrev_b32 v6, 4, v6")
e("v_and_b32 v7, 31, v1"); e("v_cmp_eq_u32 vcc, 0, v7"); e("s_and_saveexec_b64 s[20:21], vcc")
e("buffer_store_dwordx4 v[108:111], v6, s[88:91], s11 offen offset:2048 sc1")
e("s_mov_b64 exec, s[20:21]")
set_flag(FO, 6, 7)
lab("L_kv_done")
stamp()
if WFO:
    spin_lds(FO, 4, 5, sleep=1)
    wloads()
e("v_mov_b32 v26, v14")
for i in range(4):
    e(f"v_min_u32 v{40+i}, 95, v26"); e(f"v_lshlrev_b32 v{40+i}, 1, v{40+i}")
    if i < 3: e("v_add_u32 v26, s63, v26")
e("s_lshl_b32 s9, s62, 6"); e("s_add_u32 s9, s9, 32"); e("v_mul_lo_u32 v27, v14, s9"); e("v_lshl_add_u32 v27, v15, 5, v27")
e("s_lshl_b32 s10, s62, 5"); e("v_add_u32 v28, s10, v27")
e("v_cmp_gt_u32 s[94:95], s63, v14")
spin_lds(FH, 4, 5)
for i in range(4): e(f"ds_read_u16 v{16+i}, v{40+i} offset:{H_T}")
e("s_waitcnt lgkmcnt(0)")
for i in range(4): e(f"v_lshlrev_b32 v{32+i}, 16, v{16+i}")
e("s_waitcnt vmcnt(6)")
for i in range(4):
    for k in range(4):
        for z in range(2):
            d = 48 + 2*k + z
            c = "0" if i == 0 else f"v{d}"
            e(f"v_dot2_f32_bf16 v{d}, v{WR+4*i+k}, v{(16 if z == 0 else 32)+i}, {c}")
nop(2)
e("s_and_saveexec_b64 s[22:23], s[94:95]")
e(f"ds_write_b128 v28, v[48:51] offset:{AB}"); e(f"ds_write_b128 v28, v[52:55] offset:{AB+16}")
e("s_mov_b64 exec, s[22:23]")
e("s_waitcnt vmcnt(0)")
e("s_barrier")
stamp()
for i in range(4): e(f"ds_read_u16 v{20+i}, v{40+i} offset:{OF_T}")
e("s_waitcnt lgkmcnt(0)")
for i in range(4): e(f"v_lshlrev_b32 v{36+i}, 16, v{20+i}")
for i in range(4):
    for k in range(4):
        for z in range(2):
            d = 56 + 2*k + z
            c = "0" if i == 0 else f"v{d}"
            e(f"v_dot2_f32_bf16 v{d}, v{WR+16+4*i+k}, v{(20 if z == 0 else 36)+i}, {c}")
nop(2)
e("s_and_saveexec_b64 s[22:23], s[94:95]")
e(f"ds_write_b128 v27, v[56:59] offset:{AB}"); e(f"ds_write_b128 v27, v[60:63] offset:{AB+16}")
e("s_mov_b64 exec, s[22:23]")
e("s_waitcnt lgkmcnt(0)")
e("s_barrier")
def tail_reduce(CW, NS, TPG, SPT):
    RS = CW*64 + 32
    sh = {4: 2, 2: 1}[TPG]
    NG = CW*8
    e(f"v_cmp_gt_u32 vcc, {NG*TPG}, v13"); e("s_and_saveexec_b64 s[20:21], vcc")
    e("s_cbranch_execz L_p3skip")
    e(f"v_lshrrev_b32 v4, {sh}, v13")
    e("v_lshrrev_b32 v5, 3, v4"); e("v_lshlrev_b32 v5, 5, v5")
    e("v_and_b32 v6, 1, v4"); e("v_lshl_add_u32 v5, v6, 4, v5")
    e("v_bfe_u32 v6, v4, 1, 1"); e("v_lshl_add_u32 v5, v6, 3, v5")
    e("v_bfe_u32 v6, v4, 2, 1"); e(f"v_mul_u32_u24 v6, {CW*32}, v6"); e("v_add_u32 v5, v5, v6")
    e(f"v_and_b32 v6, {TPG-1}, v13"); e(f"v_mul_u32_u24 v7, {SPT*RS}, v6"); e("v_add_u32 v8, v5, v7")
    full = SPT if TPG*SPT == NS else SPT - 1
    for w in range(full): e(f"ds_read_b64 v[{32+2*w}:{33+2*w}], v8 offset:{AB+RS*w}")
    if full != SPT:
        e(f"v_mov_b32 v{32+2*full}, 0"); e(f"v_mov_b32 v{33+2*full}, 0")
        e("v_cmp_eq_u32 vcc, 0, v6"); e("s_and_saveexec_b64 s[22:23], vcc")
        e(f"ds_read_b64 v[{32+2*full}:{33+2*full}], v8 offset:{AB+RS*full}")
        e("s_mov_b64 exec, s[22:23]")
    e("s_waitcnt lgkmcnt(0)")
    n = SPT
    while n > 1:
        h = n // 2
        for w in range(h):
            for k in range(2): e(f"v_add_f32 v{32+2*w+k}, v{32+2*w+k}, v{32+2*(n-1-w)+k}")
        n = n - h
    nop(1)
    for k in range(2): dpp("v_add_f32", 32+k, "quad_perm:[1,0,3,2]")
    if TPG == 4:
        nop(1)
        for k in range(2): dpp("v_add_f32", 32+k, "quad_perm:[2,3,0,1]")
    gran(64, 32, 33)
    e("s_lshl_b32 s9, s2, 12"); e(f"s_add_u32 s9, s9, {OB3}"); e("v_lshlrev_b32 v3, 4, v4")
    e("v_cmp_eq_u32 vcc, 0, v6"); e("s_and_b64 exec, exec, vcc")
    e("buffer_store_dwordx4 v[64:67], v3, s[88:91], s9 offen sc1")
e("s_cmp_eq_u32 s62, 24"); e("s_cbranch_scc1 L_wide")
tail_reduce(16, 32, 4, 8)
e("s_branch L_p3skip")
lab("L_wide")
tail_reduce(24, 21, 2, 11)
lab("L_p3skip")
e("s_mov_b64 exec, s[20:21]")
lab("L_p3done")
stamp()
e(f"s_cmp_ge_u32 s2, {NRED}"); e("s_cbranch_scc1 L_fdone")
spin_lds(FC2, 4, 5)
e("s_lshr_b32 s10, s2, 4"); e("s_min_u32 s10, s10, 3"); e("s_lshl_b32 s11, s10, 4"); e("s_sub_u32 s11, s2, s11")
e("v_lshrrev_b32 v4, 3, v13"); e("v_lshrrev_b32 v6, 2, v4"); e("v_lshlrev_b32 v6, 3, v6")
e(f"ds_read_b64 v[72:73], v6 offset:{NT_T}")
e("v_lshlrev_b32 v4, 14, v4"); e("v_and_b32 v5, 7, v13"); e("v_lshl_add_u32 v4, v5, 4, v4")
e("s_lshl_b32 s9, s10, 12"); e("s_lshl_b32 s11, s11, 7"); e("s_add_u32 s9, s9, s11"); e(f"s_add_u32 s9, s9, {OB3}")
e("s_waitcnt lgkmcnt(0)")
poll(["buffer_load_dwordx4 v[48:51], v4, s[88:91], s9 offen sc1"], [48], 40, tags=[("v72", "v73")])
e("v_mov_b32 v32, v49"); e("v_mov_b32 v33, v50")
allreduce("v_add_f32", [32, 33], [64, 65], rors=(8,))
e("s_lshl_b32 s9, s7, 6"); e("v_lshl_add_u32 v5, v1, 3, s9")
e("v_cmp_gt_u32 vcc, 8, v1"); e("s_and_saveexec_b64 s[20:21], vcc")
e(f"ds_write_b64 v5, v[32:33] offset:{R3_T}")
e("s_mov_b64 exec, s[20:21]")
e("s_waitcnt lgkmcnt(0)")
e("s_barrier")
e("s_cmp_lg_u32 s7, 0"); e("s_cbranch_scc1 L_fdone")
e("v_and_b32 v5, 1, v1"); e("v_lshlrev_b32 v5, 3, v5")
for w in range(8):
    for q in range(4): e(f"ds_read_b64 v[{48+8*w+2*q}:{49+8*w+2*q}], v5 offset:{R3_T+64*w+16*q}")
for w in range(1, 8):
    e(f"s_waitcnt lgkmcnt({min(15, 28-4*w)})")
    for k in range(8): e(f"v_add_f32 v{48+k}, v{48+k}, v{48+8*w+k}")
for k in range(4): e(f"v_mov_b32 v{64+k}, v{52+k}")
def rne4(r):
    e(f"v_cvt_pk_bf16_f32 v80, v{r}, v{r+1}"); e(f"v_cvt_pk_bf16_f32 v81, v{r+2}, v{r+3}")
    e(f"v_lshlrev_b32 v{r}, 16, v80"); e(f"v_and_b32 v{r+1}, s25, v80"); e(f"v_lshlrev_b32 v{r+2}, 16, v81"); e(f"v_and_b32 v{r+3}, s25, v81")
rne4(48); rne4(64)
X, B2 = WR+32, WR+34
e(f"v_lshlrev_b32 v52, 16, v{X}"); e(f"v_and_b32 v53, s25, v{X}"); e(f"v_lshlrev_b32 v54, 16, v{X+1}"); e(f"v_and_b32 v55, s25, v{X+1}")
e(f"v_lshlrev_b32 v56, 16, v{B2}"); e(f"v_and_b32 v57, s25, v{B2}"); e(f"v_lshlrev_b32 v58, 16, v{B2+1}"); e(f"v_and_b32 v59, s25, v{B2+1}")
for k in range(4): e(f"v_add_f32 v{48+k}, v{52+k}, v{48+k}"); e(f"v_add_f32 v{64+k}, v{64+k}, v{56+k}")
rne4(48); rne4(64)
for k in range(4): e(f"v_add_f32 v{48+k}, v{48+k}, v{64+k}")
e("v_cvt_pk_bf16_f32 v80, v48, v49"); e("v_cvt_pk_bf16_f32 v81, v50, v51")
e("v_cmp_gt_u32 vcc, 2, v1"); e("s_and_saveexec_b64 s[20:21], vcc")
e(f"global_store_dwordx2 v{WR+36}, v[80:81], s[56:57]")
e("s_mov_b64 exec, s[20:21]")
lab("L_fdone")
stamp()
stamp_store()
lab("L_end")
e("s_endpgm")
L += ['.section .rodata,"a"', ".p2align 6", f".amdhsa_kernel {NAME}_kernel", "  .amdhsa_next_free_vgpr 168", "  .amdhsa_next_free_sgpr 102",
      "  .amdhsa_accum_offset 168", "  .amdhsa_group_segment_fixed_size 0", "  .amdhsa_kernarg_size 104", "  .amdhsa_user_sgpr_count 2",
      "  .amdhsa_user_sgpr_kernarg_segment_ptr 1", "  .amdhsa_system_sgpr_workgroup_id_x 1", ".end_amdhsa_kernel"]
open(out, "w").write("\n".join(L) + "\n")
```

```python
import sys
NAME = "parallel_sum__sliding_block_cached__mixer_channel_mlp__decode"
out = sys.argv[1]
opts = set(sys.argv[2:])
PROF = "prof" in opts
NT = " nt"
SPINMAX = 400000
def optint(p, d):
    for o in opts:
        if o.startswith(p) and o[len(p):].isdigit(): return int(o[len(p):])
    return d
THR = optint("thr", 0)
PTH = optint("pth", 0)
X2SLEEP = optint("x2s", 2)
WFO = "wfo" in opts
BOARD = "noboard" not in opts
BSLEEP = optint("bs", 2)
WLATE = "wlate" in opts or WFO
HLATE = "fv" if "hfv" in opts else ("fo" if "hfo" in opts else ("fq" if "hfq" in opts else ""))

L = []
def e(s): L.append("    " + s)
def lab(s): L.append(s + ":")
def nop(n): e(f"s_nop {n}")

OB1, OB2, OB3 = 0, 2 << 20, 4 << 20
INV = 0x40000000
NRED = 72
XN_T = 0
Y_T = 1216
Q_T = 2432
FLG = 3072
CNT, FQ, FC2, FO, NONCE, FV, FH = FLG, FLG+4, FLG+8, FLG+12, FLG+16, FLG+24, FLG+28
ML_T = 3136
NT_T = 3264
PW = 3456
R3_T = 4480
H_T = 4992
OF_T = 5184
HR = 47616
OW = 5632
AB = 13824
LDS_BYTES = 49664
def TB(j, t): return 80 + 4*j + t

nstamp = [0]
SB = [160]
def stamp():
    if not PROF: return
    k = nstamp[0]; nstamp[0] += 1
    assert k < 8
    e("s_memrealtime s[92:93]"); e("s_waitcnt lgkmcnt(0)"); e(f"v_mov_b32 v{SB[0]+k}, s92")
def stamp_store():
    if not PROF: return
    e("s_lshl_b32 s6, s2, 4"); e("s_add_u32 s6, s6, s3"); e("s_lshl_b32 s6, s6, 6"); e(f"s_add_u32 s6, s6, {16<<20}")
    e("v_mov_b32 v2, s6")
    e("v_cmp_eq_u32 vcc, 0, v1"); e("s_and_saveexec_b64 s[20:21], vcc")
    for q in range(2):
        e(f"buffer_store_dwordx4 v[{SB[0]+4*q}:{SB[0]+3+4*q}], v2, s[88:91], 0 offen offset:{16*q}")
    e("s_mov_b64 exec, s[20:21]")

def dpp(op, d, ctrl):
    e(f"{op}_dpp v{d}, v{d}, v{d} {ctrl} row_mask:0xf bank_mask:0xf")

def allreduce(op, regs, tmps, rors=(8, 4, 2, 1), rows=True):
    for r in rors:
        nop(1)
        for v in regs: dpp(op, v, f"row_ror:{r}")
    if rows:
        for sw in ("v_permlane16_swap_b32", "v_permlane32_swap_b32"):
            for v, t in zip(regs, tmps): e(f"v_mov_b32 v{t}, v{v}")
            nop(1)
            for v, t in zip(regs, tmps): e(f"{sw} v{v}, v{t}")
            nop(0)
            for v, t in zip(regs, tmps): e(f"{op} v{v}, v{v}, v{t}")

lbl_id = [0]
def newlab(p):
    lbl_id[0] += 1
    return f"L_{p}_{lbl_id[0]}"

def spin_lds(addr, va, vd, sleep=1):
    l, d = newlab("spin"), newlab("spind")
    e(f"v_mov_b32 v{va}, {addr}"); e("s_mov_b32 s12, 0")
    lab(l)
    e(f"ds_read_b32 v{vd}, v{va}")
    e("s_add_u32 s12, s12, 1")
    e("s_waitcnt lgkmcnt(0)")
    e(f"v_cmp_ne_u32 vcc, 0, v{vd}")
    e(f"s_cmp_gt_u32 s12, {SPINMAX*4}"); e(f"s_cbranch_scc1 {d}")
    e(f"s_cbranch_vccnz {d}")
    e(f"s_sleep {sleep}")
    e(f"s_branch {l}")
    lab(d)

def get_nonce(va, vd):
    l, d = newlab("gn"), newlab("gnd")
    e(f"v_mov_b32 v{va}, {NONCE}"); e("s_mov_b32 s12, 0")
    lab(l)
    e(f"ds_read_b64 v[{vd}:{vd+1}], v{va}")
    e("s_add_u32 s12, s12, 1")
    e("s_waitcnt lgkmcnt(0)")
    e(f"v_cmp_ne_u32 vcc, 0, v{vd}")
    e(f"s_cmp_gt_u32 s12, {SPINMAX*4}"); e(f"s_cbranch_scc1 {d}")
    e(f"s_cbranch_vccnz {d}")
    e("s_sleep 1")
    e(f"s_branch {l}")
    lab(d)
    e(f"v_readfirstlane_b32 s16, v{vd}"); e(f"v_readfirstlane_b32 s17, v{vd+1}")
    nop(1)

def set_flag(addr, va, vd):
    e(f"v_mov_b32 v{va}, {addr}"); e(f"v_mov_b32 v{vd}, 1"); e(f"ds_write_b32 v{va}, v{vd}"); e("s_waitcnt lgkmcnt(0)")

def gran(dst, a, b):
    e(f"v_mov_b32 v{dst}, s16"); e(f"v_mov_b32 v{dst+1}, v{a}"); e(f"v_mov_b32 v{dst+2}, v{b}"); e(f"v_mov_b32 v{dst+3}, s17")

def poll(loads, grans, t0, tags=None, sleep=0):
    l, d = newlab("poll"), newlab("polld")
    e("s_mov_b32 s12, 0")
    lab(l)
    for x in loads: e(x)
    e("s_add_u32 s12, s12, 1")
    e("s_waitcnt vmcnt(0)")
    for n, g in enumerate(grans):
        tl, th = ("s16", "s17") if tags is None else tags[n]
        e(f"v_xor_b32 v{t0+1}, {tl}, v{g}"); e(f"v_xor_b32 v{t0+2}, {th}, v{g+3}")
        if n == 0: e(f"v_or_b32 v{t0}, v{t0+1}, v{t0+2}")
        else: e(f"v_or3_b32 v{t0}, v{t0}, v{t0+1}, v{t0+2}")
    e(f"v_cmp_ne_u32 vcc, 0, v{t0}")
    e(f"s_cmp_gt_u32 s12, {SPINMAX}"); e(f"s_cbranch_scc1 {d}")
    e(f"s_cbranch_vccz {d}")
    if sleep: e(f"s_sleep {sleep}")
    e(f"s_branch {l}")
    lab(d)

nload = [0]
def thr():
    i = nload[0]; nload[0] += 1
    if i >= 16 and WLATE: return
    if PTH:
        if i >= PTH: e(f"s_waitcnt vmcnt({PTH-1})")
        return
    if not THR or i < THR: return
    l = newlab("thr")
    e("s_cmp_lg_u32 s14, 0"); e(f"s_cbranch_scc1 {l}")
    e("ds_read_b32 v9, v8")
    e("s_waitcnt lgkmcnt(0)")
    nop(0)
    e("v_readfirstlane_b32 s14, v9")
    e("s_cmp_lg_u32 s14, 0"); e(f"s_cbranch_scc1 {l}")
    e(f"s_waitcnt vmcnt({THR-1})")
    lab(l)

def srd(d, p, n):
    e(f"s_mov_b32 s{d}, s{p}"); e(f"s_and_b32 s{d+1}, s{p+1}, 0xffff"); e(f"s_mov_b32 s{d+2}, {n}"); e(f"s_mov_b32 s{d+3}, 0x20000")

def unpack9(p, p8):
    for k in range(4):
        e(f"v_lshlrev_b32 v{10+2*k}, 16, v{p+k}"); e(f"v_and_b32 v{11+2*k}, s25, v{p+k}")
    e(f"v_lshlrev_b32 v18, 16, v{p8}")
LNBASE = [104]
def layernorm(outp, out8):
    D = 20
    e(f"v_add_f32 v{LNBASE[0]+0}, v10, v11"); e(f"v_add_f32 v{LNBASE[0]+1}, v12, v13"); e(f"v_add_f32 v{LNBASE[0]+2}, v14, v15"); e(f"v_add_f32 v{LNBASE[0]+3}, v16, v17")
    e(f"v_add_f32 v{LNBASE[0]+0}, v{LNBASE[0]+0}, v{LNBASE[0]+1}"); e(f"v_add_f32 v{LNBASE[0]+2}, v{LNBASE[0]+2}, v{LNBASE[0]+3}"); e(f"v_add_f32 v{LNBASE[0]+0}, v{LNBASE[0]+0}, v18"); e(f"v_add_f32 v{LNBASE[0]+0}, v{LNBASE[0]+0}, v{LNBASE[0]+2}")
    allreduce(f"v_add_f32", [LNBASE[0]], [LNBASE[0]+1])
    e(f"v_mul_f32 v{LNBASE[0]+0}, 0x3ae38e39, v{LNBASE[0]+0}")
    for k in range(9): e(f"v_sub_f32 v{D+k}, v{10+k}, v{LNBASE[0]+0}")
    e(f"v_mul_f32 v{LNBASE[0]+2}, v{D}, v{D}"); e(f"v_mul_f32 v{LNBASE[0]+3}, v{D+1}, v{D+1}"); e(f"v_mul_f32 v{LNBASE[0]+4}, v{D+2}, v{D+2}")
    for k in range(3, 9): e(f"v_fmac_f32 v{LNBASE[0]+2+k%3}, v{D+k}, v{D+k}")
    e(f"v_add_f32 v{LNBASE[0]+2}, v{LNBASE[0]+2}, v{LNBASE[0]+3}"); e(f"v_add_f32 v{LNBASE[0]+2}, v{LNBASE[0]+2}, v{LNBASE[0]+4}")
    allreduce(f"v_add_f32", [LNBASE[0]+2], [LNBASE[0]+1])
    e(f"v_mul_f32 v{LNBASE[0]+2}, 0x3ae38e39, v{LNBASE[0]+2}")
    e(f"v_cvt_pk_bf16_f32 v{LNBASE[0]+1}, v{LNBASE[0]+0}, v{LNBASE[0]+2}")
    e(f"v_lshlrev_b32 v{LNBASE[0]+0}, 16, v{LNBASE[0]+1}"); e(f"v_and_b32 v{LNBASE[0]+2}, s25, v{LNBASE[0]+1}")
    e(f"v_add_f32 v{LNBASE[0]+2}, 0x3727c5ac, v{LNBASE[0]+2}")
    e(f"v_cvt_pk_bf16_f32 v{LNBASE[0]+2}, v{LNBASE[0]+2}, v{LNBASE[0]+2}"); e(f"v_and_b32 v{LNBASE[0]+2}, s25, v{LNBASE[0]+2}")
    e(f"v_sqrt_f32 v{LNBASE[0]+2}, v{LNBASE[0]+2}"); nop(0)
    e(f"v_cvt_pk_bf16_f32 v{LNBASE[0]+2}, v{LNBASE[0]+2}, v{LNBASE[0]+2}"); e(f"v_and_b32 v{LNBASE[0]+2}, s25, v{LNBASE[0]+2}")
    e(f"v_rcp_f32 v{LNBASE[0]+3}, v{LNBASE[0]+2}")
    for k in range(9): e(f"v_sub_f32 v{D+k}, v{10+k}, v{LNBASE[0]+0}")
    for k in range(4): e(f"v_cvt_pk_bf16_f32 v{LNBASE[0]+4+k}, v{D+2*k}, v{D+1+2*k}")
    e(f"v_cvt_pk_bf16_f32 v{LNBASE[0]+8}, v{D+8}, v{D+8}")
    for k in range(4):
        e(f"v_lshlrev_b32 v{D+2*k}, 16, v{LNBASE[0]+4+k}"); e(f"v_and_b32 v{D+1+2*k}, s25, v{LNBASE[0]+4+k}")
    e(f"v_lshlrev_b32 v{D+8}, 16, v{LNBASE[0]+8}")
    for k in range(9): e(f"v_mul_f32 v{10+k}, v{D+k}, v{LNBASE[0]+3}")
    for k in range(9): e(f"v_fma_f32 v{D+k}, -v{10+k}, v{LNBASE[0]+2}, v{D+k}")
    for k in range(9): e(f"v_fmac_f32 v{10+k}, v{D+k}, v{LNBASE[0]+3}")
    for k in range(4): e(f"v_cvt_pk_bf16_f32 v{outp+k}, v{10+2*k}, v{11+2*k}")
    e(f"v_cvt_pk_bf16_f32 v{out8}, v18, v18")

def tile_products(tbl, step, n):
    for c0 in range(0, n, 12):
        m = min(12, n - c0)
        for i in range(m): e(f"ds_read_u16 v{10+i}, v2 offset:{tbl+step*(c0+i)}")
        for i in range(m):
            e(f"s_waitcnt lgkmcnt({m-1-i})")
            e(f"v_lshlrev_b32 v{28+(i&1)}, 16, v{10+i}")
            e(f"s_waitcnt vmcnt({n-1-c0-i})")
            for k in range(4):
                for z in range(2):
                    d = ACC + 2*k + z
                    c = "0" if c0 + i == 0 else f"v{d}"
                    e(f"v_dot2_f32_bf16 v{d}, v{32+4*(c0+i)+k}, v{10+i if z == 0 else 28+(i&1)}, {c}")
        nop(2)
ACC = 104

L.append(f"; @launch grid=(256,1,1) block=(768,1,1) lds={LDS_BYTES}")
L.append('.amdgcn_target "amdgcn-amd-amdhsa--gfx950"')
L.append(".text"); L.append(f".globl {NAME}_kernel"); L.append(".p2align 8")
L.append(f".type {NAME}_kernel,@function"); lab(f"{NAME}_kernel")
e("s_cmp_ge_u32 s2, 256"); e("s_cbranch_scc1 L_end")
e("s_load_dwordx16 s[36:51], s[0:1], 0"); e("s_load_dwordx8 s[52:59], s[0:1], 64"); e("s_load_dwordx2 s[60:61], s[0:1], 96")
e("v_and_b32 v1, 63, v0"); e("v_lshrrev_b32 v2, 6, v0"); nop(1); e("v_readfirstlane_b32 s3, v2")
e("s_lshr_b32 s4, s2, 4"); e("s_and_b32 s5, s2, 15")
e("s_mov_b32 s24, 0x3fb8aa3b"); e("s_mov_b32 s25, 0xffff0000")
e("s_waitcnt lgkmcnt(0)")
srd(88, 60, 1 << 30)
stamp()
if PROF: e("v_mov_b32 v112, v160")
ns0 = nstamp[0]
e("s_cmp_ge_u32 s3, 4"); e("s_cbranch_scc1 L_kv")
e("s_cmp_eq_u32 s3, 2"); e("s_cbranch_scc1 L_sync")
e("s_cmp_lg_u32 s3, 0"); e("s_cbranch_scc1 L_h")

srd(72, 42, 576*4096*2)
e("v_lshlrev_b32 v3, 4, v1"); e("global_load_dwordx4 v[4:7], v3, s[36:37]")
e("v_lshlrev_b32 v9, 1, v1"); e("global_load_ushort v8, v9, s[36:37] offset:1024")
e("v_lshrrev_b32 v19, 3, v1"); e("v_and_b32 v2, 7, v1")
e("v_lshlrev_b32 v116, 13, v19"); e("v_lshl_add_u32 v116, v2, 4, v116")
e("s_and_b32 s8, s2, 3"); e("s_mul_i32 s8, s8, 144")
e("s_lshl_b32 s9, s8, 13"); e("s_lshr_b32 s10, s2, 2"); e("s_lshl_b32 s10, s10, 7"); e("s_add_u32 s9, s9, s10")
for i in range(18):
    e(f"buffer_load_dwordx4 v[{32+4*i}:{35+4*i}], v116, s[72:75], s9 offen{NT}")
    if i < 17: e("s_add_u32 s9, s9, 65536")
e("s_barrier")
e("s_waitcnt vmcnt(18)")
stamp()
unpack9(4, 8)
layernorm(4, 8)
e(f"ds_write_b128 v3, v[4:7] offset:{XN_T}"); e(f"ds_write_b16 v9, v8 offset:{XN_T+1024}")
e("s_lshl_b32 s9, s8, 1"); e("v_lshl_add_u32 v2, v19, 1, s9")
e("s_waitcnt lgkmcnt(0)")
get_nonce(30, 114)
tile_products(XN_T, 16, 18)
stamp()
nop(2)
for k in range(4): e(f"v_permlane32_swap_b32 v{104+k}, v{108+k}")
nop(0)
for k in range(4): e(f"v_add_f32 v{104+k}, v{104+k}, v{108+k}")
nop(1)
for k in range(2): e(f"v_permlane16_swap_b32 v{104+k}, v{106+k}")
nop(0)
for k in range(2): e(f"v_add_f32 v{104+k}, v{104+k}, v{106+k}")
nop(1)
for k in range(2): dpp("v_add_f32", 104+k, "row_ror:8")
gran(12, 104, 105)
e("v_and_b32 v2, 7, v1"); e("v_lshlrev_b32 v2, 6, v2"); e("v_lshrrev_b32 v10, 5, v1"); e("v_lshl_add_u32 v2, v10, 5, v2")
e("v_bfe_u32 v10, v1, 4, 1"); e("v_lshl_add_u32 v2, v10, 4, v2")
e("s_lshl_b32 s9, s2, 13")
e("v_and_b32 v10, 8, v1"); e("v_cmp_eq_u32 vcc, 0, v10"); e("s_and_saveexec_b64 s[20:21], vcc")
e("buffer_store_dwordx4 v[12:15], v2, s[88:91], s9 offen sc1")
if BOARD:
    e("s_lshl_b32 s9, s4, 17"); e("s_lshl_b32 s10, s5, 4"); e("v_mov_b32 v2, s10")
    e("v_cmp_eq_u32 vcc, 0, v1"); e("s_and_b64 exec, exec, vcc")
    e("buffer_store_dwordx4 v[12:15], v2, s[88:91], s9 offen offset:4032 sc1".replace("4032", "3840"))
e("s_mov_b64 exec, s[20:21]")
stamp()
if BOARD:
    e("v_and_b32 v2, 15, v1"); e("v_lshlrev_b32 v2, 4, v2")
    poll(["buffer_load_dwordx4 v[32:35], v2, s[88:91], s9 offen offset:3840 sc1"], [32], 20, sleep=BSLEEP)
e("s_lshl_b32 s9, s4, 17"); e("v_and_b32 v3, 31, v1"); e("v_lshlrev_b32 v3, 4, v3"); e("v_lshrrev_b32 v10, 5, v1"); e("v_lshl_add_u32 v3, v10, 15, v3")
loads = []
for i2 in range(2):
    for rb in range(4):
        n = 4*i2 + rb
        loads.append(f"s_add_u32 s10, s9, {8192*(8*i2+rb)}")
        loads.append(f"buffer_load_dwordx4 v[{32+4*n}:{35+4*n}], v3, s[88:91], s10 offen sc1")
poll(loads, [32+4*x for x in range(8)], 20)
stamp()
for i2 in range(2):
    b0 = 32 + 16*i2
    for k in (1, 2): e(f"v_add_f32 v{b0+k}, v{b0+k}, v{b0+4+k}"); e(f"v_add_f32 v{b0+8+k}, v{b0+8+k}, v{b0+12+k}")
for i2 in range(2):
    b0 = 32 + 16*i2
    for k in (1, 2): e(f"v_add_f32 v{b0+k}, v{b0+k}, v{b0+8+k}")
e("v_cvt_pk_bf16_f32 v32, v33, v34"); e("v_cvt_pk_bf16_f32 v33, v49, v50")
e("v_lshlrev_b32 v4, 2, v1")
e(f"ds_write_b32 v4, v32 offset:{Q_T}"); e(f"ds_write_b32 v4, v33 offset:{Q_T+256}")
e("s_waitcnt lgkmcnt(0)")
set_flag(FQ, 10, 11)
stamp()
e("v_lshrrev_b32 v4, 4, v1"); e("v_lshlrev_b32 v4, 14, v4")
e("v_and_b32 v5, 15, v1"); e("v_lshl_add_u32 v5, v5, 4, v4")
e("s_lshl_b32 s9, s4, 16"); e(f"s_add_u32 s9, s9, {OB2}")
e("s_lshr_b32 s11, s5, 2"); e("s_lshl_b32 s10, s11, 8"); e("s_add_u32 s10, s10, s9")
e("s_lshr_b32 s11, s5, 3"); e("s_lshl_b32 s11, s11, 4"); e("s_add_u32 s11, s11, s9")
spin_lds(FO, 10, 11, sleep=2)
loads = []
for i in range(4):
    loads.append(f"s_add_u32 s13, s10, {4096*i}"); loads.append(f"s_add_u32 s15, s11, {4096*i}")
    loads.append(f"buffer_load_dwordx4 v[{32+12*i}:{35+12*i}], v5, s[88:91], s13 offen sc1")
    loads.append(f"buffer_load_dwordx4 v[{36+12*i}:{39+12*i}], v5, s[88:91], s13 offen offset:1024 sc1")
    loads.append(f"buffer_load_dwordx4 v[{40+12*i}:{43+12*i}], v4, s[88:91], s15 offen offset:2048 sc1")
poll(loads, [32+4*x for x in range(12)], 20, sleep=X2SLEEP)
stamp()
e("v_max3_f32 v84, v41, v53, v65"); e("v_max_f32 v84, v84, v77")
allreduce("v_max_f32", [84], [85], rors=())
for i in range(4): e(f"v_sub_f32 v{41+12*i}, v{41+12*i}, v84")
for i in range(4): e(f"v_mul_f32 v{41+12*i}, s24, v{41+12*i}")
for i in range(4): e(f"v_exp_f32 v{41+12*i}, v{41+12*i}")
nop(0)
for n, k in enumerate((33, 34, 37, 38, 42)): e(f"v_mul_f32 v{86+n}, v41, v{k}")
for i in range(1, 4):
    for n, k in enumerate((33, 34, 37, 38, 42)): e(f"v_fmac_f32 v{86+n}, v{41+12*i}, v{k+12*i}")
allreduce("v_add_f32", [86, 87, 88, 89, 90], [91, 92, 93, 94, 95], rors=())
e("v_rcp_f32 v90, v90"); nop(0)
for k in range(4): e(f"v_mul_f32 v{86+k}, v90, v{86+k}")
e("v_cvt_pk_bf16_f32 v86, v86, v87"); e("v_cvt_pk_bf16_f32 v87, v88, v89")
e("v_cmp_gt_u32 vcc, 16, v1"); nop(1); e("v_cndmask_b32 v86, 0, v86, vcc"); e("v_cndmask_b32 v87, 0, v87, vcc")
e("v_lshlrev_b32 v4, 3, v1")
e("v_cmp_gt_u32 vcc, 24, v1"); e("s_and_saveexec_b64 s[20:21], vcc")
e(f"ds_write_b64 v4, v[86:87] offset:{OF_T}")
e("s_mov_b64 exec, s[20:21]")
e("s_waitcnt lgkmcnt(0)")
e("s_barrier")
stamp()
stamp_store()
e("s_endpgm")

lab("L_h")
nstamp[0] = ns0
e("s_cmp_eq_u32 s3, 1"); e("s_cbranch_scc1 L_h1")
e("s_barrier")
e("s_endpgm")
lab("L_h1")
srd(80, 48, 576*4608*2)
e("v_lshlrev_b32 v3, 4, v1"); e("global_load_dwordx4 v[4:7], v3, s[36:37]")
e("v_lshlrev_b32 v9, 1, v1"); e("global_load_ushort v8, v9, s[36:37] offset:1024")
e("v_lshrrev_b32 v140, 3, v1"); e("v_and_b32 v141, 7, v1")
e("s_movk_i32 s12, 9216"); e("v_mul_lo_u32 v142, v140, s12"); e("v_lshl_add_u32 v142, v141, 4, v142")
e("s_lshr_b32 s7, s2, 2"); e("s_and_b32 s8, s2, 3"); e("s_mov_b32 s19, 1")
e("s_cmp_lg_u32 s8, 3"); e("s_cbranch_scc1 L_htile")
e("s_mul_i32 s9, s7, 43"); e("s_lshr_b32 s9, s9, 7"); e("s_mul_i32 s10, s9, 3"); e("s_sub_u32 s8, s7, s10")
e("s_cmp_lt_u32 s7, 24"); e("s_cselect_b32 s19, 1, 0"); e("s_add_u32 s7, s9, 64")
lab("L_htile")
e("s_mul_i32 s8, s8, 192")
e("s_mul_i32 s18, s8, 9216"); e("s_lshl_b32 s10, s7, 7"); e("s_add_u32 s18, s18, s10")
e("s_cmp_eq_u32 s19, 0"); e(f"s_cselect_b32 s18, {INV}, s18"); e("s_cselect_b32 s8, 0, s8")
for i in range(24):
    e(f"buffer_load_dwordx4 v[{32+4*i}:{35+4*i}], v142, s[80:83], s18 offen{NT}")
    if i < 23: e(f"s_add_u32 s18, s18, {8*9216}")
e("s_barrier")
e("s_waitcnt vmcnt(24)")
stamp()
LNBASE[0] = 144
unpack9(4, 8); layernorm(4, 8); unpack9(4, 8); layernorm(4, 8)
LNBASE[0] = 104
e(f"ds_write_b128 v3, v[4:7] offset:{Y_T}"); e(f"ds_write_b16 v9, v8 offset:{Y_T+1024}")
e("s_lshl_b32 s9, s8, 1"); e("v_lshl_add_u32 v2, v140, 1, s9")
e("s_waitcnt lgkmcnt(0)")
get_nonce(30, 144)
ACC = 128
tile_products(Y_T, 16, 24)
stamp()
for k in range(4): e(f"v_permlane32_swap_b32 v{ACC+k}, v{ACC+4+k}")
nop(0)
for k in range(4): e(f"v_add_f32 v{ACC+k}, v{ACC+k}, v{ACC+4+k}")
nop(1)
for k in range(2): e(f"v_permlane16_swap_b32 v{ACC+k}, v{ACC+2+k}")
nop(0)
for k in range(2): e(f"v_add_f32 v{ACC+k}, v{ACC+k}, v{ACC+2+k}")
nop(1)
for k in range(2): dpp("v_add_f32", ACC+k, "row_ror:8")
gran(12, ACC, ACC+1)
ACC = 104
e("v_lshlrev_b32 v2, 6, v141"); e("v_lshrrev_b32 v10, 5, v1"); e("v_lshl_add_u32 v2, v10, 5, v2")
e("v_bfe_u32 v10, v1, 4, 1"); e("v_lshl_add_u32 v2, v10, 4, v2")
e("s_lshl_b32 s9, s2, 13")
e("s_cmp_eq_u32 s19, 0"); e("s_cbranch_scc1 L_hnopub")
e("v_and_b32 v10, 8, v1"); e("v_cmp_eq_u32 vcc, 0, v10"); e("s_and_saveexec_b64 s[20:21], vcc")
e("buffer_store_dwordx4 v[12:15], v2, s[88:91], s9 offen offset:1024 sc1")
e("s_mov_b64 exec, s[20:21]")
lab("L_hnopub")
e("v_min_u32 v7, 35, v1")
e("s_lshr_b32 s8, s2, 2"); e("s_mul_i32 s9, s8, 144"); e("v_lshl_add_u32 v6, v7, 2, s9")
e("global_load_dword v30, v6, s[50:51]")
stamp()
e("s_mul_i32 s9, s8, 36"); e("v_add_u32 v7, s9, v7"); e("v_lshrrev_b32 v6, 5, v7"); e("v_and_b32 v7, 31, v7"); e("v_lshlrev_b32 v7, 4, v7")
e("v_subrev_u32 v5, 64, v6"); e("v_mul_u32_u24 v5, 12, v5"); e("v_add_u32 v5, 3, v5")
e("v_lshlrev_b32 v4, 2, v6")
e("v_cmp_gt_u32 vcc, 64, v6"); e("v_mov_b32 v2, 4"); nop(0); e("v_cndmask_b32 v4, v5, v4, vcc"); e("v_cndmask_b32 v2, v2, 1, vcc")
spin_lds(FC2, 10, 11, sleep=4)
for r in range(3):
    e(f"v_lshrrev_b32 v5, 4, v4"); e("v_lshlrev_b32 v5, 3, v5")
    e(f"ds_read_b64 v[{24+2*r}:{25+2*r}], v5 offset:{NT_T}")
    e(f"v_lshl_add_u32 v{48+r}, v4, 13, v7")
    if r < 2: e("v_add_u32 v4, v4, v2")
e("s_waitcnt lgkmcnt(0)")
poll([f"buffer_load_dwordx4 v[{32+4*r}:{35+4*r}], v{48+r}, s[88:91], 0 offen offset:1024 sc1" for r in range(3)],
     [32, 36, 40], 20, tags=[(f"v{24+2*r}", f"v{25+2*r}") for r in range(3)], sleep=2)
stamp()
for k in (1, 2): e(f"v_add_f32 v{32+k}, v{32+k}, v{36+k}"); e(f"v_add_f32 v{32+k}, v{32+k}, v{40+k}")
e("v_cvt_pk_bf16_f32 v35, v33, v34"); e("v_lshlrev_b32 v33, 16, v35"); e("v_and_b32 v34, s25, v35")
e("v_lshlrev_b32 v36, 16, v30"); e("v_and_b32 v37, s25, v30")
e("v_add_f32 v33, v33, v36"); e("v_add_f32 v34, v34, v37")
e("v_cvt_pk_bf16_f32 v35, v33, v34"); e("v_lshlrev_b32 v33, 16, v35"); e("v_and_b32 v34, s25, v35")
for r in (33, 34):
    t = r + 7
    u = r + 9
    e(f"v_mul_f32 v{t}, v{r}, v{r}"); e(f"v_mul_f32 v{t}, v{t}, v{r}"); e(f"v_mov_b32 v{u}, v{r}"); e(f"v_fmac_f32 v{u}, 0x3d372713, v{t}")
    e(f"v_mul_f32 v{u}, 0x40135761, v{u}"); e(f"v_exp_f32 v{u}, v{u}"); nop(0); e(f"v_add_f32 v{u}, 1.0, v{u}"); e(f"v_rcp_f32 v{u}, v{u}"); nop(0)
    e(f"v_fma_f32 v{u}, -2.0, v{u}, 1.0")
    e(f"v_add_f32 v{u}, 1.0, v{u}"); e(f"v_mul_f32 v{t}, 0.5, v{r}"); e(f"v_mul_f32 v{u}, v{t}, v{u}")
e("v_cvt_pk_bf16_f32 v35, v42, v43")
e("v_cmp_gt_u32 vcc, 36, v1"); nop(1); e("v_cndmask_b32 v35, 0, v35, vcc")
e("v_lshlrev_b32 v4, 2, v1")
e("v_cmp_gt_u32 vcc, 48, v1"); e("s_and_saveexec_b64 s[20:21], vcc")
e(f"ds_write_b32 v4, v35 offset:{H_T}")
e("s_mov_b64 exec, s[20:21]")
e("s_waitcnt lgkmcnt(0)")
set_flag(FH, 10, 11)
stamp()
stamp_store()
e("s_endpgm")

lab("L_sync")
nstamp[0] = ns0
e("s_memrealtime s[16:17]")
e("s_and_b32 s9, s4, 3"); e("s_lshl_b32 s9, s9, 6"); e("s_lshr_b32 s10, s4, 2"); e("s_lshl_b32 s10, s10, 3"); e("s_add_u32 s9, s9, s10")
e("v_mov_b32 v2, s9"); e("v_mov_b32 v6, 0"); e("v_mov_b32 v7, 0")
for k in range(4): e(f"v_mov_b32 v{8+k}, 0")
e(f"v_mov_b32 v12, {FLG}")
e("s_waitcnt lgkmcnt(0)")
e("s_or_b32 s16, s16, 1")
e("v_mov_b32 v4, s16"); e("v_mov_b32 v5, s17")
e("v_cmp_eq_u32 vcc, 0, v1"); e("s_and_saveexec_b64 s[20:21], vcc")
e("global_atomic_cmpswap_x2 v[14:15], v2, v[4:7], s[58:59] sc0")
e("s_mov_b64 exec, s[20:21]")
e("ds_write_b128 v12, v[8:11]"); e("ds_write_b128 v12, v[8:11] offset:16")
e("s_waitcnt lgkmcnt(0)")
e("s_barrier")
e("s_waitcnt vmcnt(0)")
nop(0)
e("v_readfirstlane_b32 s10, v14"); e("v_readfirstlane_b32 s11, v15")
e("s_cmp_eq_u32 s10, 0"); e("s_cselect_b32 s16, s16, s10"); e("s_cselect_b32 s17, s17, s11")
e("v_mov_b32 v4, s16"); e("v_mov_b32 v5, s17"); e(f"v_mov_b32 v12, {NONCE}")
e("ds_write_b64 v12, v[4:5]")
e("s_waitcnt lgkmcnt(0)")
stamp()
spin_lds(FQ, 12, 13, sleep=8)
e("v_and_b32 v2, 15, v1"); e("v_and_b32 v3, 3, v2"); e("v_lshlrev_b32 v3, 6, v3"); e("v_lshrrev_b32 v4, 2, v2"); e("v_lshl_add_u32 v3, v4, 3, v3")
l_, d_ = newlab("np"), newlab("npd")
e("s_mov_b32 s12, 0")
lab(l_)
e("global_load_dwordx2 v[4:5], v3, s[58:59] sc1")
e("s_add_u32 s12, s12, 1")
e("s_waitcnt vmcnt(0)")
e("v_cmp_eq_u32 vcc, 0, v4")
e(f"s_cmp_gt_u32 s12, {SPINMAX}"); e(f"s_cbranch_scc1 {d_}")
e(f"s_cbranch_vccz {d_}")
e("s_sleep 8"); e(f"s_branch {l_}")
lab(d_)
e("v_lshlrev_b32 v2, 3, v2")
e(f"ds_write_b64 v2, v[4:5] offset:{NT_T}")
e("s_waitcnt lgkmcnt(0)")
set_flag(FC2, 10, 11)
lab("L_w2end")
stamp()
stamp_store()
e("s_endpgm")

lab("L_kv")
nstamp[0] = ns0
SB[0] = 112
srd(64, 38, 268435456); srd(68, 40, 268435456); srd(76, 44, 4096*576*2); srd(84, 52, 4608*576*2)
e("s_sub_u32 s7, s3, 4")
e("s_lshl_b32 s9, s4, 24"); e("s_lshl_b32 s10, s5, 16"); e("s_add_u32 s9, s9, s10"); e(f"s_add_u32 s9, s9, {61440*256}")
e("s_lshl_b32 s10, s7, 13"); e("s_add_u32 s9, s9, s10"); e("s_add_u32 s10, s9, 4096")
e("v_and_b32 v10, 15, v1"); e("v_lshrrev_b32 v11, 4, v1")
e("v_lshlrev_b32 v3, 8, v10"); e("v_lshl_add_u32 v3, v11, 4, v3")
e("v_lshlrev_b32 v12, 11, v11"); e("v_lshl_add_u32 v12, v10, 4, v12")
KR, VR = 16, 48
e("s_barrier")
e("s_mov_b32 s14, 0"); e(f"v_mov_b32 v8, {FQ}")
for i in range(8):
    thr()
    e(f"buffer_load_dwordx4 v[{KR+4*i}:{KR+3+4*i}], v12, s[64:67], s9 offen offset:{i*256}{NT}")
for i in range(8):
    thr()
    e(f"buffer_load_dwordx4 v[{VR+4*i}:{VR+3+4*i}], v12, s[68:71], s9 offen offset:{i*256}{NT}")
WR = 128
def wloads():
    e("v_subrev_u32 v13, 256, v0")
    e("s_and_b32 s15, s2, 3"); e("s_cmp_eq_u32 s15, 3")
    e("s_cselect_b32 s62, 24, 16"); e("s_cselect_b32 s63, 21, 32"); e("s_movk_i32 s12, 4096"); e("s_cselect_b32 s12, 2731, s12")
    e("v_mul_lo_u32 v14, v13, s12"); e("v_lshrrev_b32 v14, 16, v14")
    e("v_mul_lo_u32 v15, v14, s62"); e("v_sub_u32 v15, v13, v15")
    e("v_mul_u32_u24 v4, 1152, v14"); e("v_lshl_add_u32 v4, v15, 4, v4")
    e(f"v_mov_b32 v7, {INV}"); e("v_cmp_gt_u32 vcc, s63, v14"); nop(1); e("v_cndmask_b32 v4, v7, v4, vcc")
    e("s_lshr_b32 s13, s2, 2"); e("s_lshl_b32 s15, s15, 8"); e("s_mul_i32 s11, s63, 1152")
    for mtx, rows, sr, base in ((0, 72, 84, 0), (1, 64, 76, 16)):
        e(f"s_mul_i32 s9, s13, {rows*1152}"); e("s_add_u32 s9, s9, s15"); e("v_mov_b32 v5, v14")
        for i in range(4):
            e(f"v_cmp_gt_u32 vcc, {rows}, v5"); nop(1); e("v_cndmask_b32 v6, v7, v4, vcc")
            thr(); e(f"buffer_load_dwordx4 v[{WR+base+4*i}:{WR+base+3+4*i}], v6, s[{sr}:{sr+3}], s9 offen{NT}")
            if i < 3: e("s_add_u32 s9, s9, s11"); e("v_add_u32 v5, s63, v5")
    e(f"s_min_u32 s13, s2, {NRED-1}"); e("s_lshl_b32 s13, s13, 4"); e("v_and_b32 v6, 1, v1"); e("v_lshlrev_b32 v6, 3, v6"); e(f"v_add_u32 v{WR+36}, s13, v6")
    e(f"global_load_dwordx2 v[{WR+32}:{WR+33}], v{WR+36}, s[36:37]"); e(f"global_load_dwordx2 v[{WR+34}:{WR+35}], v{WR+36}, s[54:55]")

if not WLATE: wloads()
e("v_cmp_eq_u32 s[28:29], 1, v11"); e("v_cmp_eq_u32 s[30:31], 2, v11"); e("v_cmp_eq_u32 s[32:33], 3, v11")
e("s_mov_b32 s27, 0x3db504f3"); e("s_mov_b32 s34, 0x05040100"); e("s_mov_b32 s35, 0x07060302")
spin_lds(FQ, 4, 5, sleep=2)
get_nonce(4, 6)
stamp()
e("v_lshlrev_b32 v4, 4, v10")
e(f"ds_read_b128 v[96:99], v4 offset:{Q_T}"); e(f"ds_read_b128 v[100:103], v4 offset:{Q_T+256}")
e("v_and_b32 v4, 1, v1"); e("v_cmp_eq_u32 s[18:19], 1, v4")
e("s_waitcnt lgkmcnt(0)")
SR = 80
for i in range(8):
    e(f"s_waitcnt vmcnt({(8 if WLATE else 18)+7-i})")
    if i == 0: stamp()
    for k in range(4):
        for h in range(2):
            d = SR + 2*i + h
            c = "0" if k == 0 else f"v{d}"
            e(f"v_dot2_f32_bf16 v{d}, v{KR+4*i+k}, v{96+4*h+k}, {c}")
nop(2)
allreduce("v_add_f32", [SR + x for x in range(16)], [], rows=False)
for i in range(8): e(f"v_cvt_pk_bf16_f32 v{16+i}, v{SR+2*i}, v{SR+2*i+1}")
for i in range(8):
    e(f"v_lshlrev_b32 v{SR+2*i}, 16, v{16+i}"); e(f"v_and_b32 v{SR+2*i+1}, s25, v{16+i}")
for x in range(16): e(f"v_mul_f32 v{SR+x}, s27, v{SR+x}")
for i in range(8): e(f"v_cvt_pk_bf16_f32 v{16+i}, v{SR+2*i}, v{SR+2*i+1}")
for i in range(8):
    e(f"v_lshlrev_b32 v{SR+2*i}, 16, v{16+i}"); e(f"v_and_b32 v{SR+2*i+1}, s25, v{16+i}")
for h in range(2): e(f"v_max3_f32 v{24+h}, v{SR+h}, v{SR+2+h}, v{SR+4+h}")
for h in range(2): e(f"v_max3_f32 v{26+h}, v{SR+6+h}, v{SR+8+h}, v{SR+10+h}")
for h in range(2): e(f"v_max3_f32 v{24+h}, v{24+h}, v{SR+12+h}, v{SR+14+h}")
for h in range(2): e(f"v_max_f32 v{24+h}, v{24+h}, v{26+h}")
allreduce("v_max_f32", [24, 25], [26, 27], rors=())
for x in range(16): e(f"v_sub_f32 v{SR+x}, v{SR+x}, v{24+(x&1)}")
for x in range(16): e(f"v_mul_f32 v{SR+x}, s24, v{SR+x}")
for x in range(16): e(f"v_exp_f32 v{SR+x}, v{SR+x}")
nop(0)
for h in range(2): e(f"v_add_f32 v{28+h}, v{SR+h}, v{SR+2+h}"); e(f"v_add_f32 v{30+h}, v{SR+4+h}, v{SR+6+h}")
for h in range(2): e(f"v_add_f32 v{32+h}, v{SR+8+h}, v{SR+10+h}"); e(f"v_add_f32 v{34+h}, v{SR+12+h}, v{SR+14+h}")
for h in range(2): e(f"v_add_f32 v{28+h}, v{28+h}, v{30+h}"); e(f"v_add_f32 v{32+h}, v{32+h}, v{34+h}")
for h in range(2): e(f"v_add_f32 v{28+h}, v{28+h}, v{32+h}")
for t in range(4):
    e(f"v_cvt_pk_bf16_f32 v{16+t}, v{SR+4*t}, v{SR+4*t+2}"); e(f"v_cvt_pk_bf16_f32 v{36+t}, v{SR+4*t+1}, v{SR+4*t+3}")
for t in range(4): e(f"v_cndmask_b32 v{20+t}, v{16+t}, v{36+t}, s[18:19]")
allreduce("v_add_f32", [28, 29], [26, 27], rors=())
for t in range(4):
    e(f"s_waitcnt vmcnt({(6 if WLATE else 16)-2*t})")
    if t == 3 and HLATE == "fv":
        e(f"v_mov_b32 v4, {FV}"); e("v_mov_b32 v7, 1"); e("ds_write_b32 v4, v7")
    if WLATE and not WFO and t == 3: wloads()
    for d2 in range(4):
        lo, hi = VR+4*(2*t)+d2, VR+4*(2*t+1)+d2
        e(f"v_perm_b32 v{TB(2*d2, t)}, v{hi}, v{lo}, s34")
        e(f"v_perm_b32 v{TB(2*d2+1, t)}, v{hi}, v{lo}, s35")
nop(1)
for j in range(8):
    e(f"v_mfma_f32_16x16x32_bf16 v[{VR+4*j}:{VR+3+4*j}], v[20:23], v[{TB(j,0)}:{TB(j,3)}], 0")
stamp()
nop(7); nop(1)
for k in range(4): e(f"v_cndmask_b32 v{32+k}, v{VR+4*k}, v{VR+4*(k+4)}, s[28:29]")
for k in range(4): e(f"v_cndmask_b32 v{32+k}, v{32+k}, v{VR+4*k+1}, s[30:31]")
for k in range(4): e(f"v_cndmask_b32 v{32+k}, v{32+k}, v{VR+4*(k+4)+1}, s[32:33]")
e("v_lshrrev_b32 v5, 1, v11"); e("v_lshlrev_b32 v5, 9, v5"); e("v_lshl_add_u32 v5, v10, 5, v5")
e("v_and_b32 v6, 1, v11"); e("v_lshl_add_u32 v5, v6, 4, v5")
e("s_lshl_b32 s11, s7, 10"); e("v_add_u32 v5, s11, v5")
e(f"ds_write_b128 v5, v[32:35] offset:{OW}")
e("v_mov_b32 v36, v24"); e("v_mov_b32 v37, v28"); e("v_mov_b32 v38, v25"); e("v_mov_b32 v39, v29")
e("s_lshl_b32 s11, s7, 4"); e("v_mov_b32 v6, s11")
e(f"ds_write_b128 v6, v[36:39] offset:{ML_T}")
e("v_mov_b32 v7, 1"); e(f"v_mov_b32 v6, {CNT}")
e("s_waitcnt lgkmcnt(0)")
e("v_cmp_eq_u32 vcc, 0, v1"); e("s_and_saveexec_b64 s[20:21], vcc")
e("ds_add_rtn_u32 v7, v6, v7")
e("s_waitcnt lgkmcnt(0)")
e("s_mov_b64 exec, s[20:21]")
nop(0)
e("v_readfirstlane_b32 s11, v7")
e("s_cmp_lg_u32 s11, 7"); e("s_cbranch_scc1 L_kv_done")
e("v_mov_b32 v6, 0")
for w in range(8): e(f"ds_read_b128 v[{16+4*w}:{19+4*w}], v6 offset:{ML_T+16*w}")
e("v_lshlrev_b32 v5, 4, v1")
for w in range(8): e(f"ds_read_b128 v[{48+4*w}:{51+4*w}], v5 offset:{OW+1024*w}")
e("v_cmp_gt_u32 vcc, 32, v1")
e("s_waitcnt lgkmcnt(8)")
nop(0)
for w in range(8):
    e(f"v_cndmask_b32 v{80+w}, v{18+4*w}, v{16+4*w}, vcc")
    e(f"v_cndmask_b32 v{88+w}, v{19+4*w}, v{17+4*w}, vcc")
e("v_max3_f32 v8, v80, v81, v82"); e("v_max3_f32 v9, v83, v84, v85"); e("v_max3_f32 v8, v8, v86, v87"); e("v_max_f32 v8, v8, v9")
for w in range(8): e(f"v_sub_f32 v{80+w}, v{80+w}, v8")
for w in range(8): e(f"v_mul_f32 v{80+w}, s24, v{80+w}")
for w in range(8): e(f"v_exp_f32 v{80+w}, v{80+w}")
nop(0)
e("v_mul_f32 v9, v80, v88")
for w in range(1, 8): e(f"v_fmac_f32 v9, v{80+w}, v{88+w}")
e("s_waitcnt lgkmcnt(0)")
for k in range(4): e(f"v_mul_f32 v{96+k}, v80, v{48+k}")
for w in range(1, 8):
    for k in range(4): e(f"v_fmac_f32 v{96+k}, v{80+w}, v{48+4*w+k}")
gran(100, 96, 97); gran(104, 98, 99); gran(108, 8, 9)
e("s_lshl_b32 s11, s2, 12"); e(f"s_add_u32 s11, s11, {OB2}")
e("buffer_store_dwordx4 v[100:103], v5, s[88:91], s11 offen sc1")
e("buffer_store_dwordx4 v[104:107], v5, s[88:91], s11 offen offset:1024 sc1")
e("v_lshrrev_b32 v6, 5, v1"); e("v_lshlrev_b32 v6, 4, v6")
e("v_and_b32 v7, 31, v1"); e("v_cmp_eq_u32 vcc, 0, v7"); e("s_and_saveexec_b64 s[20:21], vcc")
e("buffer_store_dwordx4 v[108:111], v6, s[88:91], s11 offen offset:2048 sc1")
e("s_mov_b64 exec, s[20:21]")
set_flag(FO, 6, 7)
lab("L_kv_done")
stamp()
if WFO:
    spin_lds(FO, 4, 5, sleep=1)
    wloads()
e("v_mov_b32 v26, v14")
for i in range(4):
    e(f"v_min_u32 v{40+i}, 95, v26"); e(f"v_lshlrev_b32 v{40+i}, 1, v{40+i}")
    if i < 3: e("v_add_u32 v26, s63, v26")
e("s_lshl_b32 s9, s62, 6"); e("s_add_u32 s9, s9, 32"); e("v_mul_lo_u32 v27, v14, s9"); e("v_lshl_add_u32 v27, v15, 5, v27")
e("s_lshl_b32 s10, s62, 5"); e("v_add_u32 v28, s10, v27")
e("v_cmp_gt_u32 s[94:95], s63, v14")
spin_lds(FH, 4, 5)
for i in range(4): e(f"ds_read_u16 v{16+i}, v{40+i} offset:{H_T}")
e("s_waitcnt lgkmcnt(0)")
for i in range(4): e(f"v_lshlrev_b32 v{32+i}, 16, v{16+i}")
e("s_waitcnt vmcnt(6)")
for i in range(4):
    for k in range(4):
        for z in range(2):
            d = 48 + 2*k + z
            c = "0" if i == 0 else f"v{d}"
            e(f"v_dot2_f32_bf16 v{d}, v{WR+4*i+k}, v{(16 if z == 0 else 32)+i}, {c}")
nop(2)
e("s_and_saveexec_b64 s[22:23], s[94:95]")
e(f"ds_write_b128 v28, v[48:51] offset:{AB}"); e(f"ds_write_b128 v28, v[52:55] offset:{AB+16}")
e("s_mov_b64 exec, s[22:23]")
e("s_waitcnt vmcnt(0)")
e("s_barrier")
stamp()
for i in range(4): e(f"ds_read_u16 v{20+i}, v{40+i} offset:{OF_T}")
e("s_waitcnt lgkmcnt(0)")
for i in range(4): e(f"v_lshlrev_b32 v{36+i}, 16, v{20+i}")
for i in range(4):
    for k in range(4):
        for z in range(2):
            d = 56 + 2*k + z
            c = "0" if i == 0 else f"v{d}"
            e(f"v_dot2_f32_bf16 v{d}, v{WR+16+4*i+k}, v{(20 if z == 0 else 36)+i}, {c}")
nop(2)
e("s_and_saveexec_b64 s[22:23], s[94:95]")
e(f"ds_write_b128 v27, v[56:59] offset:{AB}"); e(f"ds_write_b128 v27, v[60:63] offset:{AB+16}")
e("s_mov_b64 exec, s[22:23]")
e("s_waitcnt lgkmcnt(0)")
e("s_barrier")
def tail_reduce(CW, NS, TPG, SPT):
    RS = CW*64 + 32
    sh = {4: 2, 2: 1}[TPG]
    NG = CW*8
    e(f"v_cmp_gt_u32 vcc, {NG*TPG}, v13"); e("s_and_saveexec_b64 s[20:21], vcc")
    e("s_cbranch_execz L_p3skip")
    e(f"v_lshrrev_b32 v4, {sh}, v13")
    e("v_lshrrev_b32 v5, 3, v4"); e("v_lshlrev_b32 v5, 5, v5")
    e("v_and_b32 v6, 1, v4"); e("v_lshl_add_u32 v5, v6, 4, v5")
    e("v_bfe_u32 v6, v4, 1, 1"); e("v_lshl_add_u32 v5, v6, 3, v5")
    e("v_bfe_u32 v6, v4, 2, 1"); e(f"v_mul_u32_u24 v6, {CW*32}, v6"); e("v_add_u32 v5, v5, v6")
    e(f"v_and_b32 v6, {TPG-1}, v13"); e(f"v_mul_u32_u24 v7, {SPT*RS}, v6"); e("v_add_u32 v8, v5, v7")
    full = SPT if TPG*SPT == NS else SPT - 1
    for w in range(full): e(f"ds_read_b64 v[{32+2*w}:{33+2*w}], v8 offset:{AB+RS*w}")
    if full != SPT:
        e(f"v_mov_b32 v{32+2*full}, 0"); e(f"v_mov_b32 v{33+2*full}, 0")
        e("v_cmp_eq_u32 vcc, 0, v6"); e("s_and_saveexec_b64 s[22:23], vcc")
        e(f"ds_read_b64 v[{32+2*full}:{33+2*full}], v8 offset:{AB+RS*full}")
        e("s_mov_b64 exec, s[22:23]")
    e("s_waitcnt lgkmcnt(0)")
    n = SPT
    while n > 1:
        h = n // 2
        for w in range(h):
            for k in range(2): e(f"v_add_f32 v{32+2*w+k}, v{32+2*w+k}, v{32+2*(n-1-w)+k}")
        n = n - h
    nop(1)
    for k in range(2): dpp("v_add_f32", 32+k, "quad_perm:[1,0,3,2]")
    if TPG == 4:
        nop(1)
        for k in range(2): dpp("v_add_f32", 32+k, "quad_perm:[2,3,0,1]")
    gran(64, 32, 33)
    e("s_lshl_b32 s9, s2, 12"); e(f"s_add_u32 s9, s9, {OB3}"); e("v_lshlrev_b32 v3, 4, v4")
    e("v_cmp_eq_u32 vcc, 0, v6"); e("s_and_b64 exec, exec, vcc")
    e("buffer_store_dwordx4 v[64:67], v3, s[88:91], s9 offen sc1")
e("s_cmp_eq_u32 s62, 24"); e("s_cbranch_scc1 L_wide")
tail_reduce(16, 32, 4, 8)
e("s_branch L_p3skip")
lab("L_wide")
tail_reduce(24, 21, 2, 11)
lab("L_p3skip")
e("s_mov_b64 exec, s[20:21]")
lab("L_p3done")
stamp()
e(f"s_cmp_ge_u32 s2, {NRED}"); e("s_cbranch_scc1 L_fdone")
spin_lds(FC2, 4, 5)
e("s_lshr_b32 s10, s2, 4"); e("s_min_u32 s10, s10, 3"); e("s_lshl_b32 s11, s10, 4"); e("s_sub_u32 s11, s2, s11")
e("v_lshrrev_b32 v4, 3, v13"); e("v_lshrrev_b32 v6, 2, v4"); e("v_lshlrev_b32 v6, 3, v6")
e(f"ds_read_b64 v[72:73], v6 offset:{NT_T}")
e("v_lshlrev_b32 v4, 14, v4"); e("v_and_b32 v5, 7, v13"); e("v_lshl_add_u32 v4, v5, 4, v4")
e("s_lshl_b32 s9, s10, 12"); e("s_lshl_b32 s11, s11, 7"); e("s_add_u32 s9, s9, s11"); e(f"s_add_u32 s9, s9, {OB3}")
e("s_waitcnt lgkmcnt(0)")
poll(["buffer_load_dwordx4 v[48:51], v4, s[88:91], s9 offen sc1"], [48], 40, tags=[("v72", "v73")])
e("v_mov_b32 v32, v49"); e("v_mov_b32 v33, v50")
allreduce("v_add_f32", [32, 33], [64, 65], rors=(8,))
e("s_lshl_b32 s9, s7, 6"); e("v_lshl_add_u32 v5, v1, 3, s9")
e("v_cmp_gt_u32 vcc, 8, v1"); e("s_and_saveexec_b64 s[20:21], vcc")
e(f"ds_write_b64 v5, v[32:33] offset:{R3_T}")
e("s_mov_b64 exec, s[20:21]")
e("s_waitcnt lgkmcnt(0)")
e("s_barrier")
e("s_cmp_lg_u32 s7, 0"); e("s_cbranch_scc1 L_fdone")
e("v_and_b32 v5, 1, v1"); e("v_lshlrev_b32 v5, 3, v5")
for w in range(8):
    for q in range(4): e(f"ds_read_b64 v[{48+8*w+2*q}:{49+8*w+2*q}], v5 offset:{R3_T+64*w+16*q}")
for w in range(1, 8):
    e(f"s_waitcnt lgkmcnt({min(15, 28-4*w)})")
    for k in range(8): e(f"v_add_f32 v{48+k}, v{48+k}, v{48+8*w+k}")
for k in range(4): e(f"v_mov_b32 v{64+k}, v{52+k}")
def rne4(r):
    e(f"v_cvt_pk_bf16_f32 v80, v{r}, v{r+1}"); e(f"v_cvt_pk_bf16_f32 v81, v{r+2}, v{r+3}")
    e(f"v_lshlrev_b32 v{r}, 16, v80"); e(f"v_and_b32 v{r+1}, s25, v80"); e(f"v_lshlrev_b32 v{r+2}, 16, v81"); e(f"v_and_b32 v{r+3}, s25, v81")
rne4(48); rne4(64)
X, B2 = WR+32, WR+34
e(f"v_lshlrev_b32 v52, 16, v{X}"); e(f"v_and_b32 v53, s25, v{X}"); e(f"v_lshlrev_b32 v54, 16, v{X+1}"); e(f"v_and_b32 v55, s25, v{X+1}")
e(f"v_lshlrev_b32 v56, 16, v{B2}"); e(f"v_and_b32 v57, s25, v{B2}"); e(f"v_lshlrev_b32 v58, 16, v{B2+1}"); e(f"v_and_b32 v59, s25, v{B2+1}")
for k in range(4): e(f"v_add_f32 v{48+k}, v{52+k}, v{48+k}"); e(f"v_add_f32 v{64+k}, v{64+k}, v{56+k}")
rne4(48); rne4(64)
for k in range(4): e(f"v_add_f32 v{48+k}, v{48+k}, v{64+k}")
e("v_cvt_pk_bf16_f32 v80, v48, v49"); e("v_cvt_pk_bf16_f32 v81, v50, v51")
e("v_cmp_gt_u32 vcc, 2, v1"); e("s_and_saveexec_b64 s[20:21], vcc")
e(f"global_store_dwordx2 v{WR+36}, v[80:81], s[56:57]")
e("s_mov_b64 exec, s[20:21]")
lab("L_fdone")
stamp()
stamp_store()
lab("L_end")
e("s_endpgm")
L += ['.section .rodata,"a"', ".p2align 6", f".amdhsa_kernel {NAME}_kernel", "  .amdhsa_next_free_vgpr 168", "  .amdhsa_next_free_sgpr 102",
      "  .amdhsa_accum_offset 168", "  .amdhsa_group_segment_fixed_size 0", "  .amdhsa_kernarg_size 104", "  .amdhsa_user_sgpr_count 2",
      "  .amdhsa_user_sgpr_kernarg_segment_ptr 1", "  .amdhsa_system_sgpr_workgroup_id_x 1", ".end_amdhsa_kernel"]
open(out, "w").write("\n".join(L) + "\n")
```

```python
import sys
NAME = "parallel_sum__sliding_block_cached__mixer_channel_mlp__decode"
out = sys.argv[1]
opts = set(sys.argv[2:])
PROF = "prof" in opts
NT = " nt"
SPINMAX = 400000
def optint(p, d):
    for o in opts:
        if o.startswith(p) and o[len(p):].isdigit(): return int(o[len(p):])
    return d
THR = optint("thr", 0)
PTH = optint("pth", 0)
X2SLEEP = optint("x2s", 2)
WFO = "wfo" in opts
BOARD = "noboard" not in opts
BSLEEP = optint("bs", 2)
PF = "nopf" not in opts
EARLY = "noearly" not in opts
WLATE = "wlate" in opts or WFO
HLATE = "fv" if "hfv" in opts else ("fo" if "hfo" in opts else ("fq" if "hfq" in opts else ""))

L = []
def e(s): L.append("    " + s)
def lab(s): L.append(s + ":")
def nop(n): e(f"s_nop {n}")

OB1, OB2, OB3 = 0, 2 << 20, 4 << 20
INV = 0x40000000
NRED = 72
XN_T = 0
Y_T = 1216
Q_T = 2432
FLG = 3072
CNT, FQ, FC2, FO, NONCE, FV, FH = FLG, FLG+4, FLG+8, FLG+12, FLG+16, FLG+24, FLG+28
ML_T = 3136
NT_T = 3264
PW = 3456
R3_T = 4480
H_T = 4992
OF_T = 5184
HR = 47616
OW = 5632
AB = 13824
LDS_BYTES = 49664
def TB(j, t): return 80 + 4*j + t

nstamp = [0]
SB = [160]
def stamp():
    if not PROF: return
    k = nstamp[0]; nstamp[0] += 1
    assert k < 8
    e("s_memrealtime s[92:93]"); e("s_waitcnt lgkmcnt(0)"); e(f"v_mov_b32 v{SB[0]+k}, s92")
def stamp_store():
    if not PROF: return
    e("s_lshl_b32 s6, s2, 4"); e("s_add_u32 s6, s6, s3"); e("s_lshl_b32 s6, s6, 6"); e(f"s_add_u32 s6, s6, {16<<20}")
    e("v_mov_b32 v2, s6")
    e("v_cmp_eq_u32 vcc, 0, v1"); e("s_and_saveexec_b64 s[20:21], vcc")
    for q in range(2):
        e(f"buffer_store_dwordx4 v[{SB[0]+4*q}:{SB[0]+3+4*q}], v2, s[88:91], 0 offen offset:{16*q}")
    e("s_mov_b64 exec, s[20:21]")

def dpp(op, d, ctrl):
    e(f"{op}_dpp v{d}, v{d}, v{d} {ctrl} row_mask:0xf bank_mask:0xf")

def allreduce(op, regs, tmps, rors=(8, 4, 2, 1), rows=True):
    for r in rors:
        nop(1)
        for v in regs: dpp(op, v, f"row_ror:{r}")
    if rows:
        for sw in ("v_permlane16_swap_b32", "v_permlane32_swap_b32"):
            for v, t in zip(regs, tmps): e(f"v_mov_b32 v{t}, v{v}")
            nop(1)
            for v, t in zip(regs, tmps): e(f"{sw} v{v}, v{t}")
            nop(0)
            for v, t in zip(regs, tmps): e(f"{op} v{v}, v{v}, v{t}")

lbl_id = [0]
def newlab(p):
    lbl_id[0] += 1
    return f"L_{p}_{lbl_id[0]}"

def spin_lds(addr, va, vd, sleep=1):
    l, d = newlab("spin"), newlab("spind")
    e(f"v_mov_b32 v{va}, {addr}"); e("s_mov_b32 s12, 0")
    lab(l)
    e(f"ds_read_b32 v{vd}, v{va}")
    e("s_add_u32 s12, s12, 1")
    e("s_waitcnt lgkmcnt(0)")
    e(f"v_cmp_ne_u32 vcc, 0, v{vd}")
    e(f"s_cmp_gt_u32 s12, {SPINMAX*4}"); e(f"s_cbranch_scc1 {d}")
    e(f"s_cbranch_vccnz {d}")
    e(f"s_sleep {sleep}")
    e(f"s_branch {l}")
    lab(d)

def get_nonce(va, vd):
    l, d = newlab("gn"), newlab("gnd")
    e(f"v_mov_b32 v{va}, {NONCE}"); e("s_mov_b32 s12, 0")
    lab(l)
    e(f"ds_read_b64 v[{vd}:{vd+1}], v{va}")
    e("s_add_u32 s12, s12, 1")
    e("s_waitcnt lgkmcnt(0)")
    e(f"v_cmp_ne_u32 vcc, 0, v{vd}")
    e(f"s_cmp_gt_u32 s12, {SPINMAX*4}"); e(f"s_cbranch_scc1 {d}")
    e(f"s_cbranch_vccnz {d}")
    e("s_sleep 1")
    e(f"s_branch {l}")
    lab(d)
    e(f"v_readfirstlane_b32 s16, v{vd}"); e(f"v_readfirstlane_b32 s17, v{vd+1}")
    nop(1)

def set_flag(addr, va, vd):
    e(f"v_mov_b32 v{va}, {addr}"); e(f"v_mov_b32 v{vd}, 1"); e(f"ds_write_b32 v{va}, v{vd}"); e("s_waitcnt lgkmcnt(0)")

def gran(dst, a, b):
    e(f"v_mov_b32 v{dst}, s16"); e(f"v_mov_b32 v{dst+1}, v{a}"); e(f"v_mov_b32 v{dst+2}, v{b}"); e(f"v_mov_b32 v{dst+3}, s17")

def poll(loads, grans, t0, tags=None, sleep=0):
    l, d = newlab("poll"), newlab("polld")
    e("s_mov_b32 s12, 0")
    lab(l)
    for x in loads: e(x)
    e("s_add_u32 s12, s12, 1")
    e("s_waitcnt vmcnt(0)")
    for n, g in enumerate(grans):
        tl, th = ("s16", "s17") if tags is None else tags[n]
        e(f"v_xor_b32 v{t0+1}, {tl}, v{g}"); e(f"v_xor_b32 v{t0+2}, {th}, v{g+3}")
        if n == 0: e(f"v_or_b32 v{t0}, v{t0+1}, v{t0+2}")
        else: e(f"v_or3_b32 v{t0}, v{t0}, v{t0+1}, v{t0+2}")
    e(f"v_cmp_ne_u32 vcc, 0, v{t0}")
    e(f"s_cmp_gt_u32 s12, {SPINMAX}"); e(f"s_cbranch_scc1 {d}")
    e(f"s_cbranch_vccz {d}")
    if sleep: e(f"s_sleep {sleep}")
    e(f"s_branch {l}")
    lab(d)

nload = [0]
def thr():
    i = nload[0]; nload[0] += 1
    if i >= 16 and WLATE: return
    if PTH:
        if i >= PTH: e(f"s_waitcnt vmcnt({PTH-1})")
        return
    if not THR or i < THR: return
    l = newlab("thr")
    e("s_cmp_lg_u32 s14, 0"); e(f"s_cbranch_scc1 {l}")
    e("ds_read_b32 v9, v8")
    e("s_waitcnt lgkmcnt(0)")
    nop(0)
    e("v_readfirstlane_b32 s14, v9")
    e("s_cmp_lg_u32 s14, 0"); e(f"s_cbranch_scc1 {l}")
    e(f"s_waitcnt vmcnt({THR-1})")
    lab(l)

def srd(d, p, n):
    e(f"s_mov_b32 s{d}, s{p}"); e(f"s_and_b32 s{d+1}, s{p+1}, 0xffff"); e(f"s_mov_b32 s{d+2}, {n}"); e(f"s_mov_b32 s{d+3}, 0x20000")

def unpack9(p, p8):
    for k in range(4):
        e(f"v_lshlrev_b32 v{10+2*k}, 16, v{p+k}"); e(f"v_and_b32 v{11+2*k}, s25, v{p+k}")
    e(f"v_lshlrev_b32 v18, 16, v{p8}")
LNBASE = [104]
def layernorm(outp, out8):
    D = 20
    e(f"v_add_f32 v{LNBASE[0]+0}, v10, v11"); e(f"v_add_f32 v{LNBASE[0]+1}, v12, v13"); e(f"v_add_f32 v{LNBASE[0]+2}, v14, v15"); e(f"v_add_f32 v{LNBASE[0]+3}, v16, v17")
    e(f"v_add_f32 v{LNBASE[0]+0}, v{LNBASE[0]+0}, v{LNBASE[0]+1}"); e(f"v_add_f32 v{LNBASE[0]+2}, v{LNBASE[0]+2}, v{LNBASE[0]+3}"); e(f"v_add_f32 v{LNBASE[0]+0}, v{LNBASE[0]+0}, v18"); e(f"v_add_f32 v{LNBASE[0]+0}, v{LNBASE[0]+0}, v{LNBASE[0]+2}")
    allreduce(f"v_add_f32", [LNBASE[0]], [LNBASE[0]+1])
    e(f"v_mul_f32 v{LNBASE[0]+0}, 0x3ae38e39, v{LNBASE[0]+0}")
    for k in range(9): e(f"v_sub_f32 v{D+k}, v{10+k}, v{LNBASE[0]+0}")
    e(f"v_mul_f32 v{LNBASE[0]+2}, v{D}, v{D}"); e(f"v_mul_f32 v{LNBASE[0]+3}, v{D+1}, v{D+1}"); e(f"v_mul_f32 v{LNBASE[0]+4}, v{D+2}, v{D+2}")
    for k in range(3, 9): e(f"v_fmac_f32 v{LNBASE[0]+2+k%3}, v{D+k}, v{D+k}")
    e(f"v_add_f32 v{LNBASE[0]+2}, v{LNBASE[0]+2}, v{LNBASE[0]+3}"); e(f"v_add_f32 v{LNBASE[0]+2}, v{LNBASE[0]+2}, v{LNBASE[0]+4}")
    allreduce(f"v_add_f32", [LNBASE[0]+2], [LNBASE[0]+1])
    e(f"v_mul_f32 v{LNBASE[0]+2}, 0x3ae38e39, v{LNBASE[0]+2}")
    e(f"v_cvt_pk_bf16_f32 v{LNBASE[0]+1}, v{LNBASE[0]+0}, v{LNBASE[0]+2}")
    e(f"v_lshlrev_b32 v{LNBASE[0]+0}, 16, v{LNBASE[0]+1}"); e(f"v_and_b32 v{LNBASE[0]+2}, s25, v{LNBASE[0]+1}")
    e(f"v_add_f32 v{LNBASE[0]+2}, 0x3727c5ac, v{LNBASE[0]+2}")
    e(f"v_cvt_pk_bf16_f32 v{LNBASE[0]+2}, v{LNBASE[0]+2}, v{LNBASE[0]+2}"); e(f"v_and_b32 v{LNBASE[0]+2}, s25, v{LNBASE[0]+2}")
    e(f"v_sqrt_f32 v{LNBASE[0]+2}, v{LNBASE[0]+2}"); nop(0)
    e(f"v_cvt_pk_bf16_f32 v{LNBASE[0]+2}, v{LNBASE[0]+2}, v{LNBASE[0]+2}"); e(f"v_and_b32 v{LNBASE[0]+2}, s25, v{LNBASE[0]+2}")
    e(f"v_rcp_f32 v{LNBASE[0]+3}, v{LNBASE[0]+2}")
    for k in range(9): e(f"v_sub_f32 v{D+k}, v{10+k}, v{LNBASE[0]+0}")
    for k in range(4): e(f"v_cvt_pk_bf16_f32 v{LNBASE[0]+4+k}, v{D+2*k}, v{D+1+2*k}")
    e(f"v_cvt_pk_bf16_f32 v{LNBASE[0]+8}, v{D+8}, v{D+8}")
    for k in range(4):
        e(f"v_lshlrev_b32 v{D+2*k}, 16, v{LNBASE[0]+4+k}"); e(f"v_and_b32 v{D+1+2*k}, s25, v{LNBASE[0]+4+k}")
    e(f"v_lshlrev_b32 v{D+8}, 16, v{LNBASE[0]+8}")
    for k in range(9): e(f"v_mul_f32 v{10+k}, v{D+k}, v{LNBASE[0]+3}")
    for k in range(9): e(f"v_fma_f32 v{D+k}, -v{10+k}, v{LNBASE[0]+2}, v{D+k}")
    for k in range(9): e(f"v_fmac_f32 v{10+k}, v{D+k}, v{LNBASE[0]+3}")
    for k in range(4): e(f"v_cvt_pk_bf16_f32 v{outp+k}, v{10+2*k}, v{11+2*k}")
    e(f"v_cvt_pk_bf16_f32 v{out8}, v18, v18")

def tile_products(tbl, step, n):
    for c0 in range(0, n, 12):
        m = min(12, n - c0)
        for i in range(m): e(f"ds_read_u16 v{10+i}, v2 offset:{tbl+step*(c0+i)}")
        for i in range(m):
            e(f"s_waitcnt lgkmcnt({m-1-i})")
            e(f"v_lshlrev_b32 v{28+(i&1)}, 16, v{10+i}")
            e(f"s_waitcnt vmcnt({n-1-c0-i})")
            for k in range(4):
                for z in range(2):
                    d = ACC + 2*k + z
                    c = "0" if c0 + i == 0 else f"v{d}"
                    e(f"v_dot2_f32_bf16 v{d}, v{32+4*(c0+i)+k}, v{10+i if z == 0 else 28+(i&1)}, {c}")
        nop(2)
ACC = 104

L.append(f"; @launch grid=(256,1,1) block=(768,1,1) lds={LDS_BYTES}")
L.append('.amdgcn_target "amdgcn-amd-amdhsa--gfx950"')
L.append(".text"); L.append(f".globl {NAME}_kernel"); L.append(".p2align 8")
L.append(f".type {NAME}_kernel,@function"); lab(f"{NAME}_kernel")
e("s_cmp_ge_u32 s2, 256"); e("s_cbranch_scc1 L_end")
e("s_load_dwordx16 s[36:51], s[0:1], 0"); e("s_load_dwordx8 s[52:59], s[0:1], 64"); e("s_load_dwordx2 s[60:61], s[0:1], 96")
e("v_and_b32 v1, 63, v0"); e("v_lshrrev_b32 v2, 6, v0"); nop(1); e("v_readfirstlane_b32 s3, v2")
e("s_lshr_b32 s4, s2, 4"); e("s_and_b32 s5, s2, 15")
e("s_mov_b32 s24, 0x3fb8aa3b"); e("s_mov_b32 s25, 0xffff0000")
e("s_waitcnt lgkmcnt(0)")
srd(88, 60, 1 << 30)
stamp()
if PROF: e("v_mov_b32 v112, v160")
ns0 = nstamp[0]
e("s_cmp_lt_u32 s3, 4"); e("s_cbranch_scc1 L_roles")

lab("L_kv")
nstamp[0] = ns0
SB[0] = 112
srd(64, 38, 268435456)
e("s_sub_u32 s7, s3, 4")
e("s_lshl_b32 s9, s4, 24"); e("s_lshl_b32 s10, s5, 16"); e("s_add_u32 s9, s9, s10"); e(f"s_add_u32 s9, s9, {61440*256}")
e("s_lshl_b32 s10, s7, 13"); e("s_add_u32 s9, s9, s10"); e("s_add_u32 s10, s9, 4096")
e("v_and_b32 v10, 15, v1"); e("v_lshrrev_b32 v11, 4, v1")
e("v_lshlrev_b32 v3, 8, v10"); e("v_lshl_add_u32 v3, v11, 4, v3")
e("v_lshlrev_b32 v12, 11, v11"); e("v_lshl_add_u32 v12, v10, 4, v12")
KR, VR = 16, 48
e("s_mov_b32 s14, 0"); e(f"v_mov_b32 v8, {FQ}")
NE = (THR if THR else 3) if EARLY else 0
for i in range(8):
    if i == NE:
        srd(68, 40, 268435456); srd(76, 44, 4096*576*2); srd(84, 52, 4608*576*2)
        e("s_barrier")
    thr()
    e(f"buffer_load_dwordx4 v[{KR+4*i}:{KR+3+4*i}], v12, s[64:67], s9 offen offset:{i*256}{NT}")
for i in range(8):
    thr()
    e(f"buffer_load_dwordx4 v[{VR+4*i}:{VR+3+4*i}], v12, s[68:71], s9 offen offset:{i*256}{NT}")
WR = 128
def wloads():
    e("v_subrev_u32 v13, 256, v0")
    e("s_and_b32 s15, s2, 3"); e("s_cmp_eq_u32 s15, 3")
    e("s_cselect_b32 s62, 24, 16"); e("s_cselect_b32 s63, 21, 32"); e("s_movk_i32 s12, 4096"); e("s_cselect_b32 s12, 2731, s12")
    e("v_mul_lo_u32 v14, v13, s12"); e("v_lshrrev_b32 v14, 16, v14")
    e("v_mul_lo_u32 v15, v14, s62"); e("v_sub_u32 v15, v13, v15")
    e("v_mul_u32_u24 v4, 1152, v14"); e("v_lshl_add_u32 v4, v15, 4, v4")
    e(f"v_mov_b32 v7, {INV}"); e("v_cmp_gt_u32 vcc, s63, v14"); nop(1); e("v_cndmask_b32 v4, v7, v4, vcc")
    e("s_lshr_b32 s13, s2, 2"); e("s_lshl_b32 s15, s15, 8"); e("s_mul_i32 s11, s63, 1152")
    for mtx, rows, sr, base in ((0, 72, 84, 0), (1, 64, 76, 16)):
        e(f"s_mul_i32 s9, s13, {rows*1152}"); e("s_add_u32 s9, s9, s15"); e("v_mov_b32 v5, v14")
        for i in range(4):
            e(f"v_cmp_gt_u32 vcc, {rows}, v5"); nop(1); e("v_cndmask_b32 v6, v7, v4, vcc")
            thr(); e(f"buffer_load_dwordx4 v[{WR+base+4*i}:{WR+base+3+4*i}], v6, s[{sr}:{sr+3}], s9 offen{NT}")
            if i < 3: e("s_add_u32 s9, s9, s11"); e("v_add_u32 v5, s63, v5")
    e(f"s_min_u32 s13, s2, {NRED-1}"); e("s_lshl_b32 s13, s13, 4"); e("v_and_b32 v6, 1, v1"); e("v_lshlrev_b32 v6, 3, v6"); e(f"v_add_u32 v{WR+36}, s13, v6")
    e(f"global_load_dwordx2 v[{WR+32}:{WR+33}], v{WR+36}, s[36:37]"); e(f"global_load_dwordx2 v[{WR+34}:{WR+35}], v{WR+36}, s[54:55]")

if not WLATE: wloads()
e("v_cmp_eq_u32 s[28:29], 1, v11"); e("v_cmp_eq_u32 s[30:31], 2, v11"); e("v_cmp_eq_u32 s[32:33], 3, v11")
e("s_mov_b32 s27, 0x3db504f3"); e("s_mov_b32 s34, 0x05040100"); e("s_mov_b32 s35, 0x07060302")
spin_lds(FQ, 4, 5, sleep=2)
get_nonce(4, 6)
stamp()
e("v_lshlrev_b32 v4, 4, v10")
e(f"ds_read_b128 v[96:99], v4 offset:{Q_T}"); e(f"ds_read_b128 v[100:103], v4 offset:{Q_T+256}")
e("v_and_b32 v4, 1, v1"); e("v_cmp_eq_u32 s[18:19], 1, v4")
e("s_waitcnt lgkmcnt(0)")
SR = 80
for i in range(8):
    e(f"s_waitcnt vmcnt({(8 if WLATE else 18)+7-i})")
    if i == 0: stamp()
    for k in range(4):
        for h in range(2):
            d = SR + 2*i + h
            c = "0" if k == 0 else f"v{d}"
            e(f"v_dot2_f32_bf16 v{d}, v{KR+4*i+k}, v{96+4*h+k}, {c}")
nop(2)
allreduce("v_add_f32", [SR + x for x in range(16)], [], rows=False)
for i in range(8): e(f"v_cvt_pk_bf16_f32 v{16+i}, v{SR+2*i}, v{SR+2*i+1}")
for i in range(8):
    e(f"v_lshlrev_b32 v{SR+2*i}, 16, v{16+i}"); e(f"v_and_b32 v{SR+2*i+1}, s25, v{16+i}")
for x in range(16): e(f"v_mul_f32 v{SR+x}, s27, v{SR+x}")
for i in range(8): e(f"v_cvt_pk_bf16_f32 v{16+i}, v{SR+2*i}, v{SR+2*i+1}")
for i in range(8):
    e(f"v_lshlrev_b32 v{SR+2*i}, 16, v{16+i}"); e(f"v_and_b32 v{SR+2*i+1}, s25, v{16+i}")
for h in range(2): e(f"v_max3_f32 v{24+h}, v{SR+h}, v{SR+2+h}, v{SR+4+h}")
for h in range(2): e(f"v_max3_f32 v{26+h}, v{SR+6+h}, v{SR+8+h}, v{SR+10+h}")
for h in range(2): e(f"v_max3_f32 v{24+h}, v{24+h}, v{SR+12+h}, v{SR+14+h}")
for h in range(2): e(f"v_max_f32 v{24+h}, v{24+h}, v{26+h}")
allreduce("v_max_f32", [24, 25], [26, 27], rors=())
for x in range(16): e(f"v_sub_f32 v{SR+x}, v{SR+x}, v{24+(x&1)}")
for x in range(16): e(f"v_mul_f32 v{SR+x}, s24, v{SR+x}")
for x in range(16): e(f"v_exp_f32 v{SR+x}, v{SR+x}")
nop(0)
for h in range(2): e(f"v_add_f32 v{28+h}, v{SR+h}, v{SR+2+h}"); e(f"v_add_f32 v{30+h}, v{SR+4+h}, v{SR+6+h}")
for h in range(2): e(f"v_add_f32 v{32+h}, v{SR+8+h}, v{SR+10+h}"); e(f"v_add_f32 v{34+h}, v{SR+12+h}, v{SR+14+h}")
for h in range(2): e(f"v_add_f32 v{28+h}, v{28+h}, v{30+h}"); e(f"v_add_f32 v{32+h}, v{32+h}, v{34+h}")
for h in range(2): e(f"v_add_f32 v{28+h}, v{28+h}, v{32+h}")
for t in range(4):
    e(f"v_cvt_pk_bf16_f32 v{16+t}, v{SR+4*t}, v{SR+4*t+2}"); e(f"v_cvt_pk_bf16_f32 v{36+t}, v{SR+4*t+1}, v{SR+4*t+3}")
for t in range(4): e(f"v_cndmask_b32 v{20+t}, v{16+t}, v{36+t}, s[18:19]")
allreduce("v_add_f32", [28, 29], [26, 27], rors=())
for t in range(4):
    e(f"s_waitcnt vmcnt({(6 if WLATE else 16)-2*t})")
    if t == 3 and HLATE == "fv":
        e(f"v_mov_b32 v4, {FV}"); e("v_mov_b32 v7, 1"); e("ds_write_b32 v4, v7")
    if WLATE and not WFO and t == 3: wloads()
    for d2 in range(4):
        lo, hi = VR+4*(2*t)+d2, VR+4*(2*t+1)+d2
        e(f"v_perm_b32 v{TB(2*d2, t)}, v{hi}, v{lo}, s34")
        e(f"v_perm_b32 v{TB(2*d2+1, t)}, v{hi}, v{lo}, s35")
nop(1)
for j in range(8):
    e(f"v_mfma_f32_16x16x32_bf16 v[{VR+4*j}:{VR+3+4*j}], v[20:23], v[{TB(j,0)}:{TB(j,3)}], 0")
stamp()
nop(7); nop(1)
for k in range(4): e(f"v_cndmask_b32 v{32+k}, v{VR+4*k}, v{VR+4*(k+4)}, s[28:29]")
for k in range(4): e(f"v_cndmask_b32 v{32+k}, v{32+k}, v{VR+4*k+1}, s[30:31]")
for k in range(4): e(f"v_cndmask_b32 v{32+k}, v{32+k}, v{VR+4*(k+4)+1}, s[32:33]")
e("v_lshrrev_b32 v5, 1, v11"); e("v_lshlrev_b32 v5, 9, v5"); e("v_lshl_add_u32 v5, v10, 5, v5")
e("v_and_b32 v6, 1, v11"); e("v_lshl_add_u32 v5, v6, 4, v5")
e("s_lshl_b32 s11, s7, 10"); e("v_add_u32 v5, s11, v5")
e(f"ds_write_b128 v5, v[32:35] offset:{OW}")
e("v_mov_b32 v36, v24"); e("v_mov_b32 v37, v28"); e("v_mov_b32 v38, v25"); e("v_mov_b32 v39, v29")
e("s_lshl_b32 s11, s7, 4"); e("v_mov_b32 v6, s11")
e(f"ds_write_b128 v6, v[36:39] offset:{ML_T}")
e("v_mov_b32 v7, 1"); e(f"v_mov_b32 v6, {CNT}")
e("s_waitcnt lgkmcnt(0)")
e("v_cmp_eq_u32 vcc, 0, v1"); e("s_and_saveexec_b64 s[20:21], vcc")
e("ds_add_rtn_u32 v7, v6, v7")
e("s_waitcnt lgkmcnt(0)")
e("s_mov_b64 exec, s[20:21]")
nop(0)
e("v_readfirstlane_b32 s11, v7")
e("s_cmp_lg_u32 s11, 7"); e("s_cbranch_scc1 L_kv_done")
e("v_mov_b32 v6, 0")
for w in range(8): e(f"ds_read_b128 v[{16+4*w}:{19+4*w}], v6 offset:{ML_T+16*w}")
e("v_lshlrev_b32 v5, 4, v1")
for w in range(8): e(f"ds_read_b128 v[{48+4*w}:{51+4*w}], v5 offset:{OW+1024*w}")
e("v_cmp_gt_u32 vcc, 32, v1")
e("s_waitcnt lgkmcnt(8)")
nop(0)
for w in range(8):
    e(f"v_cndmask_b32 v{80+w}, v{18+4*w}, v{16+4*w}, vcc")
    e(f"v_cndmask_b32 v{88+w}, v{19+4*w}, v{17+4*w}, vcc")
e("v_max3_f32 v8, v80, v81, v82"); e("v_max3_f32 v9, v83, v84, v85"); e("v_max3_f32 v8, v8, v86, v87"); e("v_max_f32 v8, v8, v9")
for w in range(8): e(f"v_sub_f32 v{80+w}, v{80+w}, v8")
for w in range(8): e(f"v_mul_f32 v{80+w}, s24, v{80+w}")
for w in range(8): e(f"v_exp_f32 v{80+w}, v{80+w}")
nop(0)
e("v_mul_f32 v9, v80, v88")
for w in range(1, 8): e(f"v_fmac_f32 v9, v{80+w}, v{88+w}")
e("s_waitcnt lgkmcnt(0)")
for k in range(4): e(f"v_mul_f32 v{96+k}, v80, v{48+k}")
for w in range(1, 8):
    for k in range(4): e(f"v_fmac_f32 v{96+k}, v{80+w}, v{48+4*w+k}")
gran(100, 96, 97); gran(104, 98, 99); gran(108, 8, 9)
e("s_lshl_b32 s11, s2, 12"); e(f"s_add_u32 s11, s11, {OB2}")
e("buffer_store_dwordx4 v[100:103], v5, s[88:91], s11 offen sc1")
e("buffer_store_dwordx4 v[104:107], v5, s[88:91], s11 offen offset:1024 sc1")
e("v_lshrrev_b32 v6, 5, v1"); e("v_lshlrev_b32 v6, 4, v6")
e("v_and_b32 v7, 31, v1"); e("v_cmp_eq_u32 vcc, 0, v7"); e("s_and_saveexec_b64 s[20:21], vcc")
e("buffer_store_dwordx4 v[108:111], v6, s[88:91], s11 offen offset:2048 sc1")
e("s_mov_b64 exec, s[20:21]")
set_flag(FO, 6, 7)
lab("L_kv_done")
stamp()
if WFO:
    spin_lds(FO, 4, 5, sleep=1)
    wloads()
e("v_mov_b32 v26, v14")
for i in range(4):
    e(f"v_min_u32 v{40+i}, 95, v26"); e(f"v_lshlrev_b32 v{40+i}, 1, v{40+i}")
    if i < 3: e("v_add_u32 v26, s63, v26")
e("s_lshl_b32 s9, s62, 6"); e("s_add_u32 s9, s9, 32"); e("v_mul_lo_u32 v27, v14, s9"); e("v_lshl_add_u32 v27, v15, 5, v27")
e("s_lshl_b32 s10, s62, 5"); e("v_add_u32 v28, s10, v27")
e("v_cmp_gt_u32 s[94:95], s63, v14")
spin_lds(FH, 4, 5)
for i in range(4): e(f"ds_read_u16 v{16+i}, v{40+i} offset:{H_T}")
e("s_waitcnt lgkmcnt(0)")
for i in range(4): e(f"v_lshlrev_b32 v{32+i}, 16, v{16+i}")
e("s_waitcnt vmcnt(6)")
for i in range(4):
    for k in range(4):
        for z in range(2):
            d = 48 + 2*k + z
            c = "0" if i == 0 else f"v{d}"
            e(f"v_dot2_f32_bf16 v{d}, v{WR+4*i+k}, v{(16 if z == 0 else 32)+i}, {c}")
nop(2)
e("s_and_saveexec_b64 s[22:23], s[94:95]")
e(f"ds_write_b128 v28, v[48:51] offset:{AB}"); e(f"ds_write_b128 v28, v[52:55] offset:{AB+16}")
e("s_mov_b64 exec, s[22:23]")
e("s_waitcnt vmcnt(0)")
e("s_barrier")
stamp()
for i in range(4): e(f"ds_read_u16 v{20+i}, v{40+i} offset:{OF_T}")
e("s_waitcnt lgkmcnt(0)")
for i in range(4): e(f"v_lshlrev_b32 v{36+i}, 16, v{20+i}")
for i in range(4):
    for k in range(4):
        for z in range(2):
            d = 56 + 2*k + z
            c = "0" if i == 0 else f"v{d}"
            e(f"v_dot2_f32_bf16 v{d}, v{WR+16+4*i+k}, v{(20 if z == 0 else 36)+i}, {c}")
nop(2)
e("s_and_saveexec_b64 s[22:23], s[94:95]")
e(f"ds_write_b128 v27, v[56:59] offset:{AB}"); e(f"ds_write_b128 v27, v[60:63] offset:{AB+16}")
e("s_mov_b64 exec, s[22:23]")
e("s_waitcnt lgkmcnt(0)")
e("s_barrier")
def tail_reduce(CW, NS, TPG, SPT):
    RS = CW*64 + 32
    sh = {4: 2, 2: 1}[TPG]
    NG = CW*8
    e(f"v_cmp_gt_u32 vcc, {NG*TPG}, v13"); e("s_and_saveexec_b64 s[20:21], vcc")
    e("s_cbranch_execz L_p3skip")
    e(f"v_lshrrev_b32 v4, {sh}, v13")
    e("v_lshrrev_b32 v5, 3, v4"); e("v_lshlrev_b32 v5, 5, v5")
    e("v_and_b32 v6, 1, v4"); e("v_lshl_add_u32 v5, v6, 4, v5")
    e("v_bfe_u32 v6, v4, 1, 1"); e("v_lshl_add_u32 v5, v6, 3, v5")
    e("v_bfe_u32 v6, v4, 2, 1"); e(f"v_mul_u32_u24 v6, {CW*32}, v6"); e("v_add_u32 v5, v5, v6")
    e(f"v_and_b32 v6, {TPG-1}, v13"); e(f"v_mul_u32_u24 v7, {SPT*RS}, v6"); e("v_add_u32 v8, v5, v7")
    full = SPT if TPG*SPT == NS else SPT - 1
    for w in range(full): e(f"ds_read_b64 v[{32+2*w}:{33+2*w}], v8 offset:{AB+RS*w}")
    if full != SPT:
        e(f"v_mov_b32 v{32+2*full}, 0"); e(f"v_mov_b32 v{33+2*full}, 0")
        e("v_cmp_eq_u32 vcc, 0, v6"); e("s_and_saveexec_b64 s[22:23], vcc")
        e(f"ds_read_b64 v[{32+2*full}:{33+2*full}], v8 offset:{AB+RS*full}")
        e("s_mov_b64 exec, s[22:23]")
    e("s_waitcnt lgkmcnt(0)")
    n = SPT
    while n > 1:
        h = n // 2
        for w in range(h):
            for k in range(2): e(f"v_add_f32 v{32+2*w+k}, v{32+2*w+k}, v{32+2*(n-1-w)+k}")
        n = n - h
    nop(1)
    for k in range(2): dpp("v_add_f32", 32+k, "quad_perm:[1,0,3,2]")
    if TPG == 4:
        nop(1)
        for k in range(2): dpp("v_add_f32", 32+k, "quad_perm:[2,3,0,1]")
    gran(64, 32, 33)
    e("s_lshl_b32 s9, s2, 12"); e(f"s_add_u32 s9, s9, {OB3}"); e("v_lshlrev_b32 v3, 4, v4")
    e("v_cmp_eq_u32 vcc, 0, v6"); e("s_and_b64 exec, exec, vcc")
    e("buffer_store_dwordx4 v[64:67], v3, s[88:91], s9 offen sc1")
e("s_cmp_eq_u32 s62, 24"); e("s_cbranch_scc1 L_wide")
tail_reduce(16, 32, 4, 8)
e("s_branch L_p3skip")
lab("L_wide")
tail_reduce(24, 21, 2, 11)
lab("L_p3skip")
e("s_mov_b64 exec, s[20:21]")
lab("L_p3done")
stamp()
e(f"s_cmp_ge_u32 s2, {NRED}"); e("s_cbranch_scc1 L_fdone")
spin_lds(FC2, 4, 5)
e("s_lshr_b32 s10, s2, 4"); e("s_min_u32 s10, s10, 3"); e("s_lshl_b32 s11, s10, 4"); e("s_sub_u32 s11, s2, s11")
e("v_lshrrev_b32 v4, 3, v13"); e("v_lshrrev_b32 v6, 2, v4"); e("v_lshlrev_b32 v6, 3, v6")
e(f"ds_read_b64 v[72:73], v6 offset:{NT_T}")
e("v_lshlrev_b32 v4, 14, v4"); e("v_and_b32 v5, 7, v13"); e("v_lshl_add_u32 v4, v5, 4, v4")
e("s_lshl_b32 s9, s10, 12"); e("s_lshl_b32 s11, s11, 7"); e("s_add_u32 s9, s9, s11"); e(f"s_add_u32 s9, s9, {OB3}")
e("s_waitcnt lgkmcnt(0)")
poll(["buffer_load_dwordx4 v[48:51], v4, s[88:91], s9 offen sc1"], [48], 40, tags=[("v72", "v73")])
e("v_mov_b32 v32, v49"); e("v_mov_b32 v33, v50")
allreduce("v_add_f32", [32, 33], [64, 65], rors=(8,))
e("s_lshl_b32 s9, s7, 6"); e("v_lshl_add_u32 v5, v1, 3, s9")
e("v_cmp_gt_u32 vcc, 8, v1"); e("s_and_saveexec_b64 s[20:21], vcc")
e(f"ds_write_b64 v5, v[32:33] offset:{R3_T}")
e("s_mov_b64 exec, s[20:21]")
e("s_waitcnt lgkmcnt(0)")
e("s_barrier")
e("s_cmp_lg_u32 s7, 0"); e("s_cbranch_scc1 L_fdone")
e("v_and_b32 v5, 1, v1"); e("v_lshlrev_b32 v5, 3, v5")
for w in range(8):
    for q in range(4): e(f"ds_read_b64 v[{48+8*w+2*q}:{49+8*w+2*q}], v5 offset:{R3_T+64*w+16*q}")
for w in range(1, 8):
    e(f"s_waitcnt lgkmcnt({min(15, 28-4*w)})")
    for k in range(8): e(f"v_add_f32 v{48+k}, v{48+k}, v{48+8*w+k}")
for k in range(4): e(f"v_mov_b32 v{64+k}, v{52+k}")
def rne4(r):
    e(f"v_cvt_pk_bf16_f32 v80, v{r}, v{r+1}"); e(f"v_cvt_pk_bf16_f32 v81, v{r+2}, v{r+3}")
    e(f"v_lshlrev_b32 v{r}, 16, v80"); e(f"v_and_b32 v{r+1}, s25, v80"); e(f"v_lshlrev_b32 v{r+2}, 16, v81"); e(f"v_and_b32 v{r+3}, s25, v81")
rne4(48); rne4(64)
X, B2 = WR+32, WR+34
e(f"v_lshlrev_b32 v52, 16, v{X}"); e(f"v_and_b32 v53, s25, v{X}"); e(f"v_lshlrev_b32 v54, 16, v{X+1}"); e(f"v_and_b32 v55, s25, v{X+1}")
e(f"v_lshlrev_b32 v56, 16, v{B2}"); e(f"v_and_b32 v57, s25, v{B2}"); e(f"v_lshlrev_b32 v58, 16, v{B2+1}"); e(f"v_and_b32 v59, s25, v{B2+1}")
for k in range(4): e(f"v_add_f32 v{48+k}, v{52+k}, v{48+k}"); e(f"v_add_f32 v{64+k}, v{64+k}, v{56+k}")
rne4(48); rne4(64)
for k in range(4): e(f"v_add_f32 v{48+k}, v{48+k}, v{64+k}")
e("v_cvt_pk_bf16_f32 v80, v48, v49"); e("v_cvt_pk_bf16_f32 v81, v50, v51")
e("v_cmp_gt_u32 vcc, 2, v1"); e("s_and_saveexec_b64 s[20:21], vcc")
e(f"global_store_dwordx2 v{WR+36}, v[80:81], s[56:57]")
e("s_mov_b64 exec, s[20:21]")
lab("L_fdone")
stamp()
stamp_store()
e("s_endpgm")
SB[0] = 160
lab("L_roles")
e("s_cmp_eq_u32 s3, 2"); e("s_cbranch_scc1 L_sync")
e("s_cmp_lg_u32 s3, 0"); e("s_cbranch_scc1 L_h")
nstamp[0] = ns0
srd(72, 42, 576*4096*2)
e("v_lshlrev_b32 v3, 4, v1"); e("global_load_dwordx4 v[4:7], v3, s[36:37]")
e("v_lshlrev_b32 v9, 1, v1"); e("global_load_ushort v8, v9, s[36:37] offset:1024")
e("v_lshrrev_b32 v19, 3, v1"); e("v_and_b32 v2, 7, v1")
e("v_lshlrev_b32 v116, 13, v19"); e("v_lshl_add_u32 v116, v2, 4, v116")
e("s_and_b32 s8, s2, 3"); e("s_mul_i32 s8, s8, 144")
e("s_lshl_b32 s9, s8, 13"); e("s_lshr_b32 s10, s2, 2"); e("s_lshl_b32 s10, s10, 7"); e("s_add_u32 s9, s9, s10")
for i in range(18):
    e(f"buffer_load_dwordx4 v[{32+4*i}:{35+4*i}], v116, s[72:75], s9 offen{NT}")
    if i < 17: e("s_add_u32 s9, s9, 65536")
e("s_barrier")
e("s_waitcnt vmcnt(18)")
stamp()
unpack9(4, 8)
layernorm(4, 8)
e(f"ds_write_b128 v3, v[4:7] offset:{XN_T}"); e(f"ds_write_b16 v9, v8 offset:{XN_T+1024}")
e("s_lshl_b32 s9, s8, 1"); e("v_lshl_add_u32 v2, v19, 1, s9")
e("s_waitcnt lgkmcnt(0)")
get_nonce(30, 114)
tile_products(XN_T, 16, 18)
stamp()
nop(2)
for k in range(4): e(f"v_permlane32_swap_b32 v{104+k}, v{108+k}")
nop(0)
for k in range(4): e(f"v_add_f32 v{104+k}, v{104+k}, v{108+k}")
nop(1)
for k in range(2): e(f"v_permlane16_swap_b32 v{104+k}, v{106+k}")
nop(0)
for k in range(2): e(f"v_add_f32 v{104+k}, v{104+k}, v{106+k}")
nop(1)
for k in range(2): dpp("v_add_f32", 104+k, "row_ror:8")
gran(12, 104, 105)
e("v_and_b32 v2, 7, v1"); e("v_lshlrev_b32 v2, 6, v2"); e("v_lshrrev_b32 v10, 5, v1"); e("v_lshl_add_u32 v2, v10, 5, v2")
e("v_bfe_u32 v10, v1, 4, 1"); e("v_lshl_add_u32 v2, v10, 4, v2")
e("s_lshl_b32 s9, s2, 13")
e("v_and_b32 v10, 8, v1"); e("v_cmp_eq_u32 vcc, 0, v10"); e("s_and_saveexec_b64 s[20:21], vcc")
e("buffer_store_dwordx4 v[12:15], v2, s[88:91], s9 offen sc1")
if BOARD:
    e("s_lshl_b32 s9, s4, 17"); e("s_lshl_b32 s10, s5, 4"); e("v_mov_b32 v2, s10")
    e("v_cmp_eq_u32 vcc, 0, v1"); e("s_and_b64 exec, exec, vcc")
    e("buffer_store_dwordx4 v[12:15], v2, s[88:91], s9 offen offset:3840 sc1")
e("s_mov_b64 exec, s[20:21]")
stamp()
if BOARD:
    e("v_and_b32 v2, 15, v1"); e("v_lshlrev_b32 v2, 4, v2")
    poll(["buffer_load_dwordx4 v[32:35], v2, s[88:91], s9 offen offset:3840 sc1"], [32], 20, sleep=BSLEEP)
e("s_lshl_b32 s9, s4, 17"); e("v_and_b32 v3, 31, v1"); e("v_lshlrev_b32 v3, 4, v3"); e("v_lshrrev_b32 v10, 5, v1"); e("v_lshl_add_u32 v3, v10, 15, v3")
loads = []
for i2 in range(2):
    for rb in range(4):
        n = 4*i2 + rb
        loads.append(f"s_add_u32 s10, s9, {8192*(8*i2+rb)}")
        loads.append(f"buffer_load_dwordx4 v[{32+4*n}:{35+4*n}], v3, s[88:91], s10 offen sc1")
poll(loads, [32+4*x for x in range(8)], 20)
stamp()
for i2 in range(2):
    b0 = 32 + 16*i2
    for k in (1, 2): e(f"v_add_f32 v{b0+k}, v{b0+k}, v{b0+4+k}"); e(f"v_add_f32 v{b0+8+k}, v{b0+8+k}, v{b0+12+k}")
for i2 in range(2):
    b0 = 32 + 16*i2
    for k in (1, 2): e(f"v_add_f32 v{b0+k}, v{b0+k}, v{b0+8+k}")
e("v_cvt_pk_bf16_f32 v32, v33, v34"); e("v_cvt_pk_bf16_f32 v33, v49, v50")
e("v_lshlrev_b32 v4, 2, v1")
e(f"ds_write_b32 v4, v32 offset:{Q_T}"); e(f"ds_write_b32 v4, v33 offset:{Q_T+256}")
e("s_waitcnt lgkmcnt(0)")
set_flag(FQ, 10, 11)
stamp()
e("v_lshrrev_b32 v4, 4, v1"); e("v_lshlrev_b32 v4, 14, v4")
e("v_and_b32 v5, 15, v1"); e("v_lshl_add_u32 v5, v5, 4, v4")
e("s_lshl_b32 s9, s4, 16"); e(f"s_add_u32 s9, s9, {OB2}")
e("s_lshr_b32 s11, s5, 2"); e("s_lshl_b32 s10, s11, 8"); e("s_add_u32 s10, s10, s9")
e("s_lshr_b32 s11, s5, 3"); e("s_lshl_b32 s11, s11, 4"); e("s_add_u32 s11, s11, s9")
spin_lds(FO, 10, 11, sleep=2)
loads = []
for i in range(4):
    loads.append(f"s_add_u32 s13, s10, {4096*i}"); loads.append(f"s_add_u32 s15, s11, {4096*i}")
    loads.append(f"buffer_load_dwordx4 v[{32+12*i}:{35+12*i}], v5, s[88:91], s13 offen sc1")
    loads.append(f"buffer_load_dwordx4 v[{36+12*i}:{39+12*i}], v5, s[88:91], s13 offen offset:1024 sc1")
    loads.append(f"buffer_load_dwordx4 v[{40+12*i}:{43+12*i}], v4, s[88:91], s15 offen offset:2048 sc1")
poll(loads, [32+4*x for x in range(12)], 20, sleep=X2SLEEP)
stamp()
e("v_max3_f32 v84, v41, v53, v65"); e("v_max_f32 v84, v84, v77")
allreduce("v_max_f32", [84], [85], rors=())
for i in range(4): e(f"v_sub_f32 v{41+12*i}, v{41+12*i}, v84")
for i in range(4): e(f"v_mul_f32 v{41+12*i}, s24, v{41+12*i}")
for i in range(4): e(f"v_exp_f32 v{41+12*i}, v{41+12*i}")
nop(0)
for n, k in enumerate((33, 34, 37, 38, 42)): e(f"v_mul_f32 v{86+n}, v41, v{k}")
for i in range(1, 4):
    for n, k in enumerate((33, 34, 37, 38, 42)): e(f"v_fmac_f32 v{86+n}, v{41+12*i}, v{k+12*i}")
allreduce("v_add_f32", [86, 87, 88, 89, 90], [91, 92, 93, 94, 95], rors=())
e("v_rcp_f32 v90, v90"); nop(0)
for k in range(4): e(f"v_mul_f32 v{86+k}, v90, v{86+k}")
e("v_cvt_pk_bf16_f32 v86, v86, v87"); e("v_cvt_pk_bf16_f32 v87, v88, v89")
e("v_cmp_gt_u32 vcc, 16, v1"); nop(1); e("v_cndmask_b32 v86, 0, v86, vcc"); e("v_cndmask_b32 v87, 0, v87, vcc")
e("v_lshlrev_b32 v4, 3, v1")
e("v_cmp_gt_u32 vcc, 24, v1"); e("s_and_saveexec_b64 s[20:21], vcc")
e(f"ds_write_b64 v4, v[86:87] offset:{OF_T}")
e("s_mov_b64 exec, s[20:21]")
e("s_waitcnt lgkmcnt(0)")
e("s_barrier")
stamp()
stamp_store()
e("s_endpgm")

lab("L_h")
nstamp[0] = ns0
e("s_cmp_eq_u32 s3, 1"); e("s_cbranch_scc1 L_h1")
if PF:
    e("s_cmp_ge_u32 s2, 16"); e("s_cbranch_scc1 L_nopf")
    e("s_getpc_b64 s[10:11]")
    lab("L_pc")
    e(f"s_sub_u32 s10, s10, L_pc-{NAME}_kernel"); e("s_subb_u32 s11, s11, 0")
    e("v_lshlrev_b32 v3, 4, v1")
    e("s_mov_b32 s12, 0")
    lab("L_pf")
    e("global_load_dwordx4 v[4:7], v3, s[10:11]")
    e("v_add_u32 v3, 1024, v3"); e("s_add_u32 s12, s12, 1024")
    e(f"s_cmp_lt_u32 s12, L_end-{NAME}_kernel-1024"); e("s_cbranch_scc1 L_pf")
    lab("L_nopf")
e("s_barrier")
e("s_endpgm")
lab("L_h1")
srd(80, 48, 576*4608*2)
e("v_lshlrev_b32 v3, 4, v1"); e("global_load_dwordx4 v[4:7], v3, s[36:37]")
e("v_lshlrev_b32 v9, 1, v1"); e("global_load_ushort v8, v9, s[36:37] offset:1024")
e("v_mul_u32_u24 v140, 3641, v1"); e("v_lshrrev_b32 v140, 16, v140")
e("v_mul_u32_u24 v141, 18, v140"); e("v_sub_u32 v141, v1, v141")
e("s_movk_i32 s12, 9216"); e("v_mul_lo_u32 v142, v140, s12"); e("v_lshl_add_u32 v142, v141, 4, v142")
e(f"v_mov_b32 v2, {INV}"); e("v_cmp_gt_u32 vcc, 54, v1"); nop(1); e("v_cndmask_b32 v142, v2, v142, vcc")
e("s_and_b32 s8, s5, 7"); e("s_mul_i32 s8, s8, 72")
e("s_mul_i32 s9, s8, 9216"); e("s_mul_i32 s10, s4, 576"); e("s_add_u32 s9, s9, s10"); e("s_lshr_b32 s10, s5, 3"); e("s_mul_i32 s10, s10, 288"); e("s_add_u32 s9, s9, s10")
def hloads():
    for i in range(24):
        e(f"buffer_load_dwordx4 v[{32+4*i}:{35+4*i}], v142, s[80:83], s18 offen{NT}")
        if i < 23: e(f"s_add_u32 s18, s18, {3*9216}")
e("s_mov_b32 s18, s9")
if not HLATE: hloads()
e("s_barrier")
e(f"s_waitcnt vmcnt({0 if HLATE else 24})")
stamp()
LNBASE[0] = 144
unpack9(4, 8); layernorm(4, 8); unpack9(4, 8); layernorm(4, 8)
LNBASE[0] = 104
e(f"ds_write_b128 v3, v[4:7] offset:{Y_T}"); e(f"ds_write_b16 v9, v8 offset:{Y_T+1024}")
e("s_lshl_b32 s9, s8, 1"); e("v_min_u32 v2, 2, v140"); e("v_lshl_add_u32 v2, v2, 1, s9")
e("s_waitcnt lgkmcnt(0)")
get_nonce(30, 144)
if HLATE:
    spin_lds({"fv": FV, "fo": FO, "fq": FQ}[HLATE], 30, 31, sleep=4)
    hloads()
ACC = 128
tile_products(Y_T, 6, 24)
stamp()
e("v_lshlrev_b32 v2, 5, v1")
e(f"ds_write_b128 v2, v[{ACC}:{ACC+3}] offset:{HR}"); e(f"ds_write_b128 v2, v[{ACC+4}:{ACC+7}] offset:{HR+16}")
ACC = 104
e("v_lshlrev_b32 v2, 3, v1")
e("s_waitcnt lgkmcnt(0)")
for n in range(2):
    for sub in range(3): e(f"ds_read_b64 v[{32+8*n+2*sub}:{33+8*n+2*sub}], v2 offset:{HR+512*n+576*sub}")
e("s_waitcnt lgkmcnt(0)")
for n in range(2):
    for k in range(2): e(f"v_add_f32 v{32+8*n+k}, v{32+8*n+k}, v{34+8*n+k}"); e(f"v_add_f32 v{32+8*n+k}, v{32+8*n+k}, v{36+8*n+k}")
gran(12, 32, 33); gran(16, 40, 41)
e("v_lshlrev_b32 v2, 4, v1")
e("s_lshl_b32 s9, s2, 13")
e("buffer_store_dwordx4 v[12:15], v2, s[88:91], s9 offen offset:1024 sc1")
e("v_cmp_gt_u32 vcc, 8, v1"); e("s_and_saveexec_b64 s[20:21], vcc")
e("buffer_store_dwordx4 v[16:19], v2, s[88:91], s9 offen offset:2048 sc1")
e("s_mov_b64 exec, s[20:21]")
e("v_min_u32 v7, 35, v1")
e("s_lshr_b32 s8, s5, 2")
e("s_mul_i32 s9, s4, 576"); e("s_mul_i32 s10, s8, 144"); e("s_add_u32 s9, s9, s10"); e("v_lshl_add_u32 v6, v7, 2, s9")
e("global_load_dword v30, v6, s[50:51]")
stamp()
e("v_lshlrev_b32 v7, 4, v7")
e("s_lshl_b32 s9, s4, 17"); e("s_lshr_b32 s10, s5, 3"); e("s_lshl_b32 s10, s10, 16"); e("s_add_u32 s9, s9, s10")
e("s_and_b32 s10, s8, 1"); e("s_mul_i32 s10, s10, 576"); e("s_add_u32 s9, s9, s10")
spin_lds(FQ, 10, 11, sleep=4)
loads = []
for i in range(8):
    loads.append(f"s_add_u32 s10, s9, {8192*i + 1024}")
    loads.append(f"buffer_load_dwordx4 v[{32+4*i}:{35+4*i}], v7, s[88:91], s10 offen sc1")
poll(loads, [32+4*i for i in range(8)], 20, sleep=2)
stamp()
for st in (4, 2, 1):
    for p in range(st):
        for k in (1, 2): e(f"v_add_f32 v{32+4*p+k}, v{32+4*p+k}, v{32+4*(p+st)+k}")
e("v_cvt_pk_bf16_f32 v35, v33, v34"); e("v_lshlrev_b32 v33, 16, v35"); e("v_and_b32 v34, s25, v35")
e("v_lshlrev_b32 v36, 16, v30"); e("v_and_b32 v37, s25, v30")
e("v_add_f32 v33, v33, v36"); e("v_add_f32 v34, v34, v37")
e("v_cvt_pk_bf16_f32 v35, v33, v34"); e("v_lshlrev_b32 v33, 16, v35"); e("v_and_b32 v34, s25, v35")
for r in (33, 34):
    t = r + 7
    u = r + 9
    e(f"v_mul_f32 v{t}, v{r}, v{r}"); e(f"v_mul_f32 v{t}, v{t}, v{r}"); e(f"v_mov_b32 v{u}, v{r}"); e(f"v_fmac_f32 v{u}, 0x3d372713, v{t}")
    e(f"v_mul_f32 v{u}, 0x40135761, v{u}"); e(f"v_exp_f32 v{u}, v{u}"); nop(0); e(f"v_add_f32 v{u}, 1.0, v{u}"); e(f"v_rcp_f32 v{u}, v{u}"); nop(0)
    e(f"v_fma_f32 v{u}, -2.0, v{u}, 1.0")
    e(f"v_add_f32 v{u}, 1.0, v{u}"); e(f"v_mul_f32 v{t}, 0.5, v{r}"); e(f"v_mul_f32 v{u}, v{t}, v{u}")
e("v_cvt_pk_bf16_f32 v35, v42, v43")
e("v_cmp_gt_u32 vcc, 36, v1"); nop(1); e("v_cndmask_b32 v35, 0, v35, vcc")
e("v_lshlrev_b32 v4, 2, v1")
e("v_cmp_gt_u32 vcc, 48, v1"); e("s_and_saveexec_b64 s[20:21], vcc")
e(f"ds_write_b32 v4, v35 offset:{H_T}")
e("s_mov_b64 exec, s[20:21]")
e("s_waitcnt lgkmcnt(0)")
set_flag(FH, 10, 11)
stamp()
stamp_store()
e("s_endpgm")

lab("L_sync")
nstamp[0] = ns0
e("s_memrealtime s[16:17]")
e("s_and_b32 s9, s4, 3"); e("s_lshl_b32 s9, s9, 6"); e("s_lshr_b32 s10, s4, 2"); e("s_lshl_b32 s10, s10, 3"); e("s_add_u32 s9, s9, s10")
e("v_mov_b32 v2, s9"); e("v_mov_b32 v6, 0"); e("v_mov_b32 v7, 0")
for k in range(4): e(f"v_mov_b32 v{8+k}, 0")
e(f"v_mov_b32 v12, {FLG}")
e("s_waitcnt lgkmcnt(0)")
e("s_or_b32 s16, s16, 1")
e("v_mov_b32 v4, s16"); e("v_mov_b32 v5, s17")
e("v_cmp_eq_u32 vcc, 0, v1"); e("s_and_saveexec_b64 s[20:21], vcc")
e("global_atomic_cmpswap_x2 v[14:15], v2, v[4:7], s[58:59] sc0")
e("s_mov_b64 exec, s[20:21]")
e("ds_write_b128 v12, v[8:11]"); e("ds_write_b128 v12, v[8:11] offset:16")
e("s_waitcnt lgkmcnt(0)")
e("s_barrier")
e("s_waitcnt vmcnt(0)")
nop(0)
e("v_readfirstlane_b32 s10, v14"); e("v_readfirstlane_b32 s11, v15")
e("s_cmp_eq_u32 s10, 0"); e("s_cselect_b32 s16, s16, s10"); e("s_cselect_b32 s17, s17, s11")
e("v_mov_b32 v4, s16"); e("v_mov_b32 v5, s17"); e(f"v_mov_b32 v12, {NONCE}")
e("ds_write_b64 v12, v[4:5]")
e("s_waitcnt lgkmcnt(0)")
stamp()
e(f"s_cmp_ge_u32 s2, {NRED}"); e("s_cbranch_scc1 L_w2end")
spin_lds(FQ, 12, 13, sleep=8)
e("v_and_b32 v2, 15, v1"); e("v_and_b32 v3, 3, v2"); e("v_lshlrev_b32 v3, 6, v3"); e("v_lshrrev_b32 v4, 2, v2"); e("v_lshl_add_u32 v3, v4, 3, v3")
l_, d_ = newlab("np"), newlab("npd")
e("s_mov_b32 s12, 0")
lab(l_)
e("global_load_dwordx2 v[4:5], v3, s[58:59] sc1")
e("s_add_u32 s12, s12, 1")
e("s_waitcnt vmcnt(0)")
e("v_cmp_eq_u32 vcc, 0, v4")
e(f"s_cmp_gt_u32 s12, {SPINMAX}"); e(f"s_cbranch_scc1 {d_}")
e(f"s_cbranch_vccz {d_}")
e("s_sleep 8"); e(f"s_branch {l_}")
lab(d_)
e("v_lshlrev_b32 v2, 3, v2")
e(f"ds_write_b64 v2, v[4:5] offset:{NT_T}")
e("s_waitcnt lgkmcnt(0)")
set_flag(FC2, 10, 11)
lab("L_w2end")
stamp()
stamp_store()
e("s_endpgm")

lab("L_end")
e("s_endpgm")
L += ['.section .rodata,"a"', ".p2align 6", f".amdhsa_kernel {NAME}_kernel", "  .amdhsa_next_free_vgpr 168", "  .amdhsa_next_free_sgpr 102",
      "  .amdhsa_accum_offset 168", "  .amdhsa_group_segment_fixed_size 0", "  .amdhsa_kernarg_size 104", "  .amdhsa_user_sgpr_count 2",
      "  .amdhsa_user_sgpr_kernarg_segment_ptr 1", "  .amdhsa_system_sgpr_workgroup_id_x 1", ".end_amdhsa_kernel"]
open(out, "w").write("\n".join(L) + "\n")
```

```python
import sys
NAME = "parallel_sum__sliding_block_cached__mixer_channel_mlp__decode"
out = sys.argv[1]
opts = set(sys.argv[2:])
PROF = "prof" in opts
NT = " nt"
SPINMAX = 400000
def optint(p, d):
    for o in opts:
        if o.startswith(p) and o[len(p):].isdigit(): return int(o[len(p):])
    return d
THR = optint("thr", 0)
PTH = optint("pth", 0)
X2SLEEP = optint("x2s", 2)
WFO = "wfo" in opts
BOARD = "noboard" not in opts
BSLEEP = optint("bs", 2)
PF = "nopf" not in opts
DBG = "dbgt" in opts
EARLY = "noearly" not in opts
WLATE = "wlate" in opts or WFO
HLATE = "fv" if "hfv" in opts else ("fo" if "hfo" in opts else ("fq" if "hfq" in opts else ""))

L = []
def e(s): L.append("    " + s)
def lab(s): L.append(s + ":")
def nop(n): e(f"s_nop {n}")

OB1, OB2, OB3 = 0, 2 << 20, 4 << 20
INV = 0x40000000
NRED = 72
XN_T = 0
Y_T = 1216
Q_T = 2432
FLG = 3072
CNT, FQ, FC2, FO, NONCE, FV, FH = FLG, FLG+4, FLG+8, FLG+12, FLG+16, FLG+24, FLG+28
ML_T = 3136
NT_T = 3264
PW = 3456
R3_T = 4480
H_T = 4992
OF_T = 5184
HR = 47616
OW = 5632
AB = 13824
LDS_BYTES = 49664
def TB(j, t): return 80 + 4*j + t

nstamp = [0]
SB = [160]
def stamp():
    if not PROF: return
    k = nstamp[0]; nstamp[0] += 1
    assert k < 8
    e("s_memrealtime s[92:93]"); e("s_waitcnt lgkmcnt(0)"); e(f"v_mov_b32 v{SB[0]+k}, s92")
def stamp_store():
    if not PROF: return
    e("s_lshl_b32 s6, s2, 4"); e("s_add_u32 s6, s6, s3"); e("s_lshl_b32 s6, s6, 6"); e(f"s_add_u32 s6, s6, {16<<20}")
    e("v_mov_b32 v2, s6")
    e("v_cmp_eq_u32 vcc, 0, v1"); e("s_and_saveexec_b64 s[20:21], vcc")
    for q in range(2):
        e(f"buffer_store_dwordx4 v[{SB[0]+4*q}:{SB[0]+3+4*q}], v2, s[88:91], 0 offen offset:{16*q}")
    e("s_mov_b64 exec, s[20:21]")

def dbgmax(word, inv=False):
    if not DBG: return
    e("s_memrealtime s[92:93]"); e("s_waitcnt lgkmcnt(0)")
    if inv: e("s_not_b32 s92, s92")
    e("v_mov_b32 v166, s92"); e(f"v_mov_b32 v167, {4*word}")
    e("v_cmp_eq_u32 vcc, 0, v1"); e("s_and_saveexec_b64 s[96:97], vcc")
    e("global_atomic_umax v167, v166, s[58:59]")
    e("s_mov_b64 exec, s[96:97]")

def dpp(op, d, ctrl):
    e(f"{op}_dpp v{d}, v{d}, v{d} {ctrl} row_mask:0xf bank_mask:0xf")

def allreduce(op, regs, tmps, rors=(8, 4, 2, 1), rows=True):
    for r in rors:
        nop(1)
        for v in regs: dpp(op, v, f"row_ror:{r}")
    if rows:
        for sw in ("v_permlane16_swap_b32", "v_permlane32_swap_b32"):
            for v, t in zip(regs, tmps): e(f"v_mov_b32 v{t}, v{v}")
            nop(1)
            for v, t in zip(regs, tmps): e(f"{sw} v{v}, v{t}")
            nop(0)
            for v, t in zip(regs, tmps): e(f"{op} v{v}, v{v}, v{t}")

lbl_id = [0]
def newlab(p):
    lbl_id[0] += 1
    return f"L_{p}_{lbl_id[0]}"

def spin_lds(addr, va, vd, sleep=1):
    l, d = newlab("spin"), newlab("spind")
    e(f"v_mov_b32 v{va}, {addr}"); e("s_mov_b32 s12, 0")
    lab(l)
    e(f"ds_read_b32 v{vd}, v{va}")
    e("s_add_u32 s12, s12, 1")
    e("s_waitcnt lgkmcnt(0)")
    e(f"v_cmp_ne_u32 vcc, 0, v{vd}")
    e(f"s_cmp_gt_u32 s12, {SPINMAX*4}"); e(f"s_cbranch_scc1 {d}")
    e(f"s_cbranch_vccnz {d}")
    e(f"s_sleep {sleep}")
    e(f"s_branch {l}")
    lab(d)

def get_nonce(va, vd):
    l, d = newlab("gn"), newlab("gnd")
    e(f"v_mov_b32 v{va}, {NONCE}"); e("s_mov_b32 s12, 0")
    lab(l)
    e(f"ds_read_b64 v[{vd}:{vd+1}], v{va}")
    e("s_add_u32 s12, s12, 1")
    e("s_waitcnt lgkmcnt(0)")
    e(f"v_cmp_ne_u32 vcc, 0, v{vd}")
    e(f"s_cmp_gt_u32 s12, {SPINMAX*4}"); e(f"s_cbranch_scc1 {d}")
    e(f"s_cbranch_vccnz {d}")
    e("s_sleep 1")
    e(f"s_branch {l}")
    lab(d)
    e(f"v_readfirstlane_b32 s16, v{vd}"); e(f"v_readfirstlane_b32 s17, v{vd+1}")
    nop(1)

def set_flag(addr, va, vd):
    e(f"v_mov_b32 v{va}, {addr}"); e(f"v_mov_b32 v{vd}, 1"); e(f"ds_write_b32 v{va}, v{vd}"); e("s_waitcnt lgkmcnt(0)")

def gran(dst, a, b):
    e(f"v_mov_b32 v{dst}, s16"); e(f"v_mov_b32 v{dst+1}, v{a}"); e(f"v_mov_b32 v{dst+2}, v{b}"); e(f"v_mov_b32 v{dst+3}, s17")

def poll(loads, grans, t0, tags=None, sleep=0):
    l, d = newlab("poll"), newlab("polld")
    e("s_mov_b32 s12, 0")
    lab(l)
    for x in loads: e(x)
    e("s_add_u32 s12, s12, 1")
    e("s_waitcnt vmcnt(0)")
    for n, g in enumerate(grans):
        tl, th = ("s16", "s17") if tags is None else tags[n]
        e(f"v_xor_b32 v{t0+1}, {tl}, v{g}"); e(f"v_xor_b32 v{t0+2}, {th}, v{g+3}")
        if n == 0: e(f"v_or_b32 v{t0}, v{t0+1}, v{t0+2}")
        else: e(f"v_or3_b32 v{t0}, v{t0}, v{t0+1}, v{t0+2}")
    e(f"v_cmp_ne_u32 vcc, 0, v{t0}")
    e(f"s_cmp_gt_u32 s12, {SPINMAX}"); e(f"s_cbranch_scc1 {d}")
    e(f"s_cbranch_vccz {d}")
    if sleep: e(f"s_sleep {sleep}")
    e(f"s_branch {l}")
    lab(d)

nload = [0]
def thr():
    i = nload[0]; nload[0] += 1
    if i >= 16 and WLATE: return
    if PTH:
        if i >= PTH: e(f"s_waitcnt vmcnt({PTH-1})")
        return
    if not THR or i < THR: return
    l = newlab("thr")
    e("s_cmp_lg_u32 s14, 0"); e(f"s_cbranch_scc1 {l}")
    e("ds_read_b32 v9, v8")
    e("s_waitcnt lgkmcnt(0)")
    nop(0)
    e("v_readfirstlane_b32 s14, v9")
    e("s_cmp_lg_u32 s14, 0"); e(f"s_cbranch_scc1 {l}")
    e(f"s_waitcnt vmcnt({THR-1})")
    lab(l)

def srd(d, p, n):
    e(f"s_mov_b32 s{d}, s{p}"); e(f"s_and_b32 s{d+1}, s{p+1}, 0xffff"); e(f"s_mov_b32 s{d+2}, {n}"); e(f"s_mov_b32 s{d+3}, 0x20000")

def unpack9(p, p8):
    for k in range(4):
        e(f"v_lshlrev_b32 v{10+2*k}, 16, v{p+k}"); e(f"v_and_b32 v{11+2*k}, s25, v{p+k}")
    e(f"v_lshlrev_b32 v18, 16, v{p8}")
LNBASE = [104]
def layernorm(outp, out8):
    D = 20
    e(f"v_add_f32 v{LNBASE[0]+0}, v10, v11"); e(f"v_add_f32 v{LNBASE[0]+1}, v12, v13"); e(f"v_add_f32 v{LNBASE[0]+2}, v14, v15"); e(f"v_add_f32 v{LNBASE[0]+3}, v16, v17")
    e(f"v_add_f32 v{LNBASE[0]+0}, v{LNBASE[0]+0}, v{LNBASE[0]+1}"); e(f"v_add_f32 v{LNBASE[0]+2}, v{LNBASE[0]+2}, v{LNBASE[0]+3}"); e(f"v_add_f32 v{LNBASE[0]+0}, v{LNBASE[0]+0}, v18"); e(f"v_add_f32 v{LNBASE[0]+0}, v{LNBASE[0]+0}, v{LNBASE[0]+2}")
    allreduce(f"v_add_f32", [LNBASE[0]], [LNBASE[0]+1])
    e(f"v_mul_f32 v{LNBASE[0]+0}, 0x3ae38e39, v{LNBASE[0]+0}")
    for k in range(9): e(f"v_sub_f32 v{D+k}, v{10+k}, v{LNBASE[0]+0}")
    e(f"v_mul_f32 v{LNBASE[0]+2}, v{D}, v{D}"); e(f"v_mul_f32 v{LNBASE[0]+3}, v{D+1}, v{D+1}"); e(f"v_mul_f32 v{LNBASE[0]+4}, v{D+2}, v{D+2}")
    for k in range(3, 9): e(f"v_fmac_f32 v{LNBASE[0]+2+k%3}, v{D+k}, v{D+k}")
    e(f"v_add_f32 v{LNBASE[0]+2}, v{LNBASE[0]+2}, v{LNBASE[0]+3}"); e(f"v_add_f32 v{LNBASE[0]+2}, v{LNBASE[0]+2}, v{LNBASE[0]+4}")
    allreduce(f"v_add_f32", [LNBASE[0]+2], [LNBASE[0]+1])
    e(f"v_mul_f32 v{LNBASE[0]+2}, 0x3ae38e39, v{LNBASE[0]+2}")
    e(f"v_cvt_pk_bf16_f32 v{LNBASE[0]+1}, v{LNBASE[0]+0}, v{LNBASE[0]+2}")
    e(f"v_lshlrev_b32 v{LNBASE[0]+0}, 16, v{LNBASE[0]+1}"); e(f"v_and_b32 v{LNBASE[0]+2}, s25, v{LNBASE[0]+1}")
    e(f"v_add_f32 v{LNBASE[0]+2}, 0x3727c5ac, v{LNBASE[0]+2}")
    e(f"v_cvt_pk_bf16_f32 v{LNBASE[0]+2}, v{LNBASE[0]+2}, v{LNBASE[0]+2}"); e(f"v_and_b32 v{LNBASE[0]+2}, s25, v{LNBASE[0]+2}")
    e(f"v_sqrt_f32 v{LNBASE[0]+2}, v{LNBASE[0]+2}"); nop(0)
    e(f"v_cvt_pk_bf16_f32 v{LNBASE[0]+2}, v{LNBASE[0]+2}, v{LNBASE[0]+2}"); e(f"v_and_b32 v{LNBASE[0]+2}, s25, v{LNBASE[0]+2}")
    e(f"v_rcp_f32 v{LNBASE[0]+3}, v{LNBASE[0]+2}")
    for k in range(9): e(f"v_sub_f32 v{D+k}, v{10+k}, v{LNBASE[0]+0}")
    for k in range(4): e(f"v_cvt_pk_bf16_f32 v{LNBASE[0]+4+k}, v{D+2*k}, v{D+1+2*k}")
    e(f"v_cvt_pk_bf16_f32 v{LNBASE[0]+8}, v{D+8}, v{D+8}")
    for k in range(4):
        e(f"v_lshlrev_b32 v{D+2*k}, 16, v{LNBASE[0]+4+k}"); e(f"v_and_b32 v{D+1+2*k}, s25, v{LNBASE[0]+4+k}")
    e(f"v_lshlrev_b32 v{D+8}, 16, v{LNBASE[0]+8}")
    for k in range(9): e(f"v_mul_f32 v{10+k}, v{D+k}, v{LNBASE[0]+3}")
    for k in range(9): e(f"v_fma_f32 v{D+k}, -v{10+k}, v{LNBASE[0]+2}, v{D+k}")
    for k in range(9): e(f"v_fmac_f32 v{10+k}, v{D+k}, v{LNBASE[0]+3}")
    for k in range(4): e(f"v_cvt_pk_bf16_f32 v{outp+k}, v{10+2*k}, v{11+2*k}")
    e(f"v_cvt_pk_bf16_f32 v{out8}, v18, v18")

def tile_products(tbl, step, n):
    for c0 in range(0, n, 12):
        m = min(12, n - c0)
        for i in range(m): e(f"ds_read_u16 v{10+i}, v2 offset:{tbl+step*(c0+i)}")
        for i in range(m):
            e(f"s_waitcnt lgkmcnt({m-1-i})")
            e(f"v_lshlrev_b32 v{28+(i&1)}, 16, v{10+i}")
            e(f"s_waitcnt vmcnt({n-1-c0-i})")
            for k in range(4):
                for z in range(2):
                    d = ACC + 2*k + z
                    c = "0" if c0 + i == 0 else f"v{d}"
                    e(f"v_dot2_f32_bf16 v{d}, v{32+4*(c0+i)+k}, v{10+i if z == 0 else 28+(i&1)}, {c}")
        nop(2)
ACC = 104

L.append(f"; @launch grid=(256,1,1) block=(768,1,1) lds={LDS_BYTES}")
L.append('.amdgcn_target "amdgcn-amd-amdhsa--gfx950"')
L.append(".text"); L.append(f".globl {NAME}_kernel"); L.append(".p2align 8")
L.append(f".type {NAME}_kernel,@function"); lab(f"{NAME}_kernel")
e("s_cmp_ge_u32 s2, 256"); e("s_cbranch_scc1 L_end")
e("s_load_dwordx16 s[36:51], s[0:1], 0"); e("s_load_dwordx8 s[52:59], s[0:1], 64"); e("s_load_dwordx2 s[60:61], s[0:1], 96")
e("v_and_b32 v1, 63, v0"); e("v_lshrrev_b32 v2, 6, v0"); nop(1); e("v_readfirstlane_b32 s3, v2")
e("s_lshr_b32 s4, s2, 4"); e("s_and_b32 s5, s2, 15")
e("s_mov_b32 s24, 0x3fb8aa3b"); e("s_mov_b32 s25, 0xffff0000")
e("s_waitcnt lgkmcnt(0)")
srd(88, 60, 1 << 30)
stamp()
if PROF: e("v_mov_b32 v112, v160")
ns0 = nstamp[0]
e("s_cmp_lt_u32 s3, 4"); e("s_cbranch_scc1 L_roles")

lab("L_kv")
nstamp[0] = ns0
SB[0] = 112
srd(64, 38, 268435456)
e("s_sub_u32 s7, s3, 4")
e("s_lshl_b32 s9, s4, 24"); e("s_lshl_b32 s10, s5, 16"); e("s_add_u32 s9, s9, s10"); e(f"s_add_u32 s9, s9, {61440*256}")
e("s_lshl_b32 s10, s7, 13"); e("s_add_u32 s9, s9, s10"); e("s_add_u32 s10, s9, 4096")
e("v_and_b32 v10, 15, v1"); e("v_lshrrev_b32 v11, 4, v1")
e("v_lshlrev_b32 v3, 8, v10"); e("v_lshl_add_u32 v3, v11, 4, v3")
e("v_lshlrev_b32 v12, 11, v11"); e("v_lshl_add_u32 v12, v10, 4, v12")
KR, VR = 16, 48
e("s_mov_b32 s14, 0"); e(f"v_mov_b32 v8, {FQ}")
NE = (THR if THR else 3) if EARLY else 0
for i in range(8):
    if i == NE:
        srd(68, 40, 268435456); srd(76, 44, 4096*576*2); srd(84, 52, 4608*576*2)
        e("s_barrier")
    thr()
    e(f"buffer_load_dwordx4 v[{KR+4*i}:{KR+3+4*i}], v12, s[64:67], s9 offen offset:{i*256}{NT}")
for i in range(8):
    thr()
    e(f"buffer_load_dwordx4 v[{VR+4*i}:{VR+3+4*i}], v12, s[68:71], s9 offen offset:{i*256}{NT}")
WR = 128
def wloads():
    e("v_subrev_u32 v13, 256, v0")
    e("s_and_b32 s15, s2, 3"); e("s_cmp_eq_u32 s15, 3")
    e("s_cselect_b32 s62, 24, 16"); e("s_cselect_b32 s63, 21, 32"); e("s_movk_i32 s12, 4096"); e("s_cselect_b32 s12, 2731, s12")
    e("v_mul_lo_u32 v14, v13, s12"); e("v_lshrrev_b32 v14, 16, v14")
    e("v_mul_lo_u32 v15, v14, s62"); e("v_sub_u32 v15, v13, v15")
    e("v_mul_u32_u24 v4, 1152, v14"); e("v_lshl_add_u32 v4, v15, 4, v4")
    e(f"v_mov_b32 v7, {INV}"); e("v_cmp_gt_u32 vcc, s63, v14"); nop(1); e("v_cndmask_b32 v4, v7, v4, vcc")
    e("s_lshr_b32 s13, s2, 2"); e("s_lshl_b32 s15, s15, 8"); e("s_mul_i32 s11, s63, 1152")
    for mtx, rows, sr, base in ((0, 72, 84, 0), (1, 64, 76, 16)):
        e(f"s_mul_i32 s9, s13, {rows*1152}"); e("s_add_u32 s9, s9, s15"); e("v_mov_b32 v5, v14")
        for i in range(4):
            e(f"v_cmp_gt_u32 vcc, {rows}, v5"); nop(1); e("v_cndmask_b32 v6, v7, v4, vcc")
            thr(); e(f"buffer_load_dwordx4 v[{WR+base+4*i}:{WR+base+3+4*i}], v6, s[{sr}:{sr+3}], s9 offen{NT}")
            if i < 3: e("s_add_u32 s9, s9, s11"); e("v_add_u32 v5, s63, v5")
    e(f"s_min_u32 s13, s2, {NRED-1}"); e("s_lshl_b32 s13, s13, 4"); e("v_and_b32 v6, 1, v1"); e("v_lshlrev_b32 v6, 3, v6"); e(f"v_add_u32 v{WR+36}, s13, v6")
    e(f"global_load_dwordx2 v[{WR+32}:{WR+33}], v{WR+36}, s[36:37]"); e(f"global_load_dwordx2 v[{WR+34}:{WR+35}], v{WR+36}, s[54:55]")

if not WLATE: wloads()
e("v_cmp_eq_u32 s[28:29], 1, v11"); e("v_cmp_eq_u32 s[30:31], 2, v11"); e("v_cmp_eq_u32 s[32:33], 3, v11")
e("s_mov_b32 s27, 0x3db504f3"); e("s_mov_b32 s34, 0x05040100"); e("s_mov_b32 s35, 0x07060302")
spin_lds(FQ, 4, 5, sleep=2)
get_nonce(4, 6)
stamp()
e("v_lshlrev_b32 v4, 4, v10")
e(f"ds_read_b128 v[96:99], v4 offset:{Q_T}"); e(f"ds_read_b128 v[100:103], v4 offset:{Q_T+256}")
e("v_and_b32 v4, 1, v1"); e("v_cmp_eq_u32 s[18:19], 1, v4")
e("s_waitcnt lgkmcnt(0)")
SR = 80
for i in range(8):
    e(f"s_waitcnt vmcnt({(8 if WLATE else 18)+7-i})")
    if i == 0: stamp()
    for k in range(4):
        for h in range(2):
            d = SR + 2*i + h
            c = "0" if k == 0 else f"v{d}"
            e(f"v_dot2_f32_bf16 v{d}, v{KR+4*i+k}, v{96+4*h+k}, {c}")
nop(2)
allreduce("v_add_f32", [SR + x for x in range(16)], [], rows=False)
for i in range(8): e(f"v_cvt_pk_bf16_f32 v{16+i}, v{SR+2*i}, v{SR+2*i+1}")
for i in range(8):
    e(f"v_lshlrev_b32 v{SR+2*i}, 16, v{16+i}"); e(f"v_and_b32 v{SR+2*i+1}, s25, v{16+i}")
for x in range(16): e(f"v_mul_f32 v{SR+x}, s27, v{SR+x}")
for i in range(8): e(f"v_cvt_pk_bf16_f32 v{16+i}, v{SR+2*i}, v{SR+2*i+1}")
for i in range(8):
    e(f"v_lshlrev_b32 v{SR+2*i}, 16, v{16+i}"); e(f"v_and_b32 v{SR+2*i+1}, s25, v{16+i}")
for h in range(2): e(f"v_max3_f32 v{24+h}, v{SR+h}, v{SR+2+h}, v{SR+4+h}")
for h in range(2): e(f"v_max3_f32 v{26+h}, v{SR+6+h}, v{SR+8+h}, v{SR+10+h}")
for h in range(2): e(f"v_max3_f32 v{24+h}, v{24+h}, v{SR+12+h}, v{SR+14+h}")
for h in range(2): e(f"v_max_f32 v{24+h}, v{24+h}, v{26+h}")
allreduce("v_max_f32", [24, 25], [26, 27], rors=())
for x in range(16): e(f"v_sub_f32 v{SR+x}, v{SR+x}, v{24+(x&1)}")
for x in range(16): e(f"v_mul_f32 v{SR+x}, s24, v{SR+x}")
for x in range(16): e(f"v_exp_f32 v{SR+x}, v{SR+x}")
nop(0)
for h in range(2): e(f"v_add_f32 v{28+h}, v{SR+h}, v{SR+2+h}"); e(f"v_add_f32 v{30+h}, v{SR+4+h}, v{SR+6+h}")
for h in range(2): e(f"v_add_f32 v{32+h}, v{SR+8+h}, v{SR+10+h}"); e(f"v_add_f32 v{34+h}, v{SR+12+h}, v{SR+14+h}")
for h in range(2): e(f"v_add_f32 v{28+h}, v{28+h}, v{30+h}"); e(f"v_add_f32 v{32+h}, v{32+h}, v{34+h}")
for h in range(2): e(f"v_add_f32 v{28+h}, v{28+h}, v{32+h}")
for t in range(4):
    e(f"v_cvt_pk_bf16_f32 v{16+t}, v{SR+4*t}, v{SR+4*t+2}"); e(f"v_cvt_pk_bf16_f32 v{36+t}, v{SR+4*t+1}, v{SR+4*t+3}")
for t in range(4): e(f"v_cndmask_b32 v{20+t}, v{16+t}, v{36+t}, s[18:19]")
allreduce("v_add_f32", [28, 29], [26, 27], rors=())
for t in range(4):
    e(f"s_waitcnt vmcnt({(6 if WLATE else 16)-2*t})")
    if t == 3 and HLATE == "fv":
        e(f"v_mov_b32 v4, {FV}"); e("v_mov_b32 v7, 1"); e("ds_write_b32 v4, v7")
    if WLATE and not WFO and t == 3: wloads()
    for d2 in range(4):
        lo, hi = VR+4*(2*t)+d2, VR+4*(2*t+1)+d2
        e(f"v_perm_b32 v{TB(2*d2, t)}, v{hi}, v{lo}, s34")
        e(f"v_perm_b32 v{TB(2*d2+1, t)}, v{hi}, v{lo}, s35")
nop(1)
for j in range(8):
    e(f"v_mfma_f32_16x16x32_bf16 v[{VR+4*j}:{VR+3+4*j}], v[20:23], v[{TB(j,0)}:{TB(j,3)}], 0")
stamp()
nop(7); nop(1)
for k in range(4): e(f"v_cndmask_b32 v{32+k}, v{VR+4*k}, v{VR+4*(k+4)}, s[28:29]")
for k in range(4): e(f"v_cndmask_b32 v{32+k}, v{32+k}, v{VR+4*k+1}, s[30:31]")
for k in range(4): e(f"v_cndmask_b32 v{32+k}, v{32+k}, v{VR+4*(k+4)+1}, s[32:33]")
e("v_lshrrev_b32 v5, 1, v11"); e("v_lshlrev_b32 v5, 9, v5"); e("v_lshl_add_u32 v5, v10, 5, v5")
e("v_and_b32 v6, 1, v11"); e("v_lshl_add_u32 v5, v6, 4, v5")
e("s_lshl_b32 s11, s7, 10"); e("v_add_u32 v5, s11, v5")
e(f"ds_write_b128 v5, v[32:35] offset:{OW}")
e("v_mov_b32 v36, v24"); e("v_mov_b32 v37, v28"); e("v_mov_b32 v38, v25"); e("v_mov_b32 v39, v29")
e("s_lshl_b32 s11, s7, 4"); e("v_mov_b32 v6, s11")
e(f"ds_write_b128 v6, v[36:39] offset:{ML_T}")
e("v_mov_b32 v7, 1"); e(f"v_mov_b32 v6, {CNT}")
e("s_waitcnt lgkmcnt(0)")
e("v_cmp_eq_u32 vcc, 0, v1"); e("s_and_saveexec_b64 s[20:21], vcc")
e("ds_add_rtn_u32 v7, v6, v7")
e("s_waitcnt lgkmcnt(0)")
e("s_mov_b64 exec, s[20:21]")
nop(0)
e("v_readfirstlane_b32 s11, v7")
e("s_cmp_lg_u32 s11, 7"); e("s_cbranch_scc1 L_kv_done")
e("v_mov_b32 v6, 0")
for w in range(8): e(f"ds_read_b128 v[{16+4*w}:{19+4*w}], v6 offset:{ML_T+16*w}")
e("v_lshlrev_b32 v5, 4, v1")
for w in range(8): e(f"ds_read_b128 v[{48+4*w}:{51+4*w}], v5 offset:{OW+1024*w}")
e("v_cmp_gt_u32 vcc, 32, v1")
e("s_waitcnt lgkmcnt(8)")
nop(0)
for w in range(8):
    e(f"v_cndmask_b32 v{80+w}, v{18+4*w}, v{16+4*w}, vcc")
    e(f"v_cndmask_b32 v{88+w}, v{19+4*w}, v{17+4*w}, vcc")
e("v_max3_f32 v8, v80, v81, v82"); e("v_max3_f32 v9, v83, v84, v85"); e("v_max3_f32 v8, v8, v86, v87"); e("v_max_f32 v8, v8, v9")
for w in range(8): e(f"v_sub_f32 v{80+w}, v{80+w}, v8")
for w in range(8): e(f"v_mul_f32 v{80+w}, s24, v{80+w}")
for w in range(8): e(f"v_exp_f32 v{80+w}, v{80+w}")
nop(0)
e("v_mul_f32 v9, v80, v88")
for w in range(1, 8): e(f"v_fmac_f32 v9, v{80+w}, v{88+w}")
e("s_waitcnt lgkmcnt(0)")
for k in range(4): e(f"v_mul_f32 v{96+k}, v80, v{48+k}")
for w in range(1, 8):
    for k in range(4): e(f"v_fmac_f32 v{96+k}, v{80+w}, v{48+4*w+k}")
gran(100, 96, 97); gran(104, 98, 99); gran(108, 8, 9)
e("s_lshl_b32 s11, s2, 12"); e(f"s_add_u32 s11, s11, {OB2}")
e("buffer_store_dwordx4 v[100:103], v5, s[88:91], s11 offen sc1")
e("buffer_store_dwordx4 v[104:107], v5, s[88:91], s11 offen offset:1024 sc1")
e("v_lshrrev_b32 v6, 5, v1"); e("v_lshlrev_b32 v6, 4, v6")
e("v_and_b32 v7, 31, v1"); e("v_cmp_eq_u32 vcc, 0, v7"); e("s_and_saveexec_b64 s[20:21], vcc")
e("buffer_store_dwordx4 v[108:111], v6, s[88:91], s11 offen offset:2048 sc1")
e("s_mov_b64 exec, s[20:21]")
set_flag(FO, 6, 7)
dbgmax(11)
lab("L_kv_done")
stamp()
if WFO:
    spin_lds(FO, 4, 5, sleep=1)
    wloads()
e("v_mov_b32 v26, v14")
for i in range(4):
    e(f"v_min_u32 v{40+i}, 95, v26"); e(f"v_lshlrev_b32 v{40+i}, 1, v{40+i}")
    if i < 3: e("v_add_u32 v26, s63, v26")
e("s_lshl_b32 s9, s62, 6"); e("s_add_u32 s9, s9, 32"); e("v_mul_lo_u32 v27, v14, s9"); e("v_lshl_add_u32 v27, v15, 5, v27")
e("s_lshl_b32 s10, s62, 5"); e("v_add_u32 v28, s10, v27")
e("v_cmp_gt_u32 s[94:95], s63, v14")
spin_lds(FH, 4, 5)
for i in range(4): e(f"ds_read_u16 v{16+i}, v{40+i} offset:{H_T}")
e("s_waitcnt lgkmcnt(0)")
for i in range(4): e(f"v_lshlrev_b32 v{32+i}, 16, v{16+i}")
e("s_waitcnt vmcnt(6)")
for i in range(4):
    for k in range(4):
        for z in range(2):
            d = 48 + 2*k + z
            c = "0" if i == 0 else f"v{d}"
            e(f"v_dot2_f32_bf16 v{d}, v{WR+4*i+k}, v{(16 if z == 0 else 32)+i}, {c}")
nop(2)
e("s_and_saveexec_b64 s[22:23], s[94:95]")
e(f"ds_write_b128 v28, v[48:51] offset:{AB}"); e(f"ds_write_b128 v28, v[52:55] offset:{AB+16}")
e("s_mov_b64 exec, s[22:23]")
e("s_waitcnt vmcnt(0)")
e("s_barrier")
stamp()
for i in range(4): e(f"ds_read_u16 v{20+i}, v{40+i} offset:{OF_T}")
e("s_waitcnt lgkmcnt(0)")
for i in range(4): e(f"v_lshlrev_b32 v{36+i}, 16, v{20+i}")
for i in range(4):
    for k in range(4):
        for z in range(2):
            d = 56 + 2*k + z
            c = "0" if i == 0 else f"v{d}"
            e(f"v_dot2_f32_bf16 v{d}, v{WR+16+4*i+k}, v{(20 if z == 0 else 36)+i}, {c}")
nop(2)
e("s_and_saveexec_b64 s[22:23], s[94:95]")
e(f"ds_write_b128 v27, v[56:59] offset:{AB}"); e(f"ds_write_b128 v27, v[60:63] offset:{AB+16}")
e("s_mov_b64 exec, s[22:23]")
e("s_waitcnt lgkmcnt(0)")
e("s_barrier")
def tail_reduce(CW, NS, TPG, SPT):
    RS = CW*64 + 32
    sh = {4: 2, 2: 1}[TPG]
    NG = CW*8
    e(f"v_cmp_gt_u32 vcc, {NG*TPG}, v13"); e("s_and_saveexec_b64 s[20:21], vcc")
    e("s_cbranch_execz L_p3skip")
    e(f"v_lshrrev_b32 v4, {sh}, v13")
    e("v_lshrrev_b32 v5, 3, v4"); e("v_lshlrev_b32 v5, 5, v5")
    e("v_and_b32 v6, 1, v4"); e("v_lshl_add_u32 v5, v6, 4, v5")
    e("v_bfe_u32 v6, v4, 1, 1"); e("v_lshl_add_u32 v5, v6, 3, v5")
    e("v_bfe_u32 v6, v4, 2, 1"); e(f"v_mul_u32_u24 v6, {CW*32}, v6"); e("v_add_u32 v5, v5, v6")
    e(f"v_and_b32 v6, {TPG-1}, v13"); e(f"v_mul_u32_u24 v7, {SPT*RS}, v6"); e("v_add_u32 v8, v5, v7")
    full = SPT if TPG*SPT == NS else SPT - 1
    for w in range(full): e(f"ds_read_b64 v[{32+2*w}:{33+2*w}], v8 offset:{AB+RS*w}")
    if full != SPT:
        e(f"v_mov_b32 v{32+2*full}, 0"); e(f"v_mov_b32 v{33+2*full}, 0")
        e("v_cmp_eq_u32 vcc, 0, v6"); e("s_and_saveexec_b64 s[22:23], vcc")
        e(f"ds_read_b64 v[{32+2*full}:{33+2*full}], v8 offset:{AB+RS*full}")
        e("s_mov_b64 exec, s[22:23]")
    e("s_waitcnt lgkmcnt(0)")
    n = SPT
    while n > 1:
        h = n // 2
        for w in range(h):
            for k in range(2): e(f"v_add_f32 v{32+2*w+k}, v{32+2*w+k}, v{32+2*(n-1-w)+k}")
        n = n - h
    nop(1)
    for k in range(2): dpp("v_add_f32", 32+k, "quad_perm:[1,0,3,2]")
    if TPG == 4:
        nop(1)
        for k in range(2): dpp("v_add_f32", 32+k, "quad_perm:[2,3,0,1]")
    gran(64, 32, 33)
    e("s_lshl_b32 s9, s2, 12"); e(f"s_add_u32 s9, s9, {OB3}"); e("v_lshlrev_b32 v3, 4, v4")
    e("v_cmp_eq_u32 vcc, 0, v6"); e("s_and_b64 exec, exec, vcc")
    e("buffer_store_dwordx4 v[64:67], v3, s[88:91], s9 offen sc1")
e("s_cmp_eq_u32 s62, 24"); e("s_cbranch_scc1 L_wide")
tail_reduce(16, 32, 4, 8)
e("s_branch L_p3skip")
lab("L_wide")
tail_reduce(24, 21, 2, 11)
lab("L_p3skip")
e("s_mov_b64 exec, s[20:21]")
lab("L_p3done")
stamp()
e(f"s_cmp_ge_u32 s2, {NRED}"); e("s_cbranch_scc1 L_fdone")
spin_lds(FC2, 4, 5)
e("s_lshr_b32 s10, s2, 4"); e("s_min_u32 s10, s10, 3"); e("s_lshl_b32 s11, s10, 4"); e("s_sub_u32 s11, s2, s11")
e("v_lshrrev_b32 v4, 3, v13"); e("v_lshrrev_b32 v6, 2, v4"); e("v_lshlrev_b32 v6, 3, v6")
e(f"ds_read_b64 v[72:73], v6 offset:{NT_T}")
e("v_lshlrev_b32 v4, 14, v4"); e("v_and_b32 v5, 7, v13"); e("v_lshl_add_u32 v4, v5, 4, v4")
e("s_lshl_b32 s9, s10, 12"); e("s_lshl_b32 s11, s11, 7"); e("s_add_u32 s9, s9, s11"); e(f"s_add_u32 s9, s9, {OB3}")
e("s_waitcnt lgkmcnt(0)")
poll(["buffer_load_dwordx4 v[48:51], v4, s[88:91], s9 offen sc1"], [48], 40, tags=[("v72", "v73")])
e("v_mov_b32 v32, v49"); e("v_mov_b32 v33, v50")
allreduce("v_add_f32", [32, 33], [64, 65], rors=(8,))
e("s_lshl_b32 s9, s7, 6"); e("v_lshl_add_u32 v5, v1, 3, s9")
e("v_cmp_gt_u32 vcc, 8, v1"); e("s_and_saveexec_b64 s[20:21], vcc")
e(f"ds_write_b64 v5, v[32:33] offset:{R3_T}")
e("s_mov_b64 exec, s[20:21]")
e("s_waitcnt lgkmcnt(0)")
e("s_barrier")
e("s_cmp_lg_u32 s7, 0"); e("s_cbranch_scc1 L_fdone")
e("v_and_b32 v5, 1, v1"); e("v_lshlrev_b32 v5, 3, v5")
for w in range(8):
    for q in range(4): e(f"ds_read_b64 v[{48+8*w+2*q}:{49+8*w+2*q}], v5 offset:{R3_T+64*w+16*q}")
for w in range(1, 8):
    e(f"s_waitcnt lgkmcnt({min(15, 28-4*w)})")
    for k in range(8): e(f"v_add_f32 v{48+k}, v{48+k}, v{48+8*w+k}")
for k in range(4): e(f"v_mov_b32 v{64+k}, v{52+k}")
def rne4(r):
    e(f"v_cvt_pk_bf16_f32 v80, v{r}, v{r+1}"); e(f"v_cvt_pk_bf16_f32 v81, v{r+2}, v{r+3}")
    e(f"v_lshlrev_b32 v{r}, 16, v80"); e(f"v_and_b32 v{r+1}, s25, v80"); e(f"v_lshlrev_b32 v{r+2}, 16, v81"); e(f"v_and_b32 v{r+3}, s25, v81")
rne4(48); rne4(64)
X, B2 = WR+32, WR+34
e(f"v_lshlrev_b32 v52, 16, v{X}"); e(f"v_and_b32 v53, s25, v{X}"); e(f"v_lshlrev_b32 v54, 16, v{X+1}"); e(f"v_and_b32 v55, s25, v{X+1}")
e(f"v_lshlrev_b32 v56, 16, v{B2}"); e(f"v_and_b32 v57, s25, v{B2}"); e(f"v_lshlrev_b32 v58, 16, v{B2+1}"); e(f"v_and_b32 v59, s25, v{B2+1}")
for k in range(4): e(f"v_add_f32 v{48+k}, v{52+k}, v{48+k}"); e(f"v_add_f32 v{64+k}, v{64+k}, v{56+k}")
rne4(48); rne4(64)
for k in range(4): e(f"v_add_f32 v{48+k}, v{48+k}, v{64+k}")
e("v_cvt_pk_bf16_f32 v80, v48, v49"); e("v_cvt_pk_bf16_f32 v81, v50, v51")
e("v_cmp_gt_u32 vcc, 2, v1"); e("s_and_saveexec_b64 s[20:21], vcc")
e(f"global_store_dwordx2 v{WR+36}, v[80:81], s[56:57]")
e("s_mov_b64 exec, s[20:21]")
dbgmax(8)
lab("L_fdone")
stamp()
stamp_store()
e("s_endpgm")
SB[0] = 160
lab("L_roles")
e("s_cmp_eq_u32 s3, 2"); e("s_cbranch_scc1 L_sync")
e("s_cmp_lg_u32 s3, 0"); e("s_cbranch_scc1 L_h")
nstamp[0] = ns0
srd(72, 42, 576*4096*2)
e("v_lshlrev_b32 v3, 4, v1"); e("global_load_dwordx4 v[4:7], v3, s[36:37]")
e("v_lshlrev_b32 v9, 1, v1"); e("global_load_ushort v8, v9, s[36:37] offset:1024")
e("v_lshrrev_b32 v19, 3, v1"); e("v_and_b32 v2, 7, v1")
e("v_lshlrev_b32 v116, 13, v19"); e("v_lshl_add_u32 v116, v2, 4, v116")
e("s_and_b32 s8, s2, 3"); e("s_mul_i32 s8, s8, 144")
e("s_lshl_b32 s9, s8, 13"); e("s_lshr_b32 s10, s2, 2"); e("s_lshl_b32 s10, s10, 7"); e("s_add_u32 s9, s9, s10")
for i in range(18):
    e(f"buffer_load_dwordx4 v[{32+4*i}:{35+4*i}], v116, s[72:75], s9 offen{NT}")
    if i < 17: e("s_add_u32 s9, s9, 65536")
e("s_barrier")
e("s_waitcnt vmcnt(18)")
stamp()
unpack9(4, 8)
layernorm(4, 8)
e(f"ds_write_b128 v3, v[4:7] offset:{XN_T}"); e(f"ds_write_b16 v9, v8 offset:{XN_T+1024}")
e("s_lshl_b32 s9, s8, 1"); e("v_lshl_add_u32 v2, v19, 1, s9")
e("s_waitcnt lgkmcnt(0)")
get_nonce(30, 114)
tile_products(XN_T, 16, 18)
stamp()
nop(2)
for k in range(4): e(f"v_permlane32_swap_b32 v{104+k}, v{108+k}")
nop(0)
for k in range(4): e(f"v_add_f32 v{104+k}, v{104+k}, v{108+k}")
nop(1)
for k in range(2): e(f"v_permlane16_swap_b32 v{104+k}, v{106+k}")
nop(0)
for k in range(2): e(f"v_add_f32 v{104+k}, v{104+k}, v{106+k}")
nop(1)
for k in range(2): dpp("v_add_f32", 104+k, "row_ror:8")
gran(12, 104, 105)
e("v_and_b32 v2, 7, v1"); e("v_lshlrev_b32 v2, 6, v2"); e("v_lshrrev_b32 v10, 5, v1"); e("v_lshl_add_u32 v2, v10, 5, v2")
e("v_bfe_u32 v10, v1, 4, 1"); e("v_lshl_add_u32 v2, v10, 4, v2")
e("s_lshl_b32 s9, s2, 13")
e("v_and_b32 v10, 8, v1"); e("v_cmp_eq_u32 vcc, 0, v10"); e("s_and_saveexec_b64 s[20:21], vcc")
e("buffer_store_dwordx4 v[12:15], v2, s[88:91], s9 offen sc1")
if BOARD:
    e("s_lshl_b32 s9, s4, 17"); e("s_lshl_b32 s10, s5, 4"); e("v_mov_b32 v2, s10")
    e("v_cmp_eq_u32 vcc, 0, v1"); e("s_and_b64 exec, exec, vcc")
    e("buffer_store_dwordx4 v[12:15], v2, s[88:91], s9 offen offset:3840 sc1")
e("s_mov_b64 exec, s[20:21]")
stamp()
dbgmax(13)
if BOARD:
    e("v_and_b32 v2, 15, v1"); e("v_lshlrev_b32 v2, 4, v2")
    poll(["buffer_load_dwordx4 v[32:35], v2, s[88:91], s9 offen offset:3840 sc1"], [32], 20, sleep=BSLEEP)
e("s_lshl_b32 s9, s4, 17"); e("v_and_b32 v3, 31, v1"); e("v_lshlrev_b32 v3, 4, v3"); e("v_lshrrev_b32 v10, 5, v1"); e("v_lshl_add_u32 v3, v10, 15, v3")
loads = []
for i2 in range(2):
    for rb in range(4):
        n = 4*i2 + rb
        loads.append(f"s_add_u32 s10, s9, {8192*(8*i2+rb)}")
        loads.append(f"buffer_load_dwordx4 v[{32+4*n}:{35+4*n}], v3, s[88:91], s10 offen sc1")
poll(loads, [32+4*x for x in range(8)], 20)
stamp()
for i2 in range(2):
    b0 = 32 + 16*i2
    for k in (1, 2): e(f"v_add_f32 v{b0+k}, v{b0+k}, v{b0+4+k}"); e(f"v_add_f32 v{b0+8+k}, v{b0+8+k}, v{b0+12+k}")
for i2 in range(2):
    b0 = 32 + 16*i2
    for k in (1, 2): e(f"v_add_f32 v{b0+k}, v{b0+k}, v{b0+8+k}")
e("v_cvt_pk_bf16_f32 v32, v33, v34"); e("v_cvt_pk_bf16_f32 v33, v49, v50")
e("v_lshlrev_b32 v4, 2, v1")
e(f"ds_write_b32 v4, v32 offset:{Q_T}"); e(f"ds_write_b32 v4, v33 offset:{Q_T+256}")
e("s_waitcnt lgkmcnt(0)")
set_flag(FQ, 10, 11)
stamp()
dbgmax(10)
e("v_lshrrev_b32 v4, 4, v1"); e("v_lshlrev_b32 v4, 14, v4")
e("v_and_b32 v5, 15, v1"); e("v_lshl_add_u32 v5, v5, 4, v4")
e("s_lshl_b32 s9, s4, 16"); e(f"s_add_u32 s9, s9, {OB2}")
e("s_lshr_b32 s11, s5, 2"); e("s_lshl_b32 s10, s11, 8"); e("s_add_u32 s10, s10, s9")
e("s_lshr_b32 s11, s5, 3"); e("s_lshl_b32 s11, s11, 4"); e("s_add_u32 s11, s11, s9")
spin_lds(FO, 10, 11, sleep=2)
loads = []
for i in range(4):
    loads.append(f"s_add_u32 s13, s10, {4096*i}"); loads.append(f"s_add_u32 s15, s11, {4096*i}")
    loads.append(f"buffer_load_dwordx4 v[{32+12*i}:{35+12*i}], v5, s[88:91], s13 offen sc1")
    loads.append(f"buffer_load_dwordx4 v[{36+12*i}:{39+12*i}], v5, s[88:91], s13 offen offset:1024 sc1")
    loads.append(f"buffer_load_dwordx4 v[{40+12*i}:{43+12*i}], v4, s[88:91], s15 offen offset:2048 sc1")
poll(loads, [32+4*x for x in range(12)], 20, sleep=X2SLEEP)
stamp()
e("v_max3_f32 v84, v41, v53, v65"); e("v_max_f32 v84, v84, v77")
allreduce("v_max_f32", [84], [85], rors=())
for i in range(4): e(f"v_sub_f32 v{41+12*i}, v{41+12*i}, v84")
for i in range(4): e(f"v_mul_f32 v{41+12*i}, s24, v{41+12*i}")
for i in range(4): e(f"v_exp_f32 v{41+12*i}, v{41+12*i}")
nop(0)
for n, k in enumerate((33, 34, 37, 38, 42)): e(f"v_mul_f32 v{86+n}, v41, v{k}")
for i in range(1, 4):
    for n, k in enumerate((33, 34, 37, 38, 42)): e(f"v_fmac_f32 v{86+n}, v{41+12*i}, v{k+12*i}")
allreduce("v_add_f32", [86, 87, 88, 89, 90], [91, 92, 93, 94, 95], rors=())
e("v_rcp_f32 v90, v90"); nop(0)
for k in range(4): e(f"v_mul_f32 v{86+k}, v90, v{86+k}")
e("v_cvt_pk_bf16_f32 v86, v86, v87"); e("v_cvt_pk_bf16_f32 v87, v88, v89")
e("v_cmp_gt_u32 vcc, 16, v1"); nop(1); e("v_cndmask_b32 v86, 0, v86, vcc"); e("v_cndmask_b32 v87, 0, v87, vcc")
e("v_lshlrev_b32 v4, 3, v1")
e("v_cmp_gt_u32 vcc, 24, v1"); e("s_and_saveexec_b64 s[20:21], vcc")
e(f"ds_write_b64 v4, v[86:87] offset:{OF_T}")
e("s_mov_b64 exec, s[20:21]")
e("s_waitcnt lgkmcnt(0)")
e("s_barrier")
dbgmax(12)
stamp()
stamp_store()
e("s_endpgm")

lab("L_h")
nstamp[0] = ns0
e("s_cmp_eq_u32 s3, 1"); e("s_cbranch_scc1 L_h1")
if PF:
    e("s_cmp_ge_u32 s2, 16"); e("s_cbranch_scc1 L_nopf")
    e("s_getpc_b64 s[10:11]")
    lab("L_pc")
    e(f"s_sub_u32 s10, s10, L_pc-{NAME}_kernel"); e("s_subb_u32 s11, s11, 0")
    e("v_lshlrev_b32 v3, 4, v1")
    e("s_mov_b32 s12, 0")
    lab("L_pf")
    e("global_load_dwordx4 v[4:7], v3, s[10:11]")
    e("v_add_u32 v3, 1024, v3"); e("s_add_u32 s12, s12, 1024")
    e(f"s_cmp_lt_u32 s12, L_end-{NAME}_kernel-1024"); e("s_cbranch_scc1 L_pf")
    lab("L_nopf")
e("s_barrier")
e("s_endpgm")
lab("L_h1")
srd(80, 48, 576*4608*2)
e("v_lshlrev_b32 v3, 4, v1"); e("global_load_dwordx4 v[4:7], v3, s[36:37]")
e("v_lshlrev_b32 v9, 1, v1"); e("global_load_ushort v8, v9, s[36:37] offset:1024")
e("v_mul_u32_u24 v140, 3641, v1"); e("v_lshrrev_b32 v140, 16, v140")
e("v_mul_u32_u24 v141, 18, v140"); e("v_sub_u32 v141, v1, v141")
e("s_movk_i32 s12, 9216"); e("v_mul_lo_u32 v142, v140, s12"); e("v_lshl_add_u32 v142, v141, 4, v142")
e(f"v_mov_b32 v2, {INV}"); e("v_cmp_gt_u32 vcc, 54, v1"); nop(1); e("v_cndmask_b32 v142, v2, v142, vcc")
e("s_and_b32 s8, s5, 7"); e("s_mul_i32 s8, s8, 72")
e("s_mul_i32 s9, s8, 9216"); e("s_mul_i32 s10, s4, 576"); e("s_add_u32 s9, s9, s10"); e("s_lshr_b32 s10, s5, 3"); e("s_mul_i32 s10, s10, 288"); e("s_add_u32 s9, s9, s10")
def hloads():
    for i in range(24):
        e(f"buffer_load_dwordx4 v[{32+4*i}:{35+4*i}], v142, s[80:83], s18 offen{NT}")
        if i < 23: e(f"s_add_u32 s18, s18, {3*9216}")
e("s_mov_b32 s18, s9")
if not HLATE: hloads()
e("s_barrier")
e(f"s_waitcnt vmcnt({0 if HLATE else 24})")
stamp()
LNBASE[0] = 144
unpack9(4, 8); layernorm(4, 8); unpack9(4, 8); layernorm(4, 8)
LNBASE[0] = 104
e(f"ds_write_b128 v3, v[4:7] offset:{Y_T}"); e(f"ds_write_b16 v9, v8 offset:{Y_T+1024}")
e("s_lshl_b32 s9, s8, 1"); e("v_min_u32 v2, 2, v140"); e("v_lshl_add_u32 v2, v2, 1, s9")
e("s_waitcnt lgkmcnt(0)")
get_nonce(30, 144)
if HLATE:
    spin_lds({"fv": FV, "fo": FO, "fq": FQ}[HLATE], 30, 31, sleep=4)
    hloads()
ACC = 128
tile_products(Y_T, 6, 24)
stamp()
e("v_lshlrev_b32 v2, 5, v1")
e(f"ds_write_b128 v2, v[{ACC}:{ACC+3}] offset:{HR}"); e(f"ds_write_b128 v2, v[{ACC+4}:{ACC+7}] offset:{HR+16}")
ACC = 104
e("v_lshlrev_b32 v2, 3, v1")
e("s_waitcnt lgkmcnt(0)")
for n in range(2):
    for sub in range(3): e(f"ds_read_b64 v[{32+8*n+2*sub}:{33+8*n+2*sub}], v2 offset:{HR+512*n+576*sub}")
e("s_waitcnt lgkmcnt(0)")
for n in range(2):
    for k in range(2): e(f"v_add_f32 v{32+8*n+k}, v{32+8*n+k}, v{34+8*n+k}"); e(f"v_add_f32 v{32+8*n+k}, v{32+8*n+k}, v{36+8*n+k}")
gran(12, 32, 33); gran(16, 40, 41)
e("v_lshlrev_b32 v2, 4, v1")
e("s_lshl_b32 s9, s2, 13")
e("buffer_store_dwordx4 v[12:15], v2, s[88:91], s9 offen offset:1024 sc1")
e("v_cmp_gt_u32 vcc, 8, v1"); e("s_and_saveexec_b64 s[20:21], vcc")
e("buffer_store_dwordx4 v[16:19], v2, s[88:91], s9 offen offset:2048 sc1")
e("s_mov_b64 exec, s[20:21]")
e("v_min_u32 v7, 35, v1")
e("s_lshr_b32 s8, s5, 2")
e("s_mul_i32 s9, s4, 576"); e("s_mul_i32 s10, s8, 144"); e("s_add_u32 s9, s9, s10"); e("v_lshl_add_u32 v6, v7, 2, s9")
e("global_load_dword v30, v6, s[50:51]")
stamp()
e("v_lshlrev_b32 v7, 4, v7")
e("s_lshl_b32 s9, s4, 17"); e("s_lshr_b32 s10, s5, 3"); e("s_lshl_b32 s10, s10, 16"); e("s_add_u32 s9, s9, s10")
e("s_and_b32 s10, s8, 1"); e("s_mul_i32 s10, s10, 576"); e("s_add_u32 s9, s9, s10")
spin_lds(FQ, 10, 11, sleep=4)
loads = []
for i in range(8):
    loads.append(f"s_add_u32 s10, s9, {8192*i + 1024}")
    loads.append(f"buffer_load_dwordx4 v[{32+4*i}:{35+4*i}], v7, s[88:91], s10 offen sc1")
poll(loads, [32+4*i for i in range(8)], 20, sleep=2)
stamp()
for st in (4, 2, 1):
    for p in range(st):
        for k in (1, 2): e(f"v_add_f32 v{32+4*p+k}, v{32+4*p+k}, v{32+4*(p+st)+k}")
e("v_cvt_pk_bf16_f32 v35, v33, v34"); e("v_lshlrev_b32 v33, 16, v35"); e("v_and_b32 v34, s25, v35")
e("v_lshlrev_b32 v36, 16, v30"); e("v_and_b32 v37, s25, v30")
e("v_add_f32 v33, v33, v36"); e("v_add_f32 v34, v34, v37")
e("v_cvt_pk_bf16_f32 v35, v33, v34"); e("v_lshlrev_b32 v33, 16, v35"); e("v_and_b32 v34, s25, v35")
for r in (33, 34):
    t = r + 7
    u = r + 9
    e(f"v_mul_f32 v{t}, v{r}, v{r}"); e(f"v_mul_f32 v{t}, v{t}, v{r}"); e(f"v_mov_b32 v{u}, v{r}"); e(f"v_fmac_f32 v{u}, 0x3d372713, v{t}")
    e(f"v_mul_f32 v{u}, 0x40135761, v{u}"); e(f"v_exp_f32 v{u}, v{u}"); nop(0); e(f"v_add_f32 v{u}, 1.0, v{u}"); e(f"v_rcp_f32 v{u}, v{u}"); nop(0)
    e(f"v_fma_f32 v{u}, -2.0, v{u}, 1.0")
    e(f"v_add_f32 v{u}, 1.0, v{u}"); e(f"v_mul_f32 v{t}, 0.5, v{r}"); e(f"v_mul_f32 v{u}, v{t}, v{u}")
e("v_cvt_pk_bf16_f32 v35, v42, v43")
e("v_cmp_gt_u32 vcc, 36, v1"); nop(1); e("v_cndmask_b32 v35, 0, v35, vcc")
e("v_lshlrev_b32 v4, 2, v1")
e("v_cmp_gt_u32 vcc, 48, v1"); e("s_and_saveexec_b64 s[20:21], vcc")
e(f"ds_write_b32 v4, v35 offset:{H_T}")
e("s_mov_b64 exec, s[20:21]")
e("s_waitcnt lgkmcnt(0)")
set_flag(FH, 10, 11)
stamp()
stamp_store()
e("s_endpgm")

lab("L_sync")
nstamp[0] = ns0
dbgmax(9, inv=True); dbgmax(14)
e("s_memrealtime s[16:17]")
e("s_and_b32 s9, s4, 3"); e("s_lshl_b32 s9, s9, 6"); e("s_lshr_b32 s10, s4, 2"); e("s_lshl_b32 s10, s10, 3"); e("s_add_u32 s9, s9, s10")
e("v_mov_b32 v2, s9"); e("v_mov_b32 v6, 0"); e("v_mov_b32 v7, 0")
for k in range(4): e(f"v_mov_b32 v{8+k}, 0")
e(f"v_mov_b32 v12, {FLG}")
e("s_waitcnt lgkmcnt(0)")
e("s_or_b32 s16, s16, 1")
e("v_mov_b32 v4, s16"); e("v_mov_b32 v5, s17")
e("v_cmp_eq_u32 vcc, 0, v1"); e("s_and_saveexec_b64 s[20:21], vcc")
e("global_atomic_cmpswap_x2 v[14:15], v2, v[4:7], s[58:59] sc0")
e("s_mov_b64 exec, s[20:21]")
e("ds_write_b128 v12, v[8:11]"); e("ds_write_b128 v12, v[8:11] offset:16")
e("s_waitcnt lgkmcnt(0)")
e("s_barrier")
e("s_waitcnt vmcnt(0)")
nop(0)
e("v_readfirstlane_b32 s10, v14"); e("v_readfirstlane_b32 s11, v15")
e("s_cmp_eq_u32 s10, 0"); e("s_cselect_b32 s16, s16, s10"); e("s_cselect_b32 s17, s17, s11")
e("v_mov_b32 v4, s16"); e("v_mov_b32 v5, s17"); e(f"v_mov_b32 v12, {NONCE}")
e("ds_write_b64 v12, v[4:5]")
e("s_waitcnt lgkmcnt(0)")
stamp()
e(f"s_cmp_ge_u32 s2, {NRED}"); e("s_cbranch_scc1 L_w2end")
spin_lds(FQ, 12, 13, sleep=8)
e("v_and_b32 v2, 15, v1"); e("v_and_b32 v3, 3, v2"); e("v_lshlrev_b32 v3, 6, v3"); e("v_lshrrev_b32 v4, 2, v2"); e("v_lshl_add_u32 v3, v4, 3, v3")
l_, d_ = newlab("np"), newlab("npd")
e("s_mov_b32 s12, 0")
lab(l_)
e("global_load_dwordx2 v[4:5], v3, s[58:59] sc1")
e("s_add_u32 s12, s12, 1")
e("s_waitcnt vmcnt(0)")
e("v_cmp_eq_u32 vcc, 0, v4")
e(f"s_cmp_gt_u32 s12, {SPINMAX}"); e(f"s_cbranch_scc1 {d_}")
e(f"s_cbranch_vccz {d_}")
e("s_sleep 8"); e(f"s_branch {l_}")
lab(d_)
e("v_lshlrev_b32 v2, 3, v2")
e(f"ds_write_b64 v2, v[4:5] offset:{NT_T}")
e("s_waitcnt lgkmcnt(0)")
set_flag(FC2, 10, 11)
lab("L_w2end")
stamp()
stamp_store()
e("s_endpgm")

lab("L_end")
e("s_endpgm")
L += ['.section .rodata,"a"', ".p2align 6", f".amdhsa_kernel {NAME}_kernel", "  .amdhsa_next_free_vgpr 168", "  .amdhsa_next_free_sgpr 102",
      "  .amdhsa_accum_offset 168", "  .amdhsa_group_segment_fixed_size 0", "  .amdhsa_kernarg_size 104", "  .amdhsa_user_sgpr_count 2",
      "  .amdhsa_user_sgpr_kernarg_segment_ptr 1", "  .amdhsa_system_sgpr_workgroup_id_x 1", ".end_amdhsa_kernel"]
open(out, "w").write("\n".join(L) + "\n")
```

```python
import sys
NAME = "parallel_sum__sliding_block_cached__mixer_channel_mlp__decode"
out = sys.argv[1]
opts = set(sys.argv[2:])
PROF = "prof" in opts
NT = " nt"
SPINMAX = 400000
def optint(p, d):
    for o in opts:
        if o.startswith(p) and o[len(p):].isdigit(): return int(o[len(p):])
    return d
THR = optint("thr", 0)
PTH = optint("pth", 0)
X2SLEEP = optint("x2s", 2)
WFO = "wfo" in opts
BOARD = "noboard" not in opts
BSLEEP = optint("bs", 2)
PF = "nopf" not in opts
DBG = "dbgt" in opts
DBGW = optint("dw", -1)
DBGWG = optint("dg", 0)
EARLY = "noearly" not in opts
WLATE = "wlate" in opts or WFO
HLATE = "fv" if "hfv" in opts else ("fo" if "hfo" in opts else ("fq" if "hfq" in opts else ""))

L = []
def e(s): L.append("    " + s)
def lab(s): L.append(s + ":")
def nop(n): e(f"s_nop {n}")

OB1, OB2, OB3 = 0, 2 << 20, 4 << 20
INV = 0x40000000
NRED = 72
XN_T = 0
Y_T = 1216
Q_T = 2432
FLG = 3072
CNT, FQ, FC2, FO, NONCE, FV, FH = FLG, FLG+4, FLG+8, FLG+12, FLG+16, FLG+24, FLG+28
ML_T = 3136
NT_T = 3264
PW = 3456
R3_T = 4480
H_T = 4992
OF_T = 5184
HR = 47616
OW = 5632
AB = 13824
LDS_BYTES = 49664
def TB(j, t): return 80 + 4*j + t

nstamp = [0]
SB = [160]
def stamp():
    if not PROF: return
    k = nstamp[0]; nstamp[0] += 1
    assert k < 8
    e("s_memrealtime s[92:93]"); e("s_waitcnt lgkmcnt(0)"); e(f"v_mov_b32 v{SB[0]+k}, s92")
def stamp_store():
    if not PROF: return
    if DBGW >= 0:
        l = newlab("nd")
        e(f"s_cmp_lg_u32 s2, {DBGWG}"); e(f"s_cbranch_scc1 {l}"); e(f"s_cmp_lg_u32 s3, {DBGW}"); e(f"s_cbranch_scc1 {l}")
        e("v_mov_b32 v2, 32")
        e("v_cmp_eq_u32 vcc, 0, v1"); e("s_and_saveexec_b64 s[20:21], vcc")
        e(f"global_store_dwordx4 v2, v[{SB[0]}:{SB[0]+3}], s[58:59]"); e(f"global_store_dwordx4 v2, v[{SB[0]+4}:{SB[0]+7}], s[58:59] offset:16")
        e("s_mov_b64 exec, s[20:21]")
        lab(l)
        return
    e("s_lshl_b32 s6, s2, 4"); e("s_add_u32 s6, s6, s3"); e("s_lshl_b32 s6, s6, 6"); e(f"s_add_u32 s6, s6, {16<<20}")
    e("v_mov_b32 v2, s6")
    e("v_cmp_eq_u32 vcc, 0, v1"); e("s_and_saveexec_b64 s[20:21], vcc")
    for q in range(2):
        e(f"buffer_store_dwordx4 v[{SB[0]+4*q}:{SB[0]+3+4*q}], v2, s[88:91], 0 offen offset:{16*q}")
    e("s_mov_b64 exec, s[20:21]")

def dbgmax(word, inv=False):
    if not DBG: return
    e("s_memrealtime s[92:93]"); e("s_waitcnt lgkmcnt(0)")
    if inv: e("s_not_b32 s92, s92")
    e("v_mov_b32 v166, s92"); e(f"v_mov_b32 v167, {4*word}")
    e("v_cmp_eq_u32 vcc, 0, v1"); e("s_and_saveexec_b64 s[96:97], vcc")
    e("global_atomic_umax v167, v166, s[58:59]")
    e("s_mov_b64 exec, s[96:97]")

def dpp(op, d, ctrl):
    e(f"{op}_dpp v{d}, v{d}, v{d} {ctrl} row_mask:0xf bank_mask:0xf")

def allreduce(op, regs, tmps, rors=(8, 4, 2, 1), rows=True):
    for r in rors:
        nop(1)
        for v in regs: dpp(op, v, f"row_ror:{r}")
    if rows:
        for sw in ("v_permlane16_swap_b32", "v_permlane32_swap_b32"):
            for v, t in zip(regs, tmps): e(f"v_mov_b32 v{t}, v{v}")
            nop(1)
            for v, t in zip(regs, tmps): e(f"{sw} v{v}, v{t}")
            nop(0)
            for v, t in zip(regs, tmps): e(f"{op} v{v}, v{v}, v{t}")

lbl_id = [0]
def newlab(p):
    lbl_id[0] += 1
    return f"L_{p}_{lbl_id[0]}"

def spin_lds(addr, va, vd, sleep=1):
    l, d = newlab("spin"), newlab("spind")
    e(f"v_mov_b32 v{va}, {addr}"); e("s_mov_b32 s12, 0")
    lab(l)
    e(f"ds_read_b32 v{vd}, v{va}")
    e("s_add_u32 s12, s12, 1")
    e("s_waitcnt lgkmcnt(0)")
    e(f"v_cmp_ne_u32 vcc, 0, v{vd}")
    e(f"s_cmp_gt_u32 s12, {SPINMAX*4}"); e(f"s_cbranch_scc1 {d}")
    e(f"s_cbranch_vccnz {d}")
    e(f"s_sleep {sleep}")
    e(f"s_branch {l}")
    lab(d)

def get_nonce(va, vd):
    l, d = newlab("gn"), newlab("gnd")
    e(f"v_mov_b32 v{va}, {NONCE}"); e("s_mov_b32 s12, 0")
    lab(l)
    e(f"ds_read_b64 v[{vd}:{vd+1}], v{va}")
    e("s_add_u32 s12, s12, 1")
    e("s_waitcnt lgkmcnt(0)")
    e(f"v_cmp_ne_u32 vcc, 0, v{vd}")
    e(f"s_cmp_gt_u32 s12, {SPINMAX*4}"); e(f"s_cbranch_scc1 {d}")
    e(f"s_cbranch_vccnz {d}")
    e("s_sleep 1")
    e(f"s_branch {l}")
    lab(d)
    e(f"v_readfirstlane_b32 s16, v{vd}"); e(f"v_readfirstlane_b32 s17, v{vd+1}")
    nop(1)

def set_flag(addr, va, vd):
    e(f"v_mov_b32 v{va}, {addr}"); e(f"v_mov_b32 v{vd}, 1"); e(f"ds_write_b32 v{va}, v{vd}"); e("s_waitcnt lgkmcnt(0)")

def gran(dst, a, b):
    e(f"v_mov_b32 v{dst}, s16"); e(f"v_mov_b32 v{dst+1}, v{a}"); e(f"v_mov_b32 v{dst+2}, v{b}"); e(f"v_mov_b32 v{dst+3}, s17")

def poll(loads, grans, t0, tags=None, sleep=0):
    l, d = newlab("poll"), newlab("polld")
    e("s_mov_b32 s12, 0")
    lab(l)
    for x in loads: e(x)
    e("s_add_u32 s12, s12, 1")
    e("s_waitcnt vmcnt(0)")
    for n, g in enumerate(grans):
        tl, th = ("s16", "s17") if tags is None else tags[n]
        e(f"v_xor_b32 v{t0+1}, {tl}, v{g}"); e(f"v_xor_b32 v{t0+2}, {th}, v{g+3}")
        if n == 0: e(f"v_or_b32 v{t0}, v{t0+1}, v{t0+2}")
        else: e(f"v_or3_b32 v{t0}, v{t0}, v{t0+1}, v{t0+2}")
    e(f"v_cmp_ne_u32 vcc, 0, v{t0}")
    e(f"s_cmp_gt_u32 s12, {SPINMAX}"); e(f"s_cbranch_scc1 {d}")
    e(f"s_cbranch_vccz {d}")
    if sleep: e(f"s_sleep {sleep}")
    e(f"s_branch {l}")
    lab(d)

nload = [0]
def thr():
    i = nload[0]; nload[0] += 1
    if i >= 16 and WLATE: return
    if PTH:
        if i >= PTH: e(f"s_waitcnt vmcnt({PTH-1})")
        return
    if not THR or i < THR: return
    l = newlab("thr")
    e("s_cmp_lg_u32 s14, 0"); e(f"s_cbranch_scc1 {l}")
    e("ds_read_b32 v9, v8")
    e("s_waitcnt lgkmcnt(0)")
    nop(0)
    e("v_readfirstlane_b32 s14, v9")
    e("s_cmp_lg_u32 s14, 0"); e(f"s_cbranch_scc1 {l}")
    e(f"s_waitcnt vmcnt({THR-1})")
    lab(l)

def srd(d, p, n):
    e(f"s_mov_b32 s{d}, s{p}"); e(f"s_and_b32 s{d+1}, s{p+1}, 0xffff"); e(f"s_mov_b32 s{d+2}, {n}"); e(f"s_mov_b32 s{d+3}, 0x20000")

def unpack9(p, p8):
    for k in range(4):
        e(f"v_lshlrev_b32 v{10+2*k}, 16, v{p+k}"); e(f"v_and_b32 v{11+2*k}, s25, v{p+k}")
    e(f"v_lshlrev_b32 v18, 16, v{p8}")
LNBASE = [104]
def layernorm(outp, out8):
    D = 20
    e(f"v_add_f32 v{LNBASE[0]+0}, v10, v11"); e(f"v_add_f32 v{LNBASE[0]+1}, v12, v13"); e(f"v_add_f32 v{LNBASE[0]+2}, v14, v15"); e(f"v_add_f32 v{LNBASE[0]+3}, v16, v17")
    e(f"v_add_f32 v{LNBASE[0]+0}, v{LNBASE[0]+0}, v{LNBASE[0]+1}"); e(f"v_add_f32 v{LNBASE[0]+2}, v{LNBASE[0]+2}, v{LNBASE[0]+3}"); e(f"v_add_f32 v{LNBASE[0]+0}, v{LNBASE[0]+0}, v18"); e(f"v_add_f32 v{LNBASE[0]+0}, v{LNBASE[0]+0}, v{LNBASE[0]+2}")
    allreduce(f"v_add_f32", [LNBASE[0]], [LNBASE[0]+1])
    e(f"v_mul_f32 v{LNBASE[0]+0}, 0x3ae38e39, v{LNBASE[0]+0}")
    for k in range(9): e(f"v_sub_f32 v{D+k}, v{10+k}, v{LNBASE[0]+0}")
    e(f"v_mul_f32 v{LNBASE[0]+2}, v{D}, v{D}"); e(f"v_mul_f32 v{LNBASE[0]+3}, v{D+1}, v{D+1}"); e(f"v_mul_f32 v{LNBASE[0]+4}, v{D+2}, v{D+2}")
    for k in range(3, 9): e(f"v_fmac_f32 v{LNBASE[0]+2+k%3}, v{D+k}, v{D+k}")
    e(f"v_add_f32 v{LNBASE[0]+2}, v{LNBASE[0]+2}, v{LNBASE[0]+3}"); e(f"v_add_f32 v{LNBASE[0]+2}, v{LNBASE[0]+2}, v{LNBASE[0]+4}")
    allreduce(f"v_add_f32", [LNBASE[0]+2], [LNBASE[0]+1])
    e(f"v_mul_f32 v{LNBASE[0]+2}, 0x3ae38e39, v{LNBASE[0]+2}")
    e(f"v_cvt_pk_bf16_f32 v{LNBASE[0]+1}, v{LNBASE[0]+0}, v{LNBASE[0]+2}")
    e(f"v_lshlrev_b32 v{LNBASE[0]+0}, 16, v{LNBASE[0]+1}"); e(f"v_and_b32 v{LNBASE[0]+2}, s25, v{LNBASE[0]+1}")
    e(f"v_add_f32 v{LNBASE[0]+2}, 0x3727c5ac, v{LNBASE[0]+2}")
    e(f"v_cvt_pk_bf16_f32 v{LNBASE[0]+2}, v{LNBASE[0]+2}, v{LNBASE[0]+2}"); e(f"v_and_b32 v{LNBASE[0]+2}, s25, v{LNBASE[0]+2}")
    e(f"v_sqrt_f32 v{LNBASE[0]+2}, v{LNBASE[0]+2}"); nop(0)
    e(f"v_cvt_pk_bf16_f32 v{LNBASE[0]+2}, v{LNBASE[0]+2}, v{LNBASE[0]+2}"); e(f"v_and_b32 v{LNBASE[0]+2}, s25, v{LNBASE[0]+2}")
    e(f"v_rcp_f32 v{LNBASE[0]+3}, v{LNBASE[0]+2}")
    for k in range(9): e(f"v_sub_f32 v{D+k}, v{10+k}, v{LNBASE[0]+0}")
    for k in range(4): e(f"v_cvt_pk_bf16_f32 v{LNBASE[0]+4+k}, v{D+2*k}, v{D+1+2*k}")
    e(f"v_cvt_pk_bf16_f32 v{LNBASE[0]+8}, v{D+8}, v{D+8}")
    for k in range(4):
        e(f"v_lshlrev_b32 v{D+2*k}, 16, v{LNBASE[0]+4+k}"); e(f"v_and_b32 v{D+1+2*k}, s25, v{LNBASE[0]+4+k}")
    e(f"v_lshlrev_b32 v{D+8}, 16, v{LNBASE[0]+8}")
    for k in range(9): e(f"v_mul_f32 v{10+k}, v{D+k}, v{LNBASE[0]+3}")
    for k in range(9): e(f"v_fma_f32 v{D+k}, -v{10+k}, v{LNBASE[0]+2}, v{D+k}")
    for k in range(9): e(f"v_fmac_f32 v{10+k}, v{D+k}, v{LNBASE[0]+3}")
    for k in range(4): e(f"v_cvt_pk_bf16_f32 v{outp+k}, v{10+2*k}, v{11+2*k}")
    e(f"v_cvt_pk_bf16_f32 v{out8}, v18, v18")

def tile_products(tbl, step, n):
    for c0 in range(0, n, 12):
        m = min(12, n - c0)
        for i in range(m): e(f"ds_read_u16 v{10+i}, v2 offset:{tbl+step*(c0+i)}")
        for i in range(m):
            e(f"s_waitcnt lgkmcnt({m-1-i})")
            e(f"v_lshlrev_b32 v{28+(i&1)}, 16, v{10+i}")
            e(f"s_waitcnt vmcnt({n-1-c0-i})")
            for k in range(4):
                for z in range(2):
                    d = ACC + 2*k + z
                    c = "0" if c0 + i == 0 else f"v{d}"
                    e(f"v_dot2_f32_bf16 v{d}, v{32+4*(c0+i)+k}, v{10+i if z == 0 else 28+(i&1)}, {c}")
        nop(2)
ACC = 104

L.append(f"; @launch grid=(256,1,1) block=(768,1,1) lds={LDS_BYTES}")
L.append('.amdgcn_target "amdgcn-amd-amdhsa--gfx950"')
L.append(".text"); L.append(f".globl {NAME}_kernel"); L.append(".p2align 8")
L.append(f".type {NAME}_kernel,@function"); lab(f"{NAME}_kernel")
e("s_cmp_ge_u32 s2, 256"); e("s_cbranch_scc1 L_end")
e("s_load_dwordx16 s[36:51], s[0:1], 0"); e("s_load_dwordx8 s[52:59], s[0:1], 64"); e("s_load_dwordx2 s[60:61], s[0:1], 96")
e("v_and_b32 v1, 63, v0"); e("v_lshrrev_b32 v2, 6, v0"); nop(1); e("v_readfirstlane_b32 s3, v2")
e("s_lshr_b32 s4, s2, 4"); e("s_and_b32 s5, s2, 15")
e("s_mov_b32 s24, 0x3fb8aa3b"); e("s_mov_b32 s25, 0xffff0000")
e("s_waitcnt lgkmcnt(0)")
srd(88, 60, 1 << 30)
stamp()
if PROF: e("v_mov_b32 v112, v160")
ns0 = nstamp[0]
e("s_cmp_lt_u32 s3, 4"); e("s_cbranch_scc1 L_roles")

lab("L_kv")
nstamp[0] = ns0
SB[0] = 112
srd(64, 38, 268435456)
e("s_sub_u32 s7, s3, 4")
e("s_lshl_b32 s9, s4, 24"); e("s_lshl_b32 s10, s5, 16"); e("s_add_u32 s9, s9, s10"); e(f"s_add_u32 s9, s9, {61440*256}")
e("s_lshl_b32 s10, s7, 13"); e("s_add_u32 s9, s9, s10"); e("s_add_u32 s10, s9, 4096")
e("v_and_b32 v10, 15, v1"); e("v_lshrrev_b32 v11, 4, v1")
e("v_lshlrev_b32 v3, 8, v10"); e("v_lshl_add_u32 v3, v11, 4, v3")
e("v_lshlrev_b32 v12, 11, v11"); e("v_lshl_add_u32 v12, v10, 4, v12")
KR, VR = 16, 48
e("s_mov_b32 s14, 0"); e(f"v_mov_b32 v8, {FQ}")
NE = (THR if THR else 3) if EARLY else 0
for i in range(8):
    if i == NE:
        srd(68, 40, 268435456); srd(76, 44, 4096*576*2); srd(84, 52, 4608*576*2)
        e("s_barrier")
    thr()
    e(f"buffer_load_dwordx4 v[{KR+4*i}:{KR+3+4*i}], v12, s[64:67], s9 offen offset:{i*256}{NT}")
for i in range(8):
    thr()
    e(f"buffer_load_dwordx4 v[{VR+4*i}:{VR+3+4*i}], v12, s[68:71], s9 offen offset:{i*256}{NT}")
WR = 128
def wloads():
    e("v_subrev_u32 v13, 256, v0")
    e("s_and_b32 s15, s2, 3"); e("s_cmp_eq_u32 s15, 3")
    e("s_cselect_b32 s62, 24, 16"); e("s_cselect_b32 s63, 21, 32"); e("s_movk_i32 s12, 4096"); e("s_cselect_b32 s12, 2731, s12")
    e("v_mul_lo_u32 v14, v13, s12"); e("v_lshrrev_b32 v14, 16, v14")
    e("v_mul_lo_u32 v15, v14, s62"); e("v_sub_u32 v15, v13, v15")
    e("v_mul_u32_u24 v4, 1152, v14"); e("v_lshl_add_u32 v4, v15, 4, v4")
    e(f"v_mov_b32 v7, {INV}"); e("v_cmp_gt_u32 vcc, s63, v14"); nop(1); e("v_cndmask_b32 v4, v7, v4, vcc")
    e("s_lshr_b32 s13, s2, 2"); e("s_lshl_b32 s15, s15, 8"); e("s_mul_i32 s11, s63, 1152")
    for mtx, rows, sr, base in ((0, 72, 84, 0), (1, 64, 76, 16)):
        e(f"s_mul_i32 s9, s13, {rows*1152}"); e("s_add_u32 s9, s9, s15"); e("v_mov_b32 v5, v14")
        for i in range(4):
            e(f"v_cmp_gt_u32 vcc, {rows}, v5"); nop(1); e("v_cndmask_b32 v6, v7, v4, vcc")
            thr(); e(f"buffer_load_dwordx4 v[{WR+base+4*i}:{WR+base+3+4*i}], v6, s[{sr}:{sr+3}], s9 offen{NT}")
            if i < 3: e("s_add_u32 s9, s9, s11"); e("v_add_u32 v5, s63, v5")
    e(f"s_min_u32 s13, s2, {NRED-1}"); e("s_lshl_b32 s13, s13, 4"); e("v_and_b32 v6, 1, v1"); e("v_lshlrev_b32 v6, 3, v6"); e(f"v_add_u32 v{WR+36}, s13, v6")
    e(f"global_load_dwordx2 v[{WR+32}:{WR+33}], v{WR+36}, s[36:37]"); e(f"global_load_dwordx2 v[{WR+34}:{WR+35}], v{WR+36}, s[54:55]")

if not WLATE: wloads()
e("v_cmp_eq_u32 s[28:29], 1, v11"); e("v_cmp_eq_u32 s[30:31], 2, v11"); e("v_cmp_eq_u32 s[32:33], 3, v11")
e("s_mov_b32 s27, 0x3db504f3"); e("s_mov_b32 s34, 0x05040100"); e("s_mov_b32 s35, 0x07060302")
spin_lds(FQ, 4, 5, sleep=2)
get_nonce(4, 6)
stamp()
e("v_lshlrev_b32 v4, 4, v10")
e(f"ds_read_b128 v[96:99], v4 offset:{Q_T}"); e(f"ds_read_b128 v[100:103], v4 offset:{Q_T+256}")
e("v_and_b32 v4, 1, v1"); e("v_cmp_eq_u32 s[18:19], 1, v4")
e("s_waitcnt lgkmcnt(0)")
SR = 80
for i in range(8):
    e(f"s_waitcnt vmcnt({(8 if WLATE else 18)+7-i})")
    if i == 0: stamp()
    for k in range(4):
        for h in range(2):
            d = SR + 2*i + h
            c = "0" if k == 0 else f"v{d}"
            e(f"v_dot2_f32_bf16 v{d}, v{KR+4*i+k}, v{96+4*h+k}, {c}")
nop(2)
allreduce("v_add_f32", [SR + x for x in range(16)], [], rows=False)
for i in range(8): e(f"v_cvt_pk_bf16_f32 v{16+i}, v{SR+2*i}, v{SR+2*i+1}")
for i in range(8):
    e(f"v_lshlrev_b32 v{SR+2*i}, 16, v{16+i}"); e(f"v_and_b32 v{SR+2*i+1}, s25, v{16+i}")
for x in range(16): e(f"v_mul_f32 v{SR+x}, s27, v{SR+x}")
for i in range(8): e(f"v_cvt_pk_bf16_f32 v{16+i}, v{SR+2*i}, v{SR+2*i+1}")
for i in range(8):
    e(f"v_lshlrev_b32 v{SR+2*i}, 16, v{16+i}"); e(f"v_and_b32 v{SR+2*i+1}, s25, v{16+i}")
for h in range(2): e(f"v_max3_f32 v{24+h}, v{SR+h}, v{SR+2+h}, v{SR+4+h}")
for h in range(2): e(f"v_max3_f32 v{26+h}, v{SR+6+h}, v{SR+8+h}, v{SR+10+h}")
for h in range(2): e(f"v_max3_f32 v{24+h}, v{24+h}, v{SR+12+h}, v{SR+14+h}")
for h in range(2): e(f"v_max_f32 v{24+h}, v{24+h}, v{26+h}")
allreduce("v_max_f32", [24, 25], [26, 27], rors=())
for x in range(16): e(f"v_sub_f32 v{SR+x}, v{SR+x}, v{24+(x&1)}")
for x in range(16): e(f"v_mul_f32 v{SR+x}, s24, v{SR+x}")
for x in range(16): e(f"v_exp_f32 v{SR+x}, v{SR+x}")
nop(0)
for h in range(2): e(f"v_add_f32 v{28+h}, v{SR+h}, v{SR+2+h}"); e(f"v_add_f32 v{30+h}, v{SR+4+h}, v{SR+6+h}")
for h in range(2): e(f"v_add_f32 v{32+h}, v{SR+8+h}, v{SR+10+h}"); e(f"v_add_f32 v{34+h}, v{SR+12+h}, v{SR+14+h}")
for h in range(2): e(f"v_add_f32 v{28+h}, v{28+h}, v{30+h}"); e(f"v_add_f32 v{32+h}, v{32+h}, v{34+h}")
for h in range(2): e(f"v_add_f32 v{28+h}, v{28+h}, v{32+h}")
for t in range(4):
    e(f"v_cvt_pk_bf16_f32 v{16+t}, v{SR+4*t}, v{SR+4*t+2}"); e(f"v_cvt_pk_bf16_f32 v{36+t}, v{SR+4*t+1}, v{SR+4*t+3}")
for t in range(4): e(f"v_cndmask_b32 v{20+t}, v{16+t}, v{36+t}, s[18:19]")
allreduce("v_add_f32", [28, 29], [26, 27], rors=())
for t in range(4):
    e(f"s_waitcnt vmcnt({(6 if WLATE else 16)-2*t})")
    if t == 3 and HLATE == "fv":
        e(f"v_mov_b32 v4, {FV}"); e("v_mov_b32 v7, 1"); e("ds_write_b32 v4, v7")
    if WLATE and not WFO and t == 3: wloads()
    for d2 in range(4):
        lo, hi = VR+4*(2*t)+d2, VR+4*(2*t+1)+d2
        e(f"v_perm_b32 v{TB(2*d2, t)}, v{hi}, v{lo}, s34")
        e(f"v_perm_b32 v{TB(2*d2+1, t)}, v{hi}, v{lo}, s35")
nop(1)
for j in range(8):
    e(f"v_mfma_f32_16x16x32_bf16 v[{VR+4*j}:{VR+3+4*j}], v[20:23], v[{TB(j,0)}:{TB(j,3)}], 0")
stamp()
nop(7); nop(1)
for k in range(4): e(f"v_cndmask_b32 v{32+k}, v{VR+4*k}, v{VR+4*(k+4)}, s[28:29]")
for k in range(4): e(f"v_cndmask_b32 v{32+k}, v{32+k}, v{VR+4*k+1}, s[30:31]")
for k in range(4): e(f"v_cndmask_b32 v{32+k}, v{32+k}, v{VR+4*(k+4)+1}, s[32:33]")
e("v_lshrrev_b32 v5, 1, v11"); e("v_lshlrev_b32 v5, 9, v5"); e("v_lshl_add_u32 v5, v10, 5, v5")
e("v_and_b32 v6, 1, v11"); e("v_lshl_add_u32 v5, v6, 4, v5")
e("s_lshl_b32 s11, s7, 10"); e("v_add_u32 v5, s11, v5")
e(f"ds_write_b128 v5, v[32:35] offset:{OW}")
e("v_mov_b32 v36, v24"); e("v_mov_b32 v37, v28"); e("v_mov_b32 v38, v25"); e("v_mov_b32 v39, v29")
e("s_lshl_b32 s11, s7, 4"); e("v_mov_b32 v6, s11")
e(f"ds_write_b128 v6, v[36:39] offset:{ML_T}")
e("v_mov_b32 v7, 1"); e(f"v_mov_b32 v6, {CNT}")
e("s_waitcnt lgkmcnt(0)")
e("v_cmp_eq_u32 vcc, 0, v1"); e("s_and_saveexec_b64 s[20:21], vcc")
e("ds_add_rtn_u32 v7, v6, v7")
e("s_waitcnt lgkmcnt(0)")
e("s_mov_b64 exec, s[20:21]")
nop(0)
e("v_readfirstlane_b32 s11, v7")
e("s_cmp_lg_u32 s11, 7"); e("s_cbranch_scc1 L_kv_done")
e("v_mov_b32 v6, 0")
for w in range(8): e(f"ds_read_b128 v[{16+4*w}:{19+4*w}], v6 offset:{ML_T+16*w}")
e("v_lshlrev_b32 v5, 4, v1")
for w in range(8): e(f"ds_read_b128 v[{48+4*w}:{51+4*w}], v5 offset:{OW+1024*w}")
e("v_cmp_gt_u32 vcc, 32, v1")
e("s_waitcnt lgkmcnt(8)")
nop(0)
for w in range(8):
    e(f"v_cndmask_b32 v{80+w}, v{18+4*w}, v{16+4*w}, vcc")
    e(f"v_cndmask_b32 v{88+w}, v{19+4*w}, v{17+4*w}, vcc")
e("v_max3_f32 v8, v80, v81, v82"); e("v_max3_f32 v9, v83, v84, v85"); e("v_max3_f32 v8, v8, v86, v87"); e("v_max_f32 v8, v8, v9")
for w in range(8): e(f"v_sub_f32 v{80+w}, v{80+w}, v8")
for w in range(8): e(f"v_mul_f32 v{80+w}, s24, v{80+w}")
for w in range(8): e(f"v_exp_f32 v{80+w}, v{80+w}")
nop(0)
e("v_mul_f32 v9, v80, v88")
for w in range(1, 8): e(f"v_fmac_f32 v9, v{80+w}, v{88+w}")
e("s_waitcnt lgkmcnt(0)")
for k in range(4): e(f"v_mul_f32 v{96+k}, v80, v{48+k}")
for w in range(1, 8):
    for k in range(4): e(f"v_fmac_f32 v{96+k}, v{80+w}, v{48+4*w+k}")
gran(100, 96, 97); gran(104, 98, 99); gran(108, 8, 9)
e("s_lshl_b32 s11, s2, 12"); e(f"s_add_u32 s11, s11, {OB2}")
e("buffer_store_dwordx4 v[100:103], v5, s[88:91], s11 offen sc1")
e("buffer_store_dwordx4 v[104:107], v5, s[88:91], s11 offen offset:1024 sc1")
e("v_lshrrev_b32 v6, 5, v1"); e("v_lshlrev_b32 v6, 4, v6")
e("v_and_b32 v7, 31, v1"); e("v_cmp_eq_u32 vcc, 0, v7"); e("s_and_saveexec_b64 s[20:21], vcc")
e("buffer_store_dwordx4 v[108:111], v6, s[88:91], s11 offen offset:2048 sc1")
e("s_mov_b64 exec, s[20:21]")
set_flag(FO, 6, 7)
dbgmax(11)
lab("L_kv_done")
stamp()
if WFO:
    spin_lds(FO, 4, 5, sleep=1)
    wloads()
e("v_mov_b32 v26, v14")
for i in range(4):
    e(f"v_min_u32 v{40+i}, 95, v26"); e(f"v_lshlrev_b32 v{40+i}, 1, v{40+i}")
    if i < 3: e("v_add_u32 v26, s63, v26")
e("s_lshl_b32 s9, s62, 6"); e("s_add_u32 s9, s9, 32"); e("v_mul_lo_u32 v27, v14, s9"); e("v_lshl_add_u32 v27, v15, 5, v27")
e("s_lshl_b32 s10, s62, 5"); e("v_add_u32 v28, s10, v27")
e("v_cmp_gt_u32 s[94:95], s63, v14")
spin_lds(FH, 4, 5)
for i in range(4): e(f"ds_read_u16 v{16+i}, v{40+i} offset:{H_T}")
e("s_waitcnt lgkmcnt(0)")
for i in range(4): e(f"v_lshlrev_b32 v{32+i}, 16, v{16+i}")
e("s_waitcnt vmcnt(6)")
for i in range(4):
    for k in range(4):
        for z in range(2):
            d = 48 + 2*k + z
            c = "0" if i == 0 else f"v{d}"
            e(f"v_dot2_f32_bf16 v{d}, v{WR+4*i+k}, v{(16 if z == 0 else 32)+i}, {c}")
nop(2)
e("s_and_saveexec_b64 s[22:23], s[94:95]")
e(f"ds_write_b128 v28, v[48:51] offset:{AB}"); e(f"ds_write_b128 v28, v[52:55] offset:{AB+16}")
e("s_mov_b64 exec, s[22:23]")
e("s_waitcnt vmcnt(0)")
e("s_barrier")
stamp()
for i in range(4): e(f"ds_read_u16 v{20+i}, v{40+i} offset:{OF_T}")
e("s_waitcnt lgkmcnt(0)")
for i in range(4): e(f"v_lshlrev_b32 v{36+i}, 16, v{20+i}")
for i in range(4):
    for k in range(4):
        for z in range(2):
            d = 56 + 2*k + z
            c = "0" if i == 0 else f"v{d}"
            e(f"v_dot2_f32_bf16 v{d}, v{WR+16+4*i+k}, v{(20 if z == 0 else 36)+i}, {c}")
nop(2)
e("s_and_saveexec_b64 s[22:23], s[94:95]")
e(f"ds_write_b128 v27, v[56:59] offset:{AB}"); e(f"ds_write_b128 v27, v[60:63] offset:{AB+16}")
e("s_mov_b64 exec, s[22:23]")
e("s_waitcnt lgkmcnt(0)")
e("s_barrier")
def tail_reduce(CW, NS, TPG, SPT):
    RS = CW*64 + 32
    sh = {4: 2, 2: 1}[TPG]
    NG = CW*8
    e(f"v_cmp_gt_u32 vcc, {NG*TPG}, v13"); e("s_and_saveexec_b64 s[20:21], vcc")
    e("s_cbranch_execz L_p3skip")
    e(f"v_lshrrev_b32 v4, {sh}, v13")
    e("v_lshrrev_b32 v5, 3, v4"); e("v_lshlrev_b32 v5, 5, v5")
    e("v_and_b32 v6, 1, v4"); e("v_lshl_add_u32 v5, v6, 4, v5")
    e("v_bfe_u32 v6, v4, 1, 1"); e("v_lshl_add_u32 v5, v6, 3, v5")
    e("v_bfe_u32 v6, v4, 2, 1"); e(f"v_mul_u32_u24 v6, {CW*32}, v6"); e("v_add_u32 v5, v5, v6")
    e(f"v_and_b32 v6, {TPG-1}, v13"); e(f"v_mul_u32_u24 v7, {SPT*RS}, v6"); e("v_add_u32 v8, v5, v7")
    full = SPT if TPG*SPT == NS else SPT - 1
    for w in range(full): e(f"ds_read_b64 v[{32+2*w}:{33+2*w}], v8 offset:{AB+RS*w}")
    if full != SPT:
        e(f"v_mov_b32 v{32+2*full}, 0"); e(f"v_mov_b32 v{33+2*full}, 0")
        e("v_cmp_eq_u32 vcc, 0, v6"); e("s_and_saveexec_b64 s[22:23], vcc")
        e(f"ds_read_b64 v[{32+2*full}:{33+2*full}], v8 offset:{AB+RS*full}")
        e("s_mov_b64 exec, s[22:23]")
    e("s_waitcnt lgkmcnt(0)")
    n = SPT
    while n > 1:
        h = n // 2
        for w in range(h):
            for k in range(2): e(f"v_add_f32 v{32+2*w+k}, v{32+2*w+k}, v{32+2*(n-1-w)+k}")
        n = n - h
    nop(1)
    for k in range(2): dpp("v_add_f32", 32+k, "quad_perm:[1,0,3,2]")
    if TPG == 4:
        nop(1)
        for k in range(2): dpp("v_add_f32", 32+k, "quad_perm:[2,3,0,1]")
    gran(64, 32, 33)
    e("s_lshl_b32 s9, s2, 12"); e(f"s_add_u32 s9, s9, {OB3}"); e("v_lshlrev_b32 v3, 4, v4")
    e("v_cmp_eq_u32 vcc, 0, v6"); e("s_and_b64 exec, exec, vcc")
    e("buffer_store_dwordx4 v[64:67], v3, s[88:91], s9 offen sc1")
e("s_cmp_eq_u32 s62, 24"); e("s_cbranch_scc1 L_wide")
tail_reduce(16, 32, 4, 8)
e("s_branch L_p3skip")
lab("L_wide")
tail_reduce(24, 21, 2, 11)
lab("L_p3skip")
e("s_mov_b64 exec, s[20:21]")
lab("L_p3done")
stamp()
e(f"s_cmp_ge_u32 s2, {NRED}"); e("s_cbranch_scc1 L_fdone")
spin_lds(FC2, 4, 5)
e("s_lshr_b32 s10, s2, 4"); e("s_min_u32 s10, s10, 3"); e("s_lshl_b32 s11, s10, 4"); e("s_sub_u32 s11, s2, s11")
e("v_lshrrev_b32 v4, 3, v13"); e("v_lshrrev_b32 v6, 2, v4"); e("v_lshlrev_b32 v6, 3, v6")
e(f"ds_read_b64 v[72:73], v6 offset:{NT_T}")
e("v_lshlrev_b32 v4, 14, v4"); e("v_and_b32 v5, 7, v13"); e("v_lshl_add_u32 v4, v5, 4, v4")
e("s_lshl_b32 s9, s10, 12"); e("s_lshl_b32 s11, s11, 7"); e("s_add_u32 s9, s9, s11"); e(f"s_add_u32 s9, s9, {OB3}")
e("s_waitcnt lgkmcnt(0)")
poll(["buffer_load_dwordx4 v[48:51], v4, s[88:91], s9 offen sc1"], [48], 40, tags=[("v72", "v73")])
e("v_mov_b32 v32, v49"); e("v_mov_b32 v33, v50")
allreduce("v_add_f32", [32, 33], [64, 65], rors=(8,))
e("s_lshl_b32 s9, s7, 6"); e("v_lshl_add_u32 v5, v1, 3, s9")
e("v_cmp_gt_u32 vcc, 8, v1"); e("s_and_saveexec_b64 s[20:21], vcc")
e(f"ds_write_b64 v5, v[32:33] offset:{R3_T}")
e("s_mov_b64 exec, s[20:21]")
e("s_waitcnt lgkmcnt(0)")
e("s_barrier")
e("s_cmp_lg_u32 s7, 0"); e("s_cbranch_scc1 L_fdone")
e("v_and_b32 v5, 1, v1"); e("v_lshlrev_b32 v5, 3, v5")
for w in range(8):
    for q in range(4): e(f"ds_read_b64 v[{48+8*w+2*q}:{49+8*w+2*q}], v5 offset:{R3_T+64*w+16*q}")
for w in range(1, 8):
    e(f"s_waitcnt lgkmcnt({min(15, 28-4*w)})")
    for k in range(8): e(f"v_add_f32 v{48+k}, v{48+k}, v{48+8*w+k}")
for k in range(4): e(f"v_mov_b32 v{64+k}, v{52+k}")
def rne4(r):
    e(f"v_cvt_pk_bf16_f32 v80, v{r}, v{r+1}"); e(f"v_cvt_pk_bf16_f32 v81, v{r+2}, v{r+3}")
    e(f"v_lshlrev_b32 v{r}, 16, v80"); e(f"v_and_b32 v{r+1}, s25, v80"); e(f"v_lshlrev_b32 v{r+2}, 16, v81"); e(f"v_and_b32 v{r+3}, s25, v81")
rne4(48); rne4(64)
X, B2 = WR+32, WR+34
e(f"v_lshlrev_b32 v52, 16, v{X}"); e(f"v_and_b32 v53, s25, v{X}"); e(f"v_lshlrev_b32 v54, 16, v{X+1}"); e(f"v_and_b32 v55, s25, v{X+1}")
e(f"v_lshlrev_b32 v56, 16, v{B2}"); e(f"v_and_b32 v57, s25, v{B2}"); e(f"v_lshlrev_b32 v58, 16, v{B2+1}"); e(f"v_and_b32 v59, s25, v{B2+1}")
for k in range(4): e(f"v_add_f32 v{48+k}, v{52+k}, v{48+k}"); e(f"v_add_f32 v{64+k}, v{64+k}, v{56+k}")
rne4(48); rne4(64)
for k in range(4): e(f"v_add_f32 v{48+k}, v{48+k}, v{64+k}")
e("v_cvt_pk_bf16_f32 v80, v48, v49"); e("v_cvt_pk_bf16_f32 v81, v50, v51")
e("v_cmp_gt_u32 vcc, 2, v1"); e("s_and_saveexec_b64 s[20:21], vcc")
e(f"global_store_dwordx2 v{WR+36}, v[80:81], s[56:57]")
e("s_mov_b64 exec, s[20:21]")
dbgmax(8)
lab("L_fdone")
stamp()
stamp_store()
e("s_endpgm")
SB[0] = 160
lab("L_roles")
e("s_cmp_eq_u32 s3, 2"); e("s_cbranch_scc1 L_sync")
e("s_cmp_lg_u32 s3, 0"); e("s_cbranch_scc1 L_h")
nstamp[0] = ns0
srd(72, 42, 576*4096*2)
e("v_lshlrev_b32 v3, 4, v1"); e("global_load_dwordx4 v[4:7], v3, s[36:37]")
e("v_lshlrev_b32 v9, 1, v1"); e("global_load_ushort v8, v9, s[36:37] offset:1024")
e("v_lshrrev_b32 v19, 3, v1"); e("v_and_b32 v2, 7, v1")
e("v_lshlrev_b32 v116, 13, v19"); e("v_lshl_add_u32 v116, v2, 4, v116")
e("s_and_b32 s8, s2, 3"); e("s_mul_i32 s8, s8, 144")
e("s_lshl_b32 s9, s8, 13"); e("s_lshr_b32 s10, s2, 2"); e("s_lshl_b32 s10, s10, 7"); e("s_add_u32 s9, s9, s10")
for i in range(18):
    e(f"buffer_load_dwordx4 v[{32+4*i}:{35+4*i}], v116, s[72:75], s9 offen{NT}")
    if i < 17: e("s_add_u32 s9, s9, 65536")
e("s_barrier")
e("s_waitcnt vmcnt(18)")
stamp()
unpack9(4, 8)
layernorm(4, 8)
e(f"ds_write_b128 v3, v[4:7] offset:{XN_T}"); e(f"ds_write_b16 v9, v8 offset:{XN_T+1024}")
e("s_lshl_b32 s9, s8, 1"); e("v_lshl_add_u32 v2, v19, 1, s9")
e("s_waitcnt lgkmcnt(0)")
get_nonce(30, 114)
tile_products(XN_T, 16, 18)
stamp()
nop(2)
for k in range(4): e(f"v_permlane32_swap_b32 v{104+k}, v{108+k}")
nop(0)
for k in range(4): e(f"v_add_f32 v{104+k}, v{104+k}, v{108+k}")
nop(1)
for k in range(2): e(f"v_permlane16_swap_b32 v{104+k}, v{106+k}")
nop(0)
for k in range(2): e(f"v_add_f32 v{104+k}, v{104+k}, v{106+k}")
nop(1)
for k in range(2): dpp("v_add_f32", 104+k, "row_ror:8")
gran(12, 104, 105)
e("v_and_b32 v2, 7, v1"); e("v_lshlrev_b32 v2, 6, v2"); e("v_lshrrev_b32 v10, 5, v1"); e("v_lshl_add_u32 v2, v10, 5, v2")
e("v_bfe_u32 v10, v1, 4, 1"); e("v_lshl_add_u32 v2, v10, 4, v2")
e("s_lshl_b32 s9, s2, 13")
e("v_and_b32 v10, 8, v1"); e("v_cmp_eq_u32 vcc, 0, v10"); e("s_and_saveexec_b64 s[20:21], vcc")
e("buffer_store_dwordx4 v[12:15], v2, s[88:91], s9 offen sc1")
if BOARD:
    e("s_lshl_b32 s9, s4, 17"); e("s_lshl_b32 s10, s5, 4"); e("v_mov_b32 v2, s10")
    e("v_cmp_eq_u32 vcc, 0, v1"); e("s_and_b64 exec, exec, vcc")
    e("buffer_store_dwordx4 v[12:15], v2, s[88:91], s9 offen offset:3840 sc1")
e("s_mov_b64 exec, s[20:21]")
stamp()
dbgmax(13)
if BOARD:
    e("v_and_b32 v2, 15, v1"); e("v_lshlrev_b32 v2, 4, v2")
    poll(["buffer_load_dwordx4 v[32:35], v2, s[88:91], s9 offen offset:3840 sc1"], [32], 20, sleep=BSLEEP)
e("s_lshl_b32 s9, s4, 17"); e("v_and_b32 v3, 31, v1"); e("v_lshlrev_b32 v3, 4, v3"); e("v_lshrrev_b32 v10, 5, v1"); e("v_lshl_add_u32 v3, v10, 15, v3")
loads = []
for i2 in range(2):
    for rb in range(4):
        n = 4*i2 + rb
        loads.append(f"s_add_u32 s10, s9, {8192*(8*i2+rb)}")
        loads.append(f"buffer_load_dwordx4 v[{32+4*n}:{35+4*n}], v3, s[88:91], s10 offen sc1")
poll(loads, [32+4*x for x in range(8)], 20)
stamp()
for i2 in range(2):
    b0 = 32 + 16*i2
    for k in (1, 2): e(f"v_add_f32 v{b0+k}, v{b0+k}, v{b0+4+k}"); e(f"v_add_f32 v{b0+8+k}, v{b0+8+k}, v{b0+12+k}")
for i2 in range(2):
    b0 = 32 + 16*i2
    for k in (1, 2): e(f"v_add_f32 v{b0+k}, v{b0+k}, v{b0+8+k}")
e("v_cvt_pk_bf16_f32 v32, v33, v34"); e("v_cvt_pk_bf16_f32 v33, v49, v50")
e("v_lshlrev_b32 v4, 2, v1")
e(f"ds_write_b32 v4, v32 offset:{Q_T}"); e(f"ds_write_b32 v4, v33 offset:{Q_T+256}")
e("s_waitcnt lgkmcnt(0)")
set_flag(FQ, 10, 11)
stamp()
dbgmax(10)
e("v_lshrrev_b32 v4, 4, v1"); e("v_lshlrev_b32 v4, 14, v4")
e("v_and_b32 v5, 15, v1"); e("v_lshl_add_u32 v5, v5, 4, v4")
e("s_lshl_b32 s9, s4, 16"); e(f"s_add_u32 s9, s9, {OB2}")
e("s_lshr_b32 s11, s5, 2"); e("s_lshl_b32 s10, s11, 8"); e("s_add_u32 s10, s10, s9")
e("s_lshr_b32 s11, s5, 3"); e("s_lshl_b32 s11, s11, 4"); e("s_add_u32 s11, s11, s9")
spin_lds(FO, 10, 11, sleep=2)
loads = []
for i in range(4):
    loads.append(f"s_add_u32 s13, s10, {4096*i}"); loads.append(f"s_add_u32 s15, s11, {4096*i}")
    loads.append(f"buffer_load_dwordx4 v[{32+12*i}:{35+12*i}], v5, s[88:91], s13 offen sc1")
    loads.append(f"buffer_load_dwordx4 v[{36+12*i}:{39+12*i}], v5, s[88:91], s13 offen offset:1024 sc1")
    loads.append(f"buffer_load_dwordx4 v[{40+12*i}:{43+12*i}], v4, s[88:91], s15 offen offset:2048 sc1")
poll(loads, [32+4*x for x in range(12)], 20, sleep=X2SLEEP)
stamp()
e("v_max3_f32 v84, v41, v53, v65"); e("v_max_f32 v84, v84, v77")
allreduce("v_max_f32", [84], [85], rors=())
for i in range(4): e(f"v_sub_f32 v{41+12*i}, v{41+12*i}, v84")
for i in range(4): e(f"v_mul_f32 v{41+12*i}, s24, v{41+12*i}")
for i in range(4): e(f"v_exp_f32 v{41+12*i}, v{41+12*i}")
nop(0)
for n, k in enumerate((33, 34, 37, 38, 42)): e(f"v_mul_f32 v{86+n}, v41, v{k}")
for i in range(1, 4):
    for n, k in enumerate((33, 34, 37, 38, 42)): e(f"v_fmac_f32 v{86+n}, v{41+12*i}, v{k+12*i}")
allreduce("v_add_f32", [86, 87, 88, 89, 90], [91, 92, 93, 94, 95], rors=())
e("v_rcp_f32 v90, v90"); nop(0)
for k in range(4): e(f"v_mul_f32 v{86+k}, v90, v{86+k}")
e("v_cvt_pk_bf16_f32 v86, v86, v87"); e("v_cvt_pk_bf16_f32 v87, v88, v89")
e("v_cmp_gt_u32 vcc, 16, v1"); nop(1); e("v_cndmask_b32 v86, 0, v86, vcc"); e("v_cndmask_b32 v87, 0, v87, vcc")
e("v_lshlrev_b32 v4, 3, v1")
e("v_cmp_gt_u32 vcc, 24, v1"); e("s_and_saveexec_b64 s[20:21], vcc")
e(f"ds_write_b64 v4, v[86:87] offset:{OF_T}")
e("s_mov_b64 exec, s[20:21]")
e("s_waitcnt lgkmcnt(0)")
e("s_barrier")
dbgmax(12)
stamp()
stamp_store()
e("s_endpgm")

lab("L_h")
nstamp[0] = ns0
e("s_cmp_eq_u32 s3, 1"); e("s_cbranch_scc1 L_h1")
if PF:
    e("s_cmp_ge_u32 s2, 16"); e("s_cbranch_scc1 L_nopf")
    e("s_getpc_b64 s[10:11]")
    lab("L_pc")
    e(f"s_sub_u32 s10, s10, L_pc-{NAME}_kernel"); e("s_subb_u32 s11, s11, 0")
    e("v_lshlrev_b32 v3, 4, v1")
    e("s_mov_b32 s12, 0")
    lab("L_pf")
    e("global_load_dwordx4 v[4:7], v3, s[10:11]")
    e("v_add_u32 v3, 1024, v3"); e("s_add_u32 s12, s12, 1024")
    e(f"s_cmp_lt_u32 s12, L_end-{NAME}_kernel-1024"); e("s_cbranch_scc1 L_pf")
    lab("L_nopf")
e("s_barrier")
e("s_endpgm")
lab("L_h1")
srd(80, 48, 576*4608*2)
e("v_lshlrev_b32 v3, 4, v1"); e("global_load_dwordx4 v[4:7], v3, s[36:37]")
e("v_lshlrev_b32 v9, 1, v1"); e("global_load_ushort v8, v9, s[36:37] offset:1024")
e("v_mul_u32_u24 v140, 3641, v1"); e("v_lshrrev_b32 v140, 16, v140")
e("v_mul_u32_u24 v141, 18, v140"); e("v_sub_u32 v141, v1, v141")
e("s_movk_i32 s12, 9216"); e("v_mul_lo_u32 v142, v140, s12"); e("v_lshl_add_u32 v142, v141, 4, v142")
e(f"v_mov_b32 v2, {INV}"); e("v_cmp_gt_u32 vcc, 54, v1"); nop(1); e("v_cndmask_b32 v142, v2, v142, vcc")
e("s_and_b32 s8, s5, 7"); e("s_mul_i32 s8, s8, 72")
e("s_mul_i32 s9, s8, 9216"); e("s_mul_i32 s10, s4, 576"); e("s_add_u32 s9, s9, s10"); e("s_lshr_b32 s10, s5, 3"); e("s_mul_i32 s10, s10, 288"); e("s_add_u32 s9, s9, s10")
def hloads():
    for i in range(24):
        e(f"buffer_load_dwordx4 v[{32+4*i}:{35+4*i}], v142, s[80:83], s18 offen{NT}")
        if i < 23: e(f"s_add_u32 s18, s18, {3*9216}")
e("s_mov_b32 s18, s9")
if not HLATE: hloads()
e("s_barrier")
e(f"s_waitcnt vmcnt({0 if HLATE else 24})")
stamp()
LNBASE[0] = 144
unpack9(4, 8); layernorm(4, 8); unpack9(4, 8); layernorm(4, 8)
LNBASE[0] = 104
e(f"ds_write_b128 v3, v[4:7] offset:{Y_T}"); e(f"ds_write_b16 v9, v8 offset:{Y_T+1024}")
e("s_lshl_b32 s9, s8, 1"); e("v_min_u32 v2, 2, v140"); e("v_lshl_add_u32 v2, v2, 1, s9")
e("s_waitcnt lgkmcnt(0)")
get_nonce(30, 144)
if HLATE:
    spin_lds({"fv": FV, "fo": FO, "fq": FQ}[HLATE], 30, 31, sleep=4)
    hloads()
ACC = 128
tile_products(Y_T, 6, 24)
stamp()
e("v_lshlrev_b32 v2, 5, v1")
e(f"ds_write_b128 v2, v[{ACC}:{ACC+3}] offset:{HR}"); e(f"ds_write_b128 v2, v[{ACC+4}:{ACC+7}] offset:{HR+16}")
ACC = 104
e("v_lshlrev_b32 v2, 3, v1")
e("s_waitcnt lgkmcnt(0)")
for n in range(2):
    for sub in range(3): e(f"ds_read_b64 v[{32+8*n+2*sub}:{33+8*n+2*sub}], v2 offset:{HR+512*n+576*sub}")
e("s_waitcnt lgkmcnt(0)")
for n in range(2):
    for k in range(2): e(f"v_add_f32 v{32+8*n+k}, v{32+8*n+k}, v{34+8*n+k}"); e(f"v_add_f32 v{32+8*n+k}, v{32+8*n+k}, v{36+8*n+k}")
gran(12, 32, 33); gran(16, 40, 41)
e("v_lshlrev_b32 v2, 4, v1")
e("s_lshl_b32 s9, s2, 13")
e("buffer_store_dwordx4 v[12:15], v2, s[88:91], s9 offen offset:1024 sc1")
e("v_cmp_gt_u32 vcc, 8, v1"); e("s_and_saveexec_b64 s[20:21], vcc")
e("buffer_store_dwordx4 v[16:19], v2, s[88:91], s9 offen offset:2048 sc1")
e("s_mov_b64 exec, s[20:21]")
e("v_min_u32 v7, 35, v1")
e("s_lshr_b32 s8, s5, 2")
e("s_mul_i32 s9, s4, 576"); e("s_mul_i32 s10, s8, 144"); e("s_add_u32 s9, s9, s10"); e("v_lshl_add_u32 v6, v7, 2, s9")
e("global_load_dword v30, v6, s[50:51]")
stamp()
e("v_lshlrev_b32 v7, 4, v7")
e("s_lshl_b32 s9, s4, 17"); e("s_lshr_b32 s10, s5, 3"); e("s_lshl_b32 s10, s10, 16"); e("s_add_u32 s9, s9, s10")
e("s_and_b32 s10, s8, 1"); e("s_mul_i32 s10, s10, 576"); e("s_add_u32 s9, s9, s10")
spin_lds(FQ, 10, 11, sleep=4)
loads = []
for i in range(8):
    loads.append(f"s_add_u32 s10, s9, {8192*i + 1024}")
    loads.append(f"buffer_load_dwordx4 v[{32+4*i}:{35+4*i}], v7, s[88:91], s10 offen sc1")
poll(loads, [32+4*i for i in range(8)], 20, sleep=2)
stamp()
for st in (4, 2, 1):
    for p in range(st):
        for k in (1, 2): e(f"v_add_f32 v{32+4*p+k}, v{32+4*p+k}, v{32+4*(p+st)+k}")
e("v_cvt_pk_bf16_f32 v35, v33, v34"); e("v_lshlrev_b32 v33, 16, v35"); e("v_and_b32 v34, s25, v35")
e("v_lshlrev_b32 v36, 16, v30"); e("v_and_b32 v37, s25, v30")
e("v_add_f32 v33, v33, v36"); e("v_add_f32 v34, v34, v37")
e("v_cvt_pk_bf16_f32 v35, v33, v34"); e("v_lshlrev_b32 v33, 16, v35"); e("v_and_b32 v34, s25, v35")
for r in (33, 34):
    t = r + 7
    u = r + 9
    e(f"v_mul_f32 v{t}, v{r}, v{r}"); e(f"v_mul_f32 v{t}, v{t}, v{r}"); e(f"v_mov_b32 v{u}, v{r}"); e(f"v_fmac_f32 v{u}, 0x3d372713, v{t}")
    e(f"v_mul_f32 v{u}, 0x40135761, v{u}"); e(f"v_exp_f32 v{u}, v{u}"); nop(0); e(f"v_add_f32 v{u}, 1.0, v{u}"); e(f"v_rcp_f32 v{u}, v{u}"); nop(0)
    e(f"v_fma_f32 v{u}, -2.0, v{u}, 1.0")
    e(f"v_add_f32 v{u}, 1.0, v{u}"); e(f"v_mul_f32 v{t}, 0.5, v{r}"); e(f"v_mul_f32 v{u}, v{t}, v{u}")
e("v_cvt_pk_bf16_f32 v35, v42, v43")
e("v_cmp_gt_u32 vcc, 36, v1"); nop(1); e("v_cndmask_b32 v35, 0, v35, vcc")
e("v_lshlrev_b32 v4, 2, v1")
e("v_cmp_gt_u32 vcc, 48, v1"); e("s_and_saveexec_b64 s[20:21], vcc")
e(f"ds_write_b32 v4, v35 offset:{H_T}")
e("s_mov_b64 exec, s[20:21]")
e("s_waitcnt lgkmcnt(0)")
set_flag(FH, 10, 11)
stamp()
stamp_store()
e("s_endpgm")

lab("L_sync")
nstamp[0] = ns0
dbgmax(9, inv=True); dbgmax(14)
e("s_memrealtime s[16:17]")
e("s_and_b32 s9, s4, 3"); e("s_lshl_b32 s9, s9, 6"); e("s_lshr_b32 s10, s4, 2"); e("s_lshl_b32 s10, s10, 3"); e("s_add_u32 s9, s9, s10")
e("v_mov_b32 v2, s9"); e("v_mov_b32 v6, 0"); e("v_mov_b32 v7, 0")
for k in range(4): e(f"v_mov_b32 v{8+k}, 0")
e(f"v_mov_b32 v12, {FLG}")
e("s_waitcnt lgkmcnt(0)")
e("s_or_b32 s16, s16, 1")
e("v_mov_b32 v4, s16"); e("v_mov_b32 v5, s17")
e("v_cmp_eq_u32 vcc, 0, v1"); e("s_and_saveexec_b64 s[20:21], vcc")
e("global_atomic_cmpswap_x2 v[14:15], v2, v[4:7], s[58:59] sc0")
e("s_mov_b64 exec, s[20:21]")
e("ds_write_b128 v12, v[8:11]"); e("ds_write_b128 v12, v[8:11] offset:16")
e("s_waitcnt lgkmcnt(0)")
e("s_barrier")
e("s_waitcnt vmcnt(0)")
nop(0)
e("v_readfirstlane_b32 s10, v14"); e("v_readfirstlane_b32 s11, v15")
e("s_cmp_eq_u32 s10, 0"); e("s_cselect_b32 s16, s16, s10"); e("s_cselect_b32 s17, s17, s11")
e("v_mov_b32 v4, s16"); e("v_mov_b32 v5, s17"); e(f"v_mov_b32 v12, {NONCE}")
e("ds_write_b64 v12, v[4:5]")
e("s_waitcnt lgkmcnt(0)")
stamp()
e(f"s_cmp_ge_u32 s2, {NRED}"); e("s_cbranch_scc1 L_w2end")
spin_lds(FQ, 12, 13, sleep=8)
e("v_and_b32 v2, 15, v1"); e("v_and_b32 v3, 3, v2"); e("v_lshlrev_b32 v3, 6, v3"); e("v_lshrrev_b32 v4, 2, v2"); e("v_lshl_add_u32 v3, v4, 3, v3")
l_, d_ = newlab("np"), newlab("npd")
e("s_mov_b32 s12, 0")
lab(l_)
e("global_load_dwordx2 v[4:5], v3, s[58:59] sc1")
e("s_add_u32 s12, s12, 1")
e("s_waitcnt vmcnt(0)")
e("v_cmp_eq_u32 vcc, 0, v4")
e(f"s_cmp_gt_u32 s12, {SPINMAX}"); e(f"s_cbranch_scc1 {d_}")
e(f"s_cbranch_vccz {d_}")
e("s_sleep 8"); e(f"s_branch {l_}")
lab(d_)
e("v_lshlrev_b32 v2, 3, v2")
e(f"ds_write_b64 v2, v[4:5] offset:{NT_T}")
e("s_waitcnt lgkmcnt(0)")
set_flag(FC2, 10, 11)
lab("L_w2end")
stamp()
stamp_store()
e("s_endpgm")

lab("L_end")
e("s_endpgm")
L += ['.section .rodata,"a"', ".p2align 6", f".amdhsa_kernel {NAME}_kernel", "  .amdhsa_next_free_vgpr 168", "  .amdhsa_next_free_sgpr 102",
      "  .amdhsa_accum_offset 168", "  .amdhsa_group_segment_fixed_size 0", "  .amdhsa_kernarg_size 104", "  .amdhsa_user_sgpr_count 2",
      "  .amdhsa_user_sgpr_kernarg_segment_ptr 1", "  .amdhsa_system_sgpr_workgroup_id_x 1", ".end_amdhsa_kernel"]
open(out, "w").write("\n".join(L) + "\n")
```

```python
import sys
NAME = "parallel_sum__sliding_block_cached__mixer_channel_mlp__decode"
out = sys.argv[1]
opts = set(sys.argv[2:])
PROF = "prof" in opts
NT = " nt"
SPINMAX = 400000
def optint(p, d):
    for o in opts:
        if o.startswith(p) and o[len(p):].isdigit(): return int(o[len(p):])
    return d
THR = optint("thr", 0)
PTH = optint("pth", 0)
X2SLEEP = optint("x2s", 2)
WFO = "wfo" in opts
BOARD = "noboard" not in opts
BSLEEP = optint("bs", 2)
PF = "nopf" not in opts
DBG = "dbgt" in opts
DBGW = optint("dw", -1)
DBGWG = optint("dg", 0)
EARLY = "noearly" not in opts
WLATE = "wlate" in opts or WFO
HLATE = "fv" if "hfv" in opts else ("fo" if "hfo" in opts else ("fq" if "hfq" in opts else ""))

L = []
def e(s): L.append("    " + s)
def lab(s): L.append(s + ":")
def mark(s): L.append(";;MARK " + s)
def nop(n): e(f"s_nop {n}")

OB1, OB2, OB3 = 0, 2 << 20, 4 << 20
INV = 0x40000000
NRED = 72
XN_T = 0
Y_T = 1216
Q_T = 2432
FLG = 3072
CNT, FQ, FC2, FO, NONCE, FV, FH = FLG, FLG+4, FLG+8, FLG+12, FLG+16, FLG+24, FLG+28
ML_T = 3136
NT_T = 3264
PW = 3456
R3_T = 4480
H_T = 4992
OF_T = 5184
HR = 47616
OW = 5632
AB = 13824
LDS_BYTES = 49664
def TB(j, t): return 80 + 4*j + t

nstamp = [0]
SB = [160]
def stamp():
    if not PROF: return
    k = nstamp[0]; nstamp[0] += 1
    assert k < 8
    e("s_memrealtime s[92:93]"); e("s_waitcnt lgkmcnt(0)"); e(f"v_mov_b32 v{SB[0]+k}, s92")
def stamp_store():
    if not PROF: return
    if DBGW >= 0:
        l = newlab("nd")
        e(f"s_cmp_lg_u32 s2, {DBGWG}"); e(f"s_cbranch_scc1 {l}"); e(f"s_cmp_lg_u32 s3, {DBGW}"); e(f"s_cbranch_scc1 {l}")
        e("v_mov_b32 v2, 32")
        e("v_cmp_eq_u32 vcc, 0, v1"); e("s_and_saveexec_b64 s[20:21], vcc")
        e(f"global_store_dwordx4 v2, v[{SB[0]}:{SB[0]+3}], s[58:59]"); e(f"global_store_dwordx4 v2, v[{SB[0]+4}:{SB[0]+7}], s[58:59] offset:16")
        e("s_mov_b64 exec, s[20:21]")
        lab(l)
        return
    e("s_lshl_b32 s6, s2, 4"); e("s_add_u32 s6, s6, s3"); e("s_lshl_b32 s6, s6, 6"); e(f"s_add_u32 s6, s6, {16<<20}")
    e("v_mov_b32 v2, s6")
    e("v_cmp_eq_u32 vcc, 0, v1"); e("s_and_saveexec_b64 s[20:21], vcc")
    for q in range(2):
        e(f"buffer_store_dwordx4 v[{SB[0]+4*q}:{SB[0]+3+4*q}], v2, s[88:91], 0 offen offset:{16*q}")
    e("s_mov_b64 exec, s[20:21]")

def dbgmax(word, inv=False):
    if not DBG: return
    e("s_memrealtime s[92:93]"); e("s_waitcnt lgkmcnt(0)")
    if inv: e("s_not_b32 s92, s92")
    e("v_mov_b32 v166, s92"); e(f"v_mov_b32 v167, {4*word}")
    e("v_cmp_eq_u32 vcc, 0, v1"); e("s_and_saveexec_b64 s[96:97], vcc")
    e("global_atomic_umax v167, v166, s[58:59]")
    e("s_mov_b64 exec, s[96:97]")

def dpp(op, d, ctrl):
    e(f"{op}_dpp v{d}, v{d}, v{d} {ctrl} row_mask:0xf bank_mask:0xf")

def allreduce(op, regs, tmps, rors=(8, 4, 2, 1), rows=True):
    for r in rors:
        nop(1)
        for v in regs: dpp(op, v, f"row_ror:{r}")
    if rows:
        for sw in ("v_permlane16_swap_b32", "v_permlane32_swap_b32"):
            for v, t in zip(regs, tmps): e(f"v_mov_b32 v{t}, v{v}")
            nop(1)
            for v, t in zip(regs, tmps): e(f"{sw} v{v}, v{t}")
            nop(0)
            for v, t in zip(regs, tmps): e(f"{op} v{v}, v{v}, v{t}")

lbl_id = [0]
def newlab(p):
    lbl_id[0] += 1
    return f"L_{p}_{lbl_id[0]}"

def spin_lds(addr, va, vd, sleep=1):
    l, d = newlab("spin"), newlab("spind")
    e(f"v_mov_b32 v{va}, {addr}"); e("s_mov_b32 s12, 0")
    lab(l)
    e(f"ds_read_b32 v{vd}, v{va}")
    e("s_add_u32 s12, s12, 1")
    e("s_waitcnt lgkmcnt(0)")
    e(f"v_cmp_ne_u32 vcc, 0, v{vd}")
    e(f"s_cmp_gt_u32 s12, {SPINMAX*4}"); e(f"s_cbranch_scc1 {d}")
    e(f"s_cbranch_vccnz {d}")
    e(f"s_sleep {sleep}")
    e(f"s_branch {l}")
    lab(d)

def get_nonce(va, vd):
    l, d = newlab("gn"), newlab("gnd")
    e(f"v_mov_b32 v{va}, {NONCE}"); e("s_mov_b32 s12, 0")
    lab(l)
    e(f"ds_read_b64 v[{vd}:{vd+1}], v{va}")
    e("s_add_u32 s12, s12, 1")
    e("s_waitcnt lgkmcnt(0)")
    e(f"v_cmp_ne_u32 vcc, 0, v{vd}")
    e(f"s_cmp_gt_u32 s12, {SPINMAX*4}"); e(f"s_cbranch_scc1 {d}")
    e(f"s_cbranch_vccnz {d}")
    e("s_sleep 1")
    e(f"s_branch {l}")
    lab(d)
    e(f"v_readfirstlane_b32 s16, v{vd}"); e(f"v_readfirstlane_b32 s17, v{vd+1}")
    nop(1)

def set_flag(addr, va, vd):
    e(f"v_mov_b32 v{va}, {addr}"); e(f"v_mov_b32 v{vd}, 1"); e(f"ds_write_b32 v{va}, v{vd}"); e("s_waitcnt lgkmcnt(0)")

def gran(dst, a, b):
    e(f"v_mov_b32 v{dst}, s16"); e(f"v_mov_b32 v{dst+1}, v{a}"); e(f"v_mov_b32 v{dst+2}, v{b}"); e(f"v_mov_b32 v{dst+3}, s17")

def poll(loads, grans, t0, tags=None, sleep=0):
    l, d = newlab("poll"), newlab("polld")
    e("s_mov_b32 s12, 0")
    lab(l)
    for x in loads: e(x)
    e("s_add_u32 s12, s12, 1")
    e("s_waitcnt vmcnt(0)")
    for n, g in enumerate(grans):
        tl, th = ("s16", "s17") if tags is None else tags[n]
        e(f"v_xor_b32 v{t0+1}, {tl}, v{g}"); e(f"v_xor_b32 v{t0+2}, {th}, v{g+3}")
        if n == 0: e(f"v_or_b32 v{t0}, v{t0+1}, v{t0+2}")
        else: e(f"v_or3_b32 v{t0}, v{t0}, v{t0+1}, v{t0+2}")
    e(f"v_cmp_ne_u32 vcc, 0, v{t0}")
    e(f"s_cmp_gt_u32 s12, {SPINMAX}"); e(f"s_cbranch_scc1 {d}")
    e(f"s_cbranch_vccz {d}")
    if sleep: e(f"s_sleep {sleep}")
    e(f"s_branch {l}")
    lab(d)

nload = [0]
def thr():
    i = nload[0]; nload[0] += 1
    if i >= 16 and WLATE: return
    if PTH:
        if i >= PTH: e(f"s_waitcnt vmcnt({PTH-1})")
        return
    if not THR or i < THR: return
    l = newlab("thr")
    e("s_cmp_lg_u32 s14, 0"); e(f"s_cbranch_scc1 {l}")
    e("ds_read_b32 v9, v8")
    e("s_waitcnt lgkmcnt(0)")
    nop(0)
    e("v_readfirstlane_b32 s14, v9")
    e("s_cmp_lg_u32 s14, 0"); e(f"s_cbranch_scc1 {l}")
    e(f"s_waitcnt vmcnt({THR-1})")
    lab(l)

def srd(d, p, n):
    e(f"s_mov_b32 s{d}, s{p}"); e(f"s_and_b32 s{d+1}, s{p+1}, 0xffff"); e(f"s_mov_b32 s{d+2}, {n}"); e(f"s_mov_b32 s{d+3}, 0x20000")

def unpack9(p, p8):
    for k in range(4):
        e(f"v_lshlrev_b32 v{10+2*k}, 16, v{p+k}"); e(f"v_and_b32 v{11+2*k}, s25, v{p+k}")
    e(f"v_lshlrev_b32 v18, 16, v{p8}")
LNBASE = [104]
def layernorm(outp, out8):
    D = 20
    e(f"v_add_f32 v{LNBASE[0]+0}, v10, v11"); e(f"v_add_f32 v{LNBASE[0]+1}, v12, v13"); e(f"v_add_f32 v{LNBASE[0]+2}, v14, v15"); e(f"v_add_f32 v{LNBASE[0]+3}, v16, v17")
    e(f"v_add_f32 v{LNBASE[0]+0}, v{LNBASE[0]+0}, v{LNBASE[0]+1}"); e(f"v_add_f32 v{LNBASE[0]+2}, v{LNBASE[0]+2}, v{LNBASE[0]+3}"); e(f"v_add_f32 v{LNBASE[0]+0}, v{LNBASE[0]+0}, v18"); e(f"v_add_f32 v{LNBASE[0]+0}, v{LNBASE[0]+0}, v{LNBASE[0]+2}")
    allreduce(f"v_add_f32", [LNBASE[0]], [LNBASE[0]+1])
    e(f"v_mul_f32 v{LNBASE[0]+0}, 0x3ae38e39, v{LNBASE[0]+0}")
    for k in range(9): e(f"v_sub_f32 v{D+k}, v{10+k}, v{LNBASE[0]+0}")
    e(f"v_mul_f32 v{LNBASE[0]+2}, v{D}, v{D}"); e(f"v_mul_f32 v{LNBASE[0]+3}, v{D+1}, v{D+1}"); e(f"v_mul_f32 v{LNBASE[0]+4}, v{D+2}, v{D+2}")
    for k in range(3, 9): e(f"v_fmac_f32 v{LNBASE[0]+2+k%3}, v{D+k}, v{D+k}")
    e(f"v_add_f32 v{LNBASE[0]+2}, v{LNBASE[0]+2}, v{LNBASE[0]+3}"); e(f"v_add_f32 v{LNBASE[0]+2}, v{LNBASE[0]+2}, v{LNBASE[0]+4}")
    allreduce(f"v_add_f32", [LNBASE[0]+2], [LNBASE[0]+1])
    e(f"v_mul_f32 v{LNBASE[0]+2}, 0x3ae38e39, v{LNBASE[0]+2}")
    e(f"v_cvt_pk_bf16_f32 v{LNBASE[0]+1}, v{LNBASE[0]+0}, v{LNBASE[0]+2}")
    e(f"v_lshlrev_b32 v{LNBASE[0]+0}, 16, v{LNBASE[0]+1}"); e(f"v_and_b32 v{LNBASE[0]+2}, s25, v{LNBASE[0]+1}")
    e(f"v_add_f32 v{LNBASE[0]+2}, 0x3727c5ac, v{LNBASE[0]+2}")
    e(f"v_cvt_pk_bf16_f32 v{LNBASE[0]+2}, v{LNBASE[0]+2}, v{LNBASE[0]+2}"); e(f"v_and_b32 v{LNBASE[0]+2}, s25, v{LNBASE[0]+2}")
    e(f"v_sqrt_f32 v{LNBASE[0]+2}, v{LNBASE[0]+2}"); nop(0)
    e(f"v_cvt_pk_bf16_f32 v{LNBASE[0]+2}, v{LNBASE[0]+2}, v{LNBASE[0]+2}"); e(f"v_and_b32 v{LNBASE[0]+2}, s25, v{LNBASE[0]+2}")
    e(f"v_rcp_f32 v{LNBASE[0]+3}, v{LNBASE[0]+2}")
    for k in range(9): e(f"v_sub_f32 v{D+k}, v{10+k}, v{LNBASE[0]+0}")
    for k in range(4): e(f"v_cvt_pk_bf16_f32 v{LNBASE[0]+4+k}, v{D+2*k}, v{D+1+2*k}")
    e(f"v_cvt_pk_bf16_f32 v{LNBASE[0]+8}, v{D+8}, v{D+8}")
    for k in range(4):
        e(f"v_lshlrev_b32 v{D+2*k}, 16, v{LNBASE[0]+4+k}"); e(f"v_and_b32 v{D+1+2*k}, s25, v{LNBASE[0]+4+k}")
    e(f"v_lshlrev_b32 v{D+8}, 16, v{LNBASE[0]+8}")
    for k in range(9): e(f"v_mul_f32 v{10+k}, v{D+k}, v{LNBASE[0]+3}")
    for k in range(9): e(f"v_fma_f32 v{D+k}, -v{10+k}, v{LNBASE[0]+2}, v{D+k}")
    for k in range(9): e(f"v_fmac_f32 v{10+k}, v{D+k}, v{LNBASE[0]+3}")
    for k in range(4): e(f"v_cvt_pk_bf16_f32 v{outp+k}, v{10+2*k}, v{11+2*k}")
    e(f"v_cvt_pk_bf16_f32 v{out8}, v18, v18")

def tile_products(tbl, step, n):
    for c0 in range(0, n, 12):
        m = min(12, n - c0)
        for i in range(m): e(f"ds_read_u16 v{10+i}, v2 offset:{tbl+step*(c0+i)}")
        for i in range(m):
            e(f"s_waitcnt lgkmcnt({m-1-i})")
            e(f"v_lshlrev_b32 v{28+(i&1)}, 16, v{10+i}")
            e(f"s_waitcnt vmcnt({n-1-c0-i})")
            for k in range(4):
                for z in range(2):
                    d = ACC + 2*k + z
                    c = "0" if c0 + i == 0 else f"v{d}"
                    e(f"v_dot2_f32_bf16 v{d}, v{32+4*(c0+i)+k}, v{10+i if z == 0 else 28+(i&1)}, {c}")
        nop(2)
ACC = 104

L.append(f"; @launch grid=(256,1,1) block=(768,1,1) lds={LDS_BYTES}")
L.append('.amdgcn_target "amdgcn-amd-amdhsa--gfx950"')
L.append(".text"); L.append(f".globl {NAME}_kernel"); L.append(".p2align 8")
L.append(f".type {NAME}_kernel,@function"); lab(f"{NAME}_kernel")
e("s_cmp_ge_u32 s2, 256"); e("s_cbranch_scc1 L_end")
e("s_load_dwordx16 s[36:51], s[0:1], 0"); e("s_load_dwordx8 s[52:59], s[0:1], 64"); e("s_load_dwordx2 s[60:61], s[0:1], 96")
e("v_and_b32 v1, 63, v0"); e("v_lshrrev_b32 v2, 6, v0"); nop(1); e("v_readfirstlane_b32 s3, v2")
e("s_lshr_b32 s4, s2, 4"); e("s_and_b32 s5, s2, 15")
e("s_mov_b32 s24, 0x3fb8aa3b"); e("s_mov_b32 s25, 0xffff0000")
e("s_waitcnt lgkmcnt(0)")
srd(88, 60, 1 << 30)
stamp()
if PROF: e("v_mov_b32 v112, v160")
ns0 = nstamp[0]
e("s_cmp_lt_u32 s3, 4"); e("s_cbranch_scc1 L_roles")

lab("L_kv")
nstamp[0] = ns0
SB[0] = 112
srd(64, 38, 268435456)
e("s_sub_u32 s7, s3, 4")
e("s_lshl_b32 s9, s4, 24"); e("s_lshl_b32 s10, s5, 16"); e("s_add_u32 s9, s9, s10"); e(f"s_add_u32 s9, s9, {61440*256}")
e("s_lshl_b32 s10, s7, 13"); e("s_add_u32 s9, s9, s10"); e("s_add_u32 s10, s9, 4096")
e("v_and_b32 v10, 15, v1"); e("v_lshrrev_b32 v11, 4, v1")
e("v_lshlrev_b32 v3, 8, v10"); e("v_lshl_add_u32 v3, v11, 4, v3")
e("v_lshlrev_b32 v12, 11, v11"); e("v_lshl_add_u32 v12, v10, 4, v12")
KR, VR = 16, 48
e("s_mov_b32 s14, 0"); e(f"v_mov_b32 v8, {FQ}")
NE = optint("ne", (THR if THR else 3)) if EARLY else 0
for i in range(8):
    if i == NE:
        e("s_branch L_kvb")
        mark("INS")
        lab("L_kvb")
        srd(68, 40, 268435456); srd(76, 44, 4096*576*2); srd(84, 52, 4608*576*2)
        e("s_barrier")
    thr()
    e(f"buffer_load_dwordx4 v[{KR+4*i}:{KR+3+4*i}], v12, s[64:67], s9 offen offset:{i*256}{NT}")
for i in range(8):
    thr()
    e(f"buffer_load_dwordx4 v[{VR+4*i}:{VR+3+4*i}], v12, s[68:71], s9 offen offset:{i*256}{NT}")
WR = 128
def wloads():
    e("v_subrev_u32 v13, 256, v0")
    e("s_and_b32 s15, s2, 3"); e("s_cmp_eq_u32 s15, 3")
    e("s_cselect_b32 s62, 24, 16"); e("s_cselect_b32 s63, 21, 32"); e("s_movk_i32 s12, 4096"); e("s_cselect_b32 s12, 2731, s12")
    e("v_mul_lo_u32 v14, v13, s12"); e("v_lshrrev_b32 v14, 16, v14")
    e("v_mul_lo_u32 v15, v14, s62"); e("v_sub_u32 v15, v13, v15")
    e("v_mul_u32_u24 v4, 1152, v14"); e("v_lshl_add_u32 v4, v15, 4, v4")
    e(f"v_mov_b32 v7, {INV}"); e("v_cmp_gt_u32 vcc, s63, v14"); nop(1); e("v_cndmask_b32 v4, v7, v4, vcc")
    e("s_lshr_b32 s13, s2, 2"); e("s_lshl_b32 s15, s15, 8"); e("s_mul_i32 s11, s63, 1152")
    for mtx, rows, sr, base in ((0, 72, 84, 0), (1, 64, 76, 16)):
        e(f"s_mul_i32 s9, s13, {rows*1152}"); e("s_add_u32 s9, s9, s15"); e("v_mov_b32 v5, v14")
        for i in range(4):
            e(f"v_cmp_gt_u32 vcc, {rows}, v5"); nop(1); e("v_cndmask_b32 v6, v7, v4, vcc")
            thr(); e(f"buffer_load_dwordx4 v[{WR+base+4*i}:{WR+base+3+4*i}], v6, s[{sr}:{sr+3}], s9 offen{NT}")
            if i < 3: e("s_add_u32 s9, s9, s11"); e("v_add_u32 v5, s63, v5")
    e(f"s_min_u32 s13, s2, {NRED-1}"); e("s_lshl_b32 s13, s13, 4"); e("v_and_b32 v6, 1, v1"); e("v_lshlrev_b32 v6, 3, v6"); e(f"v_add_u32 v{WR+36}, s13, v6")
    e(f"global_load_dwordx2 v[{WR+32}:{WR+33}], v{WR+36}, s[36:37]"); e(f"global_load_dwordx2 v[{WR+34}:{WR+35}], v{WR+36}, s[54:55]")

if not WLATE: wloads()
e("v_cmp_eq_u32 s[28:29], 1, v11"); e("v_cmp_eq_u32 s[30:31], 2, v11"); e("v_cmp_eq_u32 s[32:33], 3, v11")
e("s_mov_b32 s27, 0x3db504f3"); e("s_mov_b32 s34, 0x05040100"); e("s_mov_b32 s35, 0x07060302")
spin_lds(FQ, 4, 5, sleep=2)
get_nonce(4, 6)
stamp()
e("v_lshlrev_b32 v4, 4, v10")
e(f"ds_read_b128 v[96:99], v4 offset:{Q_T}"); e(f"ds_read_b128 v[100:103], v4 offset:{Q_T+256}")
e("v_and_b32 v4, 1, v1"); e("v_cmp_eq_u32 s[18:19], 1, v4")
e("s_waitcnt lgkmcnt(0)")
SR = 80
for i in range(8):
    e(f"s_waitcnt vmcnt({(8 if WLATE else 18)+7-i})")
    if i == 0: stamp()
    for k in range(4):
        for h in range(2):
            d = SR + 2*i + h
            c = "0" if k == 0 else f"v{d}"
            e(f"v_dot2_f32_bf16 v{d}, v{KR+4*i+k}, v{96+4*h+k}, {c}")
nop(2)
allreduce("v_add_f32", [SR + x for x in range(16)], [], rows=False)
for i in range(8): e(f"v_cvt_pk_bf16_f32 v{16+i}, v{SR+2*i}, v{SR+2*i+1}")
for i in range(8):
    e(f"v_lshlrev_b32 v{SR+2*i}, 16, v{16+i}"); e(f"v_and_b32 v{SR+2*i+1}, s25, v{16+i}")
for x in range(16): e(f"v_mul_f32 v{SR+x}, s27, v{SR+x}")
for i in range(8): e(f"v_cvt_pk_bf16_f32 v{16+i}, v{SR+2*i}, v{SR+2*i+1}")
for i in range(8):
    e(f"v_lshlrev_b32 v{SR+2*i}, 16, v{16+i}"); e(f"v_and_b32 v{SR+2*i+1}, s25, v{16+i}")
for h in range(2): e(f"v_max3_f32 v{24+h}, v{SR+h}, v{SR+2+h}, v{SR+4+h}")
for h in range(2): e(f"v_max3_f32 v{26+h}, v{SR+6+h}, v{SR+8+h}, v{SR+10+h}")
for h in range(2): e(f"v_max3_f32 v{24+h}, v{24+h}, v{SR+12+h}, v{SR+14+h}")
for h in range(2): e(f"v_max_f32 v{24+h}, v{24+h}, v{26+h}")
allreduce("v_max_f32", [24, 25], [26, 27], rors=())
for x in range(16): e(f"v_sub_f32 v{SR+x}, v{SR+x}, v{24+(x&1)}")
for x in range(16): e(f"v_mul_f32 v{SR+x}, s24, v{SR+x}")
for x in range(16): e(f"v_exp_f32 v{SR+x}, v{SR+x}")
nop(0)
for h in range(2): e(f"v_add_f32 v{28+h}, v{SR+h}, v{SR+2+h}"); e(f"v_add_f32 v{30+h}, v{SR+4+h}, v{SR+6+h}")
for h in range(2): e(f"v_add_f32 v{32+h}, v{SR+8+h}, v{SR+10+h}"); e(f"v_add_f32 v{34+h}, v{SR+12+h}, v{SR+14+h}")
for h in range(2): e(f"v_add_f32 v{28+h}, v{28+h}, v{30+h}"); e(f"v_add_f32 v{32+h}, v{32+h}, v{34+h}")
for h in range(2): e(f"v_add_f32 v{28+h}, v{28+h}, v{32+h}")
for t in range(4):
    e(f"v_cvt_pk_bf16_f32 v{16+t}, v{SR+4*t}, v{SR+4*t+2}"); e(f"v_cvt_pk_bf16_f32 v{36+t}, v{SR+4*t+1}, v{SR+4*t+3}")
for t in range(4): e(f"v_cndmask_b32 v{20+t}, v{16+t}, v{36+t}, s[18:19]")
allreduce("v_add_f32", [28, 29], [26, 27], rors=())
for t in range(4):
    e(f"s_waitcnt vmcnt({(6 if WLATE else 16)-2*t})")
    if t == 3 and HLATE == "fv":
        e(f"v_mov_b32 v4, {FV}"); e("v_mov_b32 v7, 1"); e("ds_write_b32 v4, v7")
    if WLATE and not WFO and t == 3: wloads()
    for d2 in range(4):
        lo, hi = VR+4*(2*t)+d2, VR+4*(2*t+1)+d2
        e(f"v_perm_b32 v{TB(2*d2, t)}, v{hi}, v{lo}, s34")
        e(f"v_perm_b32 v{TB(2*d2+1, t)}, v{hi}, v{lo}, s35")
nop(1)
for j in range(8):
    e(f"v_mfma_f32_16x16x32_bf16 v[{VR+4*j}:{VR+3+4*j}], v[20:23], v[{TB(j,0)}:{TB(j,3)}], 0")
stamp()
nop(7); nop(1)
for k in range(4): e(f"v_cndmask_b32 v{32+k}, v{VR+4*k}, v{VR+4*(k+4)}, s[28:29]")
for k in range(4): e(f"v_cndmask_b32 v{32+k}, v{32+k}, v{VR+4*k+1}, s[30:31]")
for k in range(4): e(f"v_cndmask_b32 v{32+k}, v{32+k}, v{VR+4*(k+4)+1}, s[32:33]")
e("v_lshrrev_b32 v5, 1, v11"); e("v_lshlrev_b32 v5, 9, v5"); e("v_lshl_add_u32 v5, v10, 5, v5")
e("v_and_b32 v6, 1, v11"); e("v_lshl_add_u32 v5, v6, 4, v5")
e("s_lshl_b32 s11, s7, 10"); e("v_add_u32 v5, s11, v5")
e(f"ds_write_b128 v5, v[32:35] offset:{OW}")
e("v_mov_b32 v36, v24"); e("v_mov_b32 v37, v28"); e("v_mov_b32 v38, v25"); e("v_mov_b32 v39, v29")
e("s_lshl_b32 s11, s7, 4"); e("v_mov_b32 v6, s11")
e(f"ds_write_b128 v6, v[36:39] offset:{ML_T}")
e("v_mov_b32 v7, 1"); e(f"v_mov_b32 v6, {CNT}")
e("s_waitcnt lgkmcnt(0)")
e("v_cmp_eq_u32 vcc, 0, v1"); e("s_and_saveexec_b64 s[20:21], vcc")
e("ds_add_rtn_u32 v7, v6, v7")
e("s_waitcnt lgkmcnt(0)")
e("s_mov_b64 exec, s[20:21]")
nop(0)
e("v_readfirstlane_b32 s11, v7")
e("s_cmp_lg_u32 s11, 7"); e("s_cbranch_scc1 L_kv_done")
e("v_mov_b32 v6, 0")
for w in range(8): e(f"ds_read_b128 v[{16+4*w}:{19+4*w}], v6 offset:{ML_T+16*w}")
e("v_lshlrev_b32 v5, 4, v1")
for w in range(8): e(f"ds_read_b128 v[{48+4*w}:{51+4*w}], v5 offset:{OW+1024*w}")
e("v_cmp_gt_u32 vcc, 32, v1")
e("s_waitcnt lgkmcnt(8)")
nop(0)
for w in range(8):
    e(f"v_cndmask_b32 v{80+w}, v{18+4*w}, v{16+4*w}, vcc")
    e(f"v_cndmask_b32 v{88+w}, v{19+4*w}, v{17+4*w}, vcc")
e("v_max3_f32 v8, v80, v81, v82"); e("v_max3_f32 v9, v83, v84, v85"); e("v_max3_f32 v8, v8, v86, v87"); e("v_max_f32 v8, v8, v9")
for w in range(8): e(f"v_sub_f32 v{80+w}, v{80+w}, v8")
for w in range(8): e(f"v_mul_f32 v{80+w}, s24, v{80+w}")
for w in range(8): e(f"v_exp_f32 v{80+w}, v{80+w}")
nop(0)
e("v_mul_f32 v9, v80, v88")
for w in range(1, 8): e(f"v_fmac_f32 v9, v{80+w}, v{88+w}")
e("s_waitcnt lgkmcnt(0)")
for k in range(4): e(f"v_mul_f32 v{96+k}, v80, v{48+k}")
for w in range(1, 8):
    for k in range(4): e(f"v_fmac_f32 v{96+k}, v{80+w}, v{48+4*w+k}")
gran(100, 96, 97); gran(104, 98, 99); gran(108, 8, 9)
e("s_lshl_b32 s11, s2, 12"); e(f"s_add_u32 s11, s11, {OB2}")
e("buffer_store_dwordx4 v[100:103], v5, s[88:91], s11 offen sc1")
e("buffer_store_dwordx4 v[104:107], v5, s[88:91], s11 offen offset:1024 sc1")
e("v_lshrrev_b32 v6, 5, v1"); e("v_lshlrev_b32 v6, 4, v6")
e("v_and_b32 v7, 31, v1"); e("v_cmp_eq_u32 vcc, 0, v7"); e("s_and_saveexec_b64 s[20:21], vcc")
e("buffer_store_dwordx4 v[108:111], v6, s[88:91], s11 offen offset:2048 sc1")
e("s_mov_b64 exec, s[20:21]")
set_flag(FO, 6, 7)
dbgmax(11)
lab("L_kv_done")
stamp()
if WFO:
    spin_lds(FO, 4, 5, sleep=1)
    wloads()
e("v_mov_b32 v26, v14")
for i in range(4):
    e(f"v_min_u32 v{40+i}, 95, v26"); e(f"v_lshlrev_b32 v{40+i}, 1, v{40+i}")
    if i < 3: e("v_add_u32 v26, s63, v26")
e("s_lshl_b32 s9, s62, 6"); e("s_add_u32 s9, s9, 32"); e("v_mul_lo_u32 v27, v14, s9"); e("v_lshl_add_u32 v27, v15, 5, v27")
e("s_lshl_b32 s10, s62, 5"); e("v_add_u32 v28, s10, v27")
e("v_cmp_gt_u32 s[94:95], s63, v14")
spin_lds(FH, 4, 5)
for i in range(4): e(f"ds_read_u16 v{16+i}, v{40+i} offset:{H_T}")
e("s_waitcnt lgkmcnt(0)")
for i in range(4): e(f"v_lshlrev_b32 v{32+i}, 16, v{16+i}")
e("s_waitcnt vmcnt(6)")
for i in range(4):
    for k in range(4):
        for z in range(2):
            d = 48 + 2*k + z
            c = "0" if i == 0 else f"v{d}"
            e(f"v_dot2_f32_bf16 v{d}, v{WR+4*i+k}, v{(16 if z == 0 else 32)+i}, {c}")
nop(2)
e("s_and_saveexec_b64 s[22:23], s[94:95]")
e(f"ds_write_b128 v28, v[48:51] offset:{AB}"); e(f"ds_write_b128 v28, v[52:55] offset:{AB+16}")
e("s_mov_b64 exec, s[22:23]")
e("s_waitcnt vmcnt(0)")
e("s_barrier")
stamp()
for i in range(4): e(f"ds_read_u16 v{20+i}, v{40+i} offset:{OF_T}")
e("s_waitcnt lgkmcnt(0)")
for i in range(4): e(f"v_lshlrev_b32 v{36+i}, 16, v{20+i}")
for i in range(4):
    for k in range(4):
        for z in range(2):
            d = 56 + 2*k + z
            c = "0" if i == 0 else f"v{d}"
            e(f"v_dot2_f32_bf16 v{d}, v{WR+16+4*i+k}, v{(20 if z == 0 else 36)+i}, {c}")
nop(2)
e("s_and_saveexec_b64 s[22:23], s[94:95]")
e(f"ds_write_b128 v27, v[56:59] offset:{AB}"); e(f"ds_write_b128 v27, v[60:63] offset:{AB+16}")
e("s_mov_b64 exec, s[22:23]")
e("s_waitcnt lgkmcnt(0)")
e("s_barrier")
def tail_reduce(CW, NS, TPG, SPT):
    RS = CW*64 + 32
    sh = {4: 2, 2: 1}[TPG]
    NG = CW*8
    e(f"v_cmp_gt_u32 vcc, {NG*TPG}, v13"); e("s_and_saveexec_b64 s[20:21], vcc")
    e("s_cbranch_execz L_p3skip")
    e(f"v_lshrrev_b32 v4, {sh}, v13")
    e("v_lshrrev_b32 v5, 3, v4"); e("v_lshlrev_b32 v5, 5, v5")
    e("v_and_b32 v6, 1, v4"); e("v_lshl_add_u32 v5, v6, 4, v5")
    e("v_bfe_u32 v6, v4, 1, 1"); e("v_lshl_add_u32 v5, v6, 3, v5")
    e("v_bfe_u32 v6, v4, 2, 1"); e(f"v_mul_u32_u24 v6, {CW*32}, v6"); e("v_add_u32 v5, v5, v6")
    e(f"v_and_b32 v6, {TPG-1}, v13"); e(f"v_mul_u32_u24 v7, {SPT*RS}, v6"); e("v_add_u32 v8, v5, v7")
    full = SPT if TPG*SPT == NS else SPT - 1
    for w in range(full): e(f"ds_read_b64 v[{32+2*w}:{33+2*w}], v8 offset:{AB+RS*w}")
    if full != SPT:
        e(f"v_mov_b32 v{32+2*full}, 0"); e(f"v_mov_b32 v{33+2*full}, 0")
        e("v_cmp_eq_u32 vcc, 0, v6"); e("s_and_saveexec_b64 s[22:23], vcc")
        e(f"ds_read_b64 v[{32+2*full}:{33+2*full}], v8 offset:{AB+RS*full}")
        e("s_mov_b64 exec, s[22:23]")
    e("s_waitcnt lgkmcnt(0)")
    n = SPT
    while n > 1:
        h = n // 2
        for w in range(h):
            for k in range(2): e(f"v_add_f32 v{32+2*w+k}, v{32+2*w+k}, v{32+2*(n-1-w)+k}")
        n = n - h
    nop(1)
    for k in range(2): dpp("v_add_f32", 32+k, "quad_perm:[1,0,3,2]")
    if TPG == 4:
        nop(1)
        for k in range(2): dpp("v_add_f32", 32+k, "quad_perm:[2,3,0,1]")
    gran(64, 32, 33)
    e("s_lshl_b32 s9, s2, 12"); e(f"s_add_u32 s9, s9, {OB3}"); e("v_lshlrev_b32 v3, 4, v4")
    e("v_cmp_eq_u32 vcc, 0, v6"); e("s_and_b64 exec, exec, vcc")
    e("buffer_store_dwordx4 v[64:67], v3, s[88:91], s9 offen sc1")
e("s_cmp_eq_u32 s62, 24"); e("s_cbranch_scc1 L_wide")
tail_reduce(16, 32, 4, 8)
e("s_branch L_p3skip")
lab("L_wide")
tail_reduce(24, 21, 2, 11)
lab("L_p3skip")
e("s_mov_b64 exec, s[20:21]")
lab("L_p3done")
stamp()
e(f"s_cmp_ge_u32 s2, {NRED}"); e("s_cbranch_scc1 L_fdone")
spin_lds(FC2, 4, 5)
e("s_lshr_b32 s10, s2, 4"); e("s_min_u32 s10, s10, 3"); e("s_lshl_b32 s11, s10, 4"); e("s_sub_u32 s11, s2, s11")
e("v_lshrrev_b32 v4, 3, v13"); e("v_lshrrev_b32 v6, 2, v4"); e("v_lshlrev_b32 v6, 3, v6")
e(f"ds_read_b64 v[72:73], v6 offset:{NT_T}")
e("v_lshlrev_b32 v4, 14, v4"); e("v_and_b32 v5, 7, v13"); e("v_lshl_add_u32 v4, v5, 4, v4")
e("s_lshl_b32 s9, s10, 12"); e("s_lshl_b32 s11, s11, 7"); e("s_add_u32 s9, s9, s11"); e(f"s_add_u32 s9, s9, {OB3}")
e("s_waitcnt lgkmcnt(0)")
poll(["buffer_load_dwordx4 v[48:51], v4, s[88:91], s9 offen sc1"], [48], 40, tags=[("v72", "v73")])
e("v_mov_b32 v32, v49"); e("v_mov_b32 v33, v50")
allreduce("v_add_f32", [32, 33], [64, 65], rors=(8,))
e("s_lshl_b32 s9, s7, 6"); e("v_lshl_add_u32 v5, v1, 3, s9")
e("v_cmp_gt_u32 vcc, 8, v1"); e("s_and_saveexec_b64 s[20:21], vcc")
e(f"ds_write_b64 v5, v[32:33] offset:{R3_T}")
e("s_mov_b64 exec, s[20:21]")
e("s_waitcnt lgkmcnt(0)")
e("s_barrier")
e("s_cmp_lg_u32 s7, 0"); e("s_cbranch_scc1 L_fdone")
e("v_and_b32 v5, 1, v1"); e("v_lshlrev_b32 v5, 3, v5")
for w in range(8):
    for q in range(4): e(f"ds_read_b64 v[{48+8*w+2*q}:{49+8*w+2*q}], v5 offset:{R3_T+64*w+16*q}")
for w in range(1, 8):
    e(f"s_waitcnt lgkmcnt({min(15, 28-4*w)})")
    for k in range(8): e(f"v_add_f32 v{48+k}, v{48+k}, v{48+8*w+k}")
for k in range(4): e(f"v_mov_b32 v{64+k}, v{52+k}")
def rne4(r):
    e(f"v_cvt_pk_bf16_f32 v80, v{r}, v{r+1}"); e(f"v_cvt_pk_bf16_f32 v81, v{r+2}, v{r+3}")
    e(f"v_lshlrev_b32 v{r}, 16, v80"); e(f"v_and_b32 v{r+1}, s25, v80"); e(f"v_lshlrev_b32 v{r+2}, 16, v81"); e(f"v_and_b32 v{r+3}, s25, v81")
rne4(48); rne4(64)
X, B2 = WR+32, WR+34
e(f"v_lshlrev_b32 v52, 16, v{X}"); e(f"v_and_b32 v53, s25, v{X}"); e(f"v_lshlrev_b32 v54, 16, v{X+1}"); e(f"v_and_b32 v55, s25, v{X+1}")
e(f"v_lshlrev_b32 v56, 16, v{B2}"); e(f"v_and_b32 v57, s25, v{B2}"); e(f"v_lshlrev_b32 v58, 16, v{B2+1}"); e(f"v_and_b32 v59, s25, v{B2+1}")
for k in range(4): e(f"v_add_f32 v{48+k}, v{52+k}, v{48+k}"); e(f"v_add_f32 v{64+k}, v{64+k}, v{56+k}")
rne4(48); rne4(64)
for k in range(4): e(f"v_add_f32 v{48+k}, v{48+k}, v{64+k}")
e("v_cvt_pk_bf16_f32 v80, v48, v49"); e("v_cvt_pk_bf16_f32 v81, v50, v51")
e("v_cmp_gt_u32 vcc, 2, v1"); e("s_and_saveexec_b64 s[20:21], vcc")
e(f"global_store_dwordx2 v{WR+36}, v[80:81], s[56:57]")
e("s_mov_b64 exec, s[20:21]")
dbgmax(8)
lab("L_fdone")
stamp()
stamp_store()
e("s_endpgm")
SB[0] = 160
mark("A0")
lab("L_roles")
e("s_cmp_eq_u32 s3, 2"); e("s_cbranch_scc1 L_sync")
e("s_cmp_lg_u32 s3, 0"); e("s_cbranch_scc1 L_h")
nstamp[0] = ns0
srd(72, 42, 576*4096*2)
e("v_lshlrev_b32 v3, 4, v1"); e("global_load_dwordx4 v[4:7], v3, s[36:37]")
e("v_lshlrev_b32 v9, 1, v1"); e("global_load_ushort v8, v9, s[36:37] offset:1024")
e("v_lshrrev_b32 v19, 3, v1"); e("v_and_b32 v2, 7, v1")
e("v_lshlrev_b32 v116, 13, v19"); e("v_lshl_add_u32 v116, v2, 4, v116")
e("s_and_b32 s8, s2, 3"); e("s_mul_i32 s8, s8, 144")
e("s_lshl_b32 s9, s8, 13"); e("s_lshr_b32 s10, s2, 2"); e("s_lshl_b32 s10, s10, 7"); e("s_add_u32 s9, s9, s10")
for i in range(18):
    e(f"buffer_load_dwordx4 v[{32+4*i}:{35+4*i}], v116, s[72:75], s9 offen{NT}")
    if i < 17: e("s_add_u32 s9, s9, 65536")
e("s_branch L_w0b")
mark("A1")
lab("L_w0b")
e("s_barrier")
e("s_waitcnt vmcnt(18)")
stamp()
unpack9(4, 8)
layernorm(4, 8)
e(f"ds_write_b128 v3, v[4:7] offset:{XN_T}"); e(f"ds_write_b16 v9, v8 offset:{XN_T+1024}")
e("s_lshl_b32 s9, s8, 1"); e("v_lshl_add_u32 v2, v19, 1, s9")
e("s_waitcnt lgkmcnt(0)")
get_nonce(30, 114)
tile_products(XN_T, 16, 18)
stamp()
nop(2)
for k in range(4): e(f"v_permlane32_swap_b32 v{104+k}, v{108+k}")
nop(0)
for k in range(4): e(f"v_add_f32 v{104+k}, v{104+k}, v{108+k}")
nop(1)
for k in range(2): e(f"v_permlane16_swap_b32 v{104+k}, v{106+k}")
nop(0)
for k in range(2): e(f"v_add_f32 v{104+k}, v{104+k}, v{106+k}")
nop(1)
for k in range(2): dpp("v_add_f32", 104+k, "row_ror:8")
gran(12, 104, 105)
e("v_and_b32 v2, 7, v1"); e("v_lshlrev_b32 v2, 6, v2"); e("v_lshrrev_b32 v10, 5, v1"); e("v_lshl_add_u32 v2, v10, 5, v2")
e("v_bfe_u32 v10, v1, 4, 1"); e("v_lshl_add_u32 v2, v10, 4, v2")
e("s_lshl_b32 s9, s2, 13")
e("v_and_b32 v10, 8, v1"); e("v_cmp_eq_u32 vcc, 0, v10"); e("s_and_saveexec_b64 s[20:21], vcc")
e("buffer_store_dwordx4 v[12:15], v2, s[88:91], s9 offen sc1")
if BOARD:
    e("s_lshl_b32 s9, s4, 17"); e("s_lshl_b32 s10, s5, 4"); e("v_mov_b32 v2, s10")
    e("v_cmp_eq_u32 vcc, 0, v1"); e("s_and_b64 exec, exec, vcc")
    e("buffer_store_dwordx4 v[12:15], v2, s[88:91], s9 offen offset:3840 sc1")
e("s_mov_b64 exec, s[20:21]")
stamp()
dbgmax(13)
if BOARD:
    e("v_and_b32 v2, 15, v1"); e("v_lshlrev_b32 v2, 4, v2")
    poll(["buffer_load_dwordx4 v[32:35], v2, s[88:91], s9 offen offset:3840 sc1"], [32], 20, sleep=BSLEEP)
e("s_lshl_b32 s9, s4, 17"); e("v_and_b32 v3, 31, v1"); e("v_lshlrev_b32 v3, 4, v3"); e("v_lshrrev_b32 v10, 5, v1"); e("v_lshl_add_u32 v3, v10, 15, v3")
loads = []
for i2 in range(2):
    for rb in range(4):
        n = 4*i2 + rb
        loads.append(f"s_add_u32 s10, s9, {8192*(8*i2+rb)}")
        loads.append(f"buffer_load_dwordx4 v[{32+4*n}:{35+4*n}], v3, s[88:91], s10 offen sc1")
poll(loads, [32+4*x for x in range(8)], 20)
stamp()
for i2 in range(2):
    b0 = 32 + 16*i2
    for k in (1, 2): e(f"v_add_f32 v{b0+k}, v{b0+k}, v{b0+4+k}"); e(f"v_add_f32 v{b0+8+k}, v{b0+8+k}, v{b0+12+k}")
for i2 in range(2):
    b0 = 32 + 16*i2
    for k in (1, 2): e(f"v_add_f32 v{b0+k}, v{b0+k}, v{b0+8+k}")
e("v_cvt_pk_bf16_f32 v32, v33, v34"); e("v_cvt_pk_bf16_f32 v33, v49, v50")
e("v_lshlrev_b32 v4, 2, v1")
e(f"ds_write_b32 v4, v32 offset:{Q_T}"); e(f"ds_write_b32 v4, v33 offset:{Q_T+256}")
e("s_waitcnt lgkmcnt(0)")
set_flag(FQ, 10, 11)
stamp()
dbgmax(10)
e("v_lshrrev_b32 v4, 4, v1"); e("v_lshlrev_b32 v4, 14, v4")
e("v_and_b32 v5, 15, v1"); e("v_lshl_add_u32 v5, v5, 4, v4")
e("s_lshl_b32 s9, s4, 16"); e(f"s_add_u32 s9, s9, {OB2}")
e("s_lshr_b32 s11, s5, 2"); e("s_lshl_b32 s10, s11, 8"); e("s_add_u32 s10, s10, s9")
e("s_lshr_b32 s11, s5, 3"); e("s_lshl_b32 s11, s11, 4"); e("s_add_u32 s11, s11, s9")
spin_lds(FO, 10, 11, sleep=2)
loads = []
for i in range(4):
    loads.append(f"s_add_u32 s13, s10, {4096*i}"); loads.append(f"s_add_u32 s15, s11, {4096*i}")
    loads.append(f"buffer_load_dwordx4 v[{32+12*i}:{35+12*i}], v5, s[88:91], s13 offen sc1")
    loads.append(f"buffer_load_dwordx4 v[{36+12*i}:{39+12*i}], v5, s[88:91], s13 offen offset:1024 sc1")
    loads.append(f"buffer_load_dwordx4 v[{40+12*i}:{43+12*i}], v4, s[88:91], s15 offen offset:2048 sc1")
poll(loads, [32+4*x for x in range(12)], 20, sleep=X2SLEEP)
stamp()
e("v_max3_f32 v84, v41, v53, v65"); e("v_max_f32 v84, v84, v77")
allreduce("v_max_f32", [84], [85], rors=())
for i in range(4): e(f"v_sub_f32 v{41+12*i}, v{41+12*i}, v84")
for i in range(4): e(f"v_mul_f32 v{41+12*i}, s24, v{41+12*i}")
for i in range(4): e(f"v_exp_f32 v{41+12*i}, v{41+12*i}")
nop(0)
for n, k in enumerate((33, 34, 37, 38, 42)): e(f"v_mul_f32 v{86+n}, v41, v{k}")
for i in range(1, 4):
    for n, k in enumerate((33, 34, 37, 38, 42)): e(f"v_fmac_f32 v{86+n}, v{41+12*i}, v{k+12*i}")
allreduce("v_add_f32", [86, 87, 88, 89, 90], [91, 92, 93, 94, 95], rors=())
e("v_rcp_f32 v90, v90"); nop(0)
for k in range(4): e(f"v_mul_f32 v{86+k}, v90, v{86+k}")
e("v_cvt_pk_bf16_f32 v86, v86, v87"); e("v_cvt_pk_bf16_f32 v87, v88, v89")
e("v_cmp_gt_u32 vcc, 16, v1"); nop(1); e("v_cndmask_b32 v86, 0, v86, vcc"); e("v_cndmask_b32 v87, 0, v87, vcc")
e("v_lshlrev_b32 v4, 3, v1")
e("v_cmp_gt_u32 vcc, 24, v1"); e("s_and_saveexec_b64 s[20:21], vcc")
e(f"ds_write_b64 v4, v[86:87] offset:{OF_T}")
e("s_mov_b64 exec, s[20:21]")
e("s_waitcnt lgkmcnt(0)")
e("s_barrier")
dbgmax(12)
stamp()
stamp_store()
e("s_endpgm")

mark("B0")
lab("L_h")
nstamp[0] = ns0
e("s_cmp_eq_u32 s3, 1"); e("s_cbranch_scc1 L_h1")
if PF:
    e("s_cmp_ge_u32 s2, 16"); e("s_cbranch_scc1 L_nopf")
    e("s_getpc_b64 s[10:11]")
    lab("L_pc")
    e(f"s_sub_u32 s10, s10, L_pc-{NAME}_kernel"); e("s_subb_u32 s11, s11, 0")
    e("v_lshlrev_b32 v3, 4, v1")
    e("s_mov_b32 s12, 0")
    lab("L_pf")
    e("global_load_dwordx4 v[4:7], v3, s[10:11]")
    e("v_add_u32 v3, 1024, v3"); e("s_add_u32 s12, s12, 1024")
    e(f"s_cmp_lt_u32 s12, L_end-{NAME}_kernel-1024"); e("s_cbranch_scc1 L_pf")
    lab("L_nopf")
e("s_barrier")
e("s_endpgm")
lab("L_h1")
srd(80, 48, 576*4608*2)
e("v_lshlrev_b32 v3, 4, v1"); e("global_load_dwordx4 v[4:7], v3, s[36:37]")
e("v_lshlrev_b32 v9, 1, v1"); e("global_load_ushort v8, v9, s[36:37] offset:1024")
e("v_mul_u32_u24 v140, 3641, v1"); e("v_lshrrev_b32 v140, 16, v140")
e("v_mul_u32_u24 v141, 18, v140"); e("v_sub_u32 v141, v1, v141")
e("s_movk_i32 s12, 9216"); e("v_mul_lo_u32 v142, v140, s12"); e("v_lshl_add_u32 v142, v141, 4, v142")
e(f"v_mov_b32 v2, {INV}"); e("v_cmp_gt_u32 vcc, 54, v1"); nop(1); e("v_cndmask_b32 v142, v2, v142, vcc")
e("s_and_b32 s8, s5, 7"); e("s_mul_i32 s8, s8, 72")
e("s_mul_i32 s9, s8, 9216"); e("s_mul_i32 s10, s4, 576"); e("s_add_u32 s9, s9, s10"); e("s_lshr_b32 s10, s5, 3"); e("s_mul_i32 s10, s10, 288"); e("s_add_u32 s9, s9, s10")
def hloads():
    for i in range(24):
        e(f"buffer_load_dwordx4 v[{32+4*i}:{35+4*i}], v142, s[80:83], s18 offen{NT}")
        if i < 23: e(f"s_add_u32 s18, s18, {3*9216}")
e("s_mov_b32 s18, s9")
if not HLATE: hloads()
e("s_branch L_w1b")
mark("B1")
lab("L_w1b")
e("s_barrier")
e(f"s_waitcnt vmcnt({0 if HLATE else 24})")
stamp()
LNBASE[0] = 144
unpack9(4, 8); layernorm(4, 8); unpack9(4, 8); layernorm(4, 8)
LNBASE[0] = 104
e(f"ds_write_b128 v3, v[4:7] offset:{Y_T}"); e(f"ds_write_b16 v9, v8 offset:{Y_T+1024}")
e("s_lshl_b32 s9, s8, 1"); e("v_min_u32 v2, 2, v140"); e("v_lshl_add_u32 v2, v2, 1, s9")
e("s_waitcnt lgkmcnt(0)")
get_nonce(30, 144)
if HLATE:
    spin_lds({"fv": FV, "fo": FO, "fq": FQ}[HLATE], 30, 31, sleep=4)
    hloads()
ACC = 128
tile_products(Y_T, 6, 24)
stamp()
e("v_lshlrev_b32 v2, 5, v1")
e(f"ds_write_b128 v2, v[{ACC}:{ACC+3}] offset:{HR}"); e(f"ds_write_b128 v2, v[{ACC+4}:{ACC+7}] offset:{HR+16}")
ACC = 104
e("v_lshlrev_b32 v2, 3, v1")
e("s_waitcnt lgkmcnt(0)")
for n in range(2):
    for sub in range(3): e(f"ds_read_b64 v[{32+8*n+2*sub}:{33+8*n+2*sub}], v2 offset:{HR+512*n+576*sub}")
e("s_waitcnt lgkmcnt(0)")
for n in range(2):
    for k in range(2): e(f"v_add_f32 v{32+8*n+k}, v{32+8*n+k}, v{34+8*n+k}"); e(f"v_add_f32 v{32+8*n+k}, v{32+8*n+k}, v{36+8*n+k}")
gran(12, 32, 33); gran(16, 40, 41)
e("v_lshlrev_b32 v2, 4, v1")
e("s_lshl_b32 s9, s2, 13")
e("buffer_store_dwordx4 v[12:15], v2, s[88:91], s9 offen offset:1024 sc1")
e("v_cmp_gt_u32 vcc, 8, v1"); e("s_and_saveexec_b64 s[20:21], vcc")
e("buffer_store_dwordx4 v[16:19], v2, s[88:91], s9 offen offset:2048 sc1")
e("s_mov_b64 exec, s[20:21]")
e("v_min_u32 v7, 35, v1")
e("s_lshr_b32 s8, s5, 2")
e("s_mul_i32 s9, s4, 576"); e("s_mul_i32 s10, s8, 144"); e("s_add_u32 s9, s9, s10"); e("v_lshl_add_u32 v6, v7, 2, s9")
e("global_load_dword v30, v6, s[50:51]")
stamp()
e("v_lshlrev_b32 v7, 4, v7")
e("s_lshl_b32 s9, s4, 17"); e("s_lshr_b32 s10, s5, 3"); e("s_lshl_b32 s10, s10, 16"); e("s_add_u32 s9, s9, s10")
e("s_and_b32 s10, s8, 1"); e("s_mul_i32 s10, s10, 576"); e("s_add_u32 s9, s9, s10")
spin_lds(FQ, 10, 11, sleep=4)
loads = []
for i in range(8):
    loads.append(f"s_add_u32 s10, s9, {8192*i + 1024}")
    loads.append(f"buffer_load_dwordx4 v[{32+4*i}:{35+4*i}], v7, s[88:91], s10 offen sc1")
poll(loads, [32+4*i for i in range(8)], 20, sleep=2)
stamp()
for st in (4, 2, 1):
    for p in range(st):
        for k in (1, 2): e(f"v_add_f32 v{32+4*p+k}, v{32+4*p+k}, v{32+4*(p+st)+k}")
e("v_cvt_pk_bf16_f32 v35, v33, v34"); e("v_lshlrev_b32 v33, 16, v35"); e("v_and_b32 v34, s25, v35")
e("v_lshlrev_b32 v36, 16, v30"); e("v_and_b32 v37, s25, v30")
e("v_add_f32 v33, v33, v36"); e("v_add_f32 v34, v34, v37")
e("v_cvt_pk_bf16_f32 v35, v33, v34"); e("v_lshlrev_b32 v33, 16, v35"); e("v_and_b32 v34, s25, v35")
for r in (33, 34):
    t = r + 7
    u = r + 9
    e(f"v_mul_f32 v{t}, v{r}, v{r}"); e(f"v_mul_f32 v{t}, v{t}, v{r}"); e(f"v_mov_b32 v{u}, v{r}"); e(f"v_fmac_f32 v{u}, 0x3d372713, v{t}")
    e(f"v_mul_f32 v{u}, 0x40135761, v{u}"); e(f"v_exp_f32 v{u}, v{u}"); nop(0); e(f"v_add_f32 v{u}, 1.0, v{u}"); e(f"v_rcp_f32 v{u}, v{u}"); nop(0)
    e(f"v_fma_f32 v{u}, -2.0, v{u}, 1.0")
    e(f"v_add_f32 v{u}, 1.0, v{u}"); e(f"v_mul_f32 v{t}, 0.5, v{r}"); e(f"v_mul_f32 v{u}, v{t}, v{u}")
e("v_cvt_pk_bf16_f32 v35, v42, v43")
e("v_cmp_gt_u32 vcc, 36, v1"); nop(1); e("v_cndmask_b32 v35, 0, v35, vcc")
e("v_lshlrev_b32 v4, 2, v1")
e("v_cmp_gt_u32 vcc, 48, v1"); e("s_and_saveexec_b64 s[20:21], vcc")
e(f"ds_write_b32 v4, v35 offset:{H_T}")
e("s_mov_b64 exec, s[20:21]")
e("s_waitcnt lgkmcnt(0)")
set_flag(FH, 10, 11)
stamp()
stamp_store()
e("s_endpgm")

mark("C0")
lab("L_sync")
nstamp[0] = ns0
dbgmax(9, inv=True); dbgmax(14)
e("s_memrealtime s[16:17]")
e("s_and_b32 s9, s4, 3"); e("s_lshl_b32 s9, s9, 6"); e("s_lshr_b32 s10, s4, 2"); e("s_lshl_b32 s10, s10, 3"); e("s_add_u32 s9, s9, s10")
e("v_mov_b32 v2, s9"); e("v_mov_b32 v6, 0"); e("v_mov_b32 v7, 0")
for k in range(4): e(f"v_mov_b32 v{8+k}, 0")
e(f"v_mov_b32 v12, {FLG}")
e("s_waitcnt lgkmcnt(0)")
e("s_or_b32 s16, s16, 1")
e("v_mov_b32 v4, s16"); e("v_mov_b32 v5, s17")
e("v_cmp_eq_u32 vcc, 0, v1"); e("s_and_saveexec_b64 s[20:21], vcc")
e("global_atomic_cmpswap_x2 v[14:15], v2, v[4:7], s[58:59] sc0")
e("s_mov_b64 exec, s[20:21]")
e("ds_write_b128 v12, v[8:11]"); e("ds_write_b128 v12, v[8:11] offset:16")
e("s_waitcnt lgkmcnt(0)")
e("s_branch L_w2b")
mark("C1")
lab("L_w2b")
e("s_barrier")
e("s_waitcnt vmcnt(0)")
nop(0)
e("v_readfirstlane_b32 s10, v14"); e("v_readfirstlane_b32 s11, v15")
e("s_cmp_eq_u32 s10, 0"); e("s_cselect_b32 s16, s16, s10"); e("s_cselect_b32 s17, s17, s11")
e("v_mov_b32 v4, s16"); e("v_mov_b32 v5, s17"); e(f"v_mov_b32 v12, {NONCE}")
e("ds_write_b64 v12, v[4:5]")
e("s_waitcnt lgkmcnt(0)")
stamp()
e(f"s_cmp_ge_u32 s2, {NRED}"); e("s_cbranch_scc1 L_w2end")
spin_lds(FQ, 12, 13, sleep=8)
e("v_and_b32 v2, 15, v1"); e("v_and_b32 v3, 3, v2"); e("v_lshlrev_b32 v3, 6, v3"); e("v_lshrrev_b32 v4, 2, v2"); e("v_lshl_add_u32 v3, v4, 3, v3")
l_, d_ = newlab("np"), newlab("npd")
e("s_mov_b32 s12, 0")
lab(l_)
e("global_load_dwordx2 v[4:5], v3, s[58:59] sc1")
e("s_add_u32 s12, s12, 1")
e("s_waitcnt vmcnt(0)")
e("v_cmp_eq_u32 vcc, 0, v4")
e(f"s_cmp_gt_u32 s12, {SPINMAX}"); e(f"s_cbranch_scc1 {d_}")
e(f"s_cbranch_vccz {d_}")
e("s_sleep 8"); e(f"s_branch {l_}")
lab(d_)
e("v_lshlrev_b32 v2, 3, v2")
e(f"ds_write_b64 v2, v[4:5] offset:{NT_T}")
e("s_waitcnt lgkmcnt(0)")
set_flag(FC2, 10, 11)
lab("L_w2end")
stamp()
stamp_store()
e("s_endpgm")

lab("L_end")
e("s_endpgm")
L += ['.section .rodata,"a"', ".p2align 6", f".amdhsa_kernel {NAME}_kernel", "  .amdhsa_next_free_vgpr 168", "  .amdhsa_next_free_sgpr 102",
      "  .amdhsa_accum_offset 168", "  .amdhsa_group_segment_fixed_size 0", "  .amdhsa_kernarg_size 104", "  .amdhsa_user_sgpr_count 2",
      "  .amdhsa_user_sgpr_kernarg_segment_ptr 1", "  .amdhsa_system_sgpr_workgroup_id_x 1", ".end_amdhsa_kernel"]
def cut(a, b):
    i = L.index(";;MARK " + a); j = L.index(";;MARK " + b)
    blk = L[i+1:j]; del L[i:j+1]
    return blk
blocks = cut("A0", "A1") + cut("B0", "B1") + cut("C0", "C1")
k = L.index(";;MARK INS"); L[k:k+1] = blocks
open(out, "w").write("\n".join(L) + "\n")
```

```python
import sys
NAME = "parallel_sum__sliding_block_cached__mixer_channel_mlp__decode"
out = sys.argv[1]
opts = set(sys.argv[2:])
PROF = "prof" in opts
NT = " nt"
SPINMAX = 400000
def optint(p, d):
    for o in opts:
        if o.startswith(p) and o[len(p):].isdigit(): return int(o[len(p):])
    return d
THR = optint("thr", 0)
PTH = optint("pth", 0)
X2SLEEP = optint("x2s", 2)
WFO = "wfo" in opts
BOARD = "noboard" not in opts
BSLEEP = optint("bs", 2)
PF = "nopf" not in opts
TOUCH = "touch" in opts
DBG = "dbgt" in opts
DBGW = optint("dw", -1)
DBGWG = optint("dg", 0)
EARLY = "noearly" not in opts
WLATE = "wlate" in opts or WFO
HLATE = "fv" if "hfv" in opts else ("fo" if "hfo" in opts else ("fq" if "hfq" in opts else ""))

L = []
def e(s): L.append("    " + s)
def lab(s): L.append(s + ":")
def mark(s): L.append(";;MARK " + s)
def nop(n): e(f"s_nop {n}")

OB1, OB2, OB3 = 0, 2 << 20, 4 << 20
INV = 0x40000000
NRED = 72
XN_T = 0
Y_T = 1216
Q_T = 2432
FLG = 3072
CNT, FQ, FC2, FO, NONCE, FV, FH = FLG, FLG+4, FLG+8, FLG+12, FLG+16, FLG+24, FLG+28
ML_T = 3136
NT_T = 3264
PW = 3456
R3_T = 4480
H_T = 4992
OF_T = 5184
HR = 47616
OW = 5632
AB = 13824
LDS_BYTES = 49664
def TB(j, t): return 80 + 4*j + t

nstamp = [0]
SB = [160]
def stamp():
    if not PROF: return
    k = nstamp[0]; nstamp[0] += 1
    assert k < 8
    e("s_memrealtime s[92:93]"); e("s_waitcnt lgkmcnt(0)"); e(f"v_mov_b32 v{SB[0]+k}, s92")
def stamp_store():
    if not PROF: return
    if DBGW >= 0:
        l = newlab("nd")
        e(f"s_cmp_lg_u32 s2, {DBGWG}"); e(f"s_cbranch_scc1 {l}"); e(f"s_cmp_lg_u32 s3, {DBGW}"); e(f"s_cbranch_scc1 {l}")
        e("v_mov_b32 v2, 32")
        e("v_cmp_eq_u32 vcc, 0, v1"); e("s_and_saveexec_b64 s[20:21], vcc")
        e(f"global_store_dwordx4 v2, v[{SB[0]}:{SB[0]+3}], s[58:59]"); e(f"global_store_dwordx4 v2, v[{SB[0]+4}:{SB[0]+7}], s[58:59] offset:16")
        e("s_mov_b64 exec, s[20:21]")
        lab(l)
        return
    e("s_lshl_b32 s6, s2, 4"); e("s_add_u32 s6, s6, s3"); e("s_lshl_b32 s6, s6, 6"); e(f"s_add_u32 s6, s6, {16<<20}")
    e("v_mov_b32 v2, s6")
    e("v_cmp_eq_u32 vcc, 0, v1"); e("s_and_saveexec_b64 s[20:21], vcc")
    for q in range(2):
        e(f"buffer_store_dwordx4 v[{SB[0]+4*q}:{SB[0]+3+4*q}], v2, s[88:91], 0 offen offset:{16*q}")
    e("s_mov_b64 exec, s[20:21]")

def dbgmax(word, inv=False):
    if not DBG: return
    e("s_memrealtime s[92:93]"); e("s_waitcnt lgkmcnt(0)")
    if inv: e("s_not_b32 s92, s92")
    e("v_mov_b32 v166, s92"); e(f"v_mov_b32 v167, {4*word}")
    e("v_cmp_eq_u32 vcc, 0, v1"); e("s_and_saveexec_b64 s[96:97], vcc")
    e("global_atomic_umax v167, v166, s[58:59]")
    e("s_mov_b64 exec, s[96:97]")

def dpp(op, d, ctrl):
    e(f"{op}_dpp v{d}, v{d}, v{d} {ctrl} row_mask:0xf bank_mask:0xf")

def allreduce(op, regs, tmps, rors=(8, 4, 2, 1), rows=True):
    for r in rors:
        nop(1)
        for v in regs: dpp(op, v, f"row_ror:{r}")
    if rows:
        for sw in ("v_permlane16_swap_b32", "v_permlane32_swap_b32"):
            for v, t in zip(regs, tmps): e(f"v_mov_b32 v{t}, v{v}")
            nop(1)
            for v, t in zip(regs, tmps): e(f"{sw} v{v}, v{t}")
            nop(0)
            for v, t in zip(regs, tmps): e(f"{op} v{v}, v{v}, v{t}")

lbl_id = [0]
def newlab(p):
    lbl_id[0] += 1
    return f"L_{p}_{lbl_id[0]}"

def spin_lds(addr, va, vd, sleep=1):
    l, d = newlab("spin"), newlab("spind")
    e(f"v_mov_b32 v{va}, {addr}"); e("s_mov_b32 s12, 0")
    lab(l)
    e(f"ds_read_b32 v{vd}, v{va}")
    e("s_add_u32 s12, s12, 1")
    e("s_waitcnt lgkmcnt(0)")
    e(f"v_cmp_ne_u32 vcc, 0, v{vd}")
    e(f"s_cmp_gt_u32 s12, {SPINMAX*4}"); e(f"s_cbranch_scc1 {d}")
    e(f"s_cbranch_vccnz {d}")
    e(f"s_sleep {sleep}")
    e(f"s_branch {l}")
    lab(d)

def get_nonce(va, vd):
    l, d = newlab("gn"), newlab("gnd")
    e(f"v_mov_b32 v{va}, {NONCE}"); e("s_mov_b32 s12, 0")
    lab(l)
    e(f"ds_read_b64 v[{vd}:{vd+1}], v{va}")
    e("s_add_u32 s12, s12, 1")
    e("s_waitcnt lgkmcnt(0)")
    e(f"v_cmp_ne_u32 vcc, 0, v{vd}")
    e(f"s_cmp_gt_u32 s12, {SPINMAX*4}"); e(f"s_cbranch_scc1 {d}")
    e(f"s_cbranch_vccnz {d}")
    e("s_sleep 1")
    e(f"s_branch {l}")
    lab(d)
    e(f"v_readfirstlane_b32 s16, v{vd}"); e(f"v_readfirstlane_b32 s17, v{vd+1}")
    nop(1)

def set_flag(addr, va, vd):
    e(f"v_mov_b32 v{va}, {addr}"); e(f"v_mov_b32 v{vd}, 1"); e(f"ds_write_b32 v{va}, v{vd}"); e("s_waitcnt lgkmcnt(0)")

def gran(dst, a, b):
    e(f"v_mov_b32 v{dst}, s16"); e(f"v_mov_b32 v{dst+1}, v{a}"); e(f"v_mov_b32 v{dst+2}, v{b}"); e(f"v_mov_b32 v{dst+3}, s17")

def poll(loads, grans, t0, tags=None, sleep=0):
    l, d = newlab("poll"), newlab("polld")
    e("s_mov_b32 s12, 0")
    lab(l)
    for x in loads: e(x)
    e("s_add_u32 s12, s12, 1")
    e("s_waitcnt vmcnt(0)")
    for n, g in enumerate(grans):
        tl, th = ("s16", "s17") if tags is None else tags[n]
        e(f"v_xor_b32 v{t0+1}, {tl}, v{g}"); e(f"v_xor_b32 v{t0+2}, {th}, v{g+3}")
        if n == 0: e(f"v_or_b32 v{t0}, v{t0+1}, v{t0+2}")
        else: e(f"v_or3_b32 v{t0}, v{t0}, v{t0+1}, v{t0+2}")
    e(f"v_cmp_ne_u32 vcc, 0, v{t0}")
    e(f"s_cmp_gt_u32 s12, {SPINMAX}"); e(f"s_cbranch_scc1 {d}")
    e(f"s_cbranch_vccz {d}")
    if sleep: e(f"s_sleep {sleep}")
    e(f"s_branch {l}")
    lab(d)

nload = [0]
def thr():
    i = nload[0]; nload[0] += 1
    if i >= 16 and WLATE: return
    if PTH:
        if i >= PTH: e(f"s_waitcnt vmcnt({PTH-1})")
        return
    if not THR or i < THR: return
    l = newlab("thr")
    e("s_cmp_lg_u32 s14, 0"); e(f"s_cbranch_scc1 {l}")
    e("ds_read_b32 v9, v8")
    e("s_waitcnt lgkmcnt(0)")
    nop(0)
    e("v_readfirstlane_b32 s14, v9")
    e("s_cmp_lg_u32 s14, 0"); e(f"s_cbranch_scc1 {l}")
    e(f"s_waitcnt vmcnt({THR-1})")
    lab(l)

def srd(d, p, n):
    e(f"s_mov_b32 s{d}, s{p}"); e(f"s_and_b32 s{d+1}, s{p+1}, 0xffff"); e(f"s_mov_b32 s{d+2}, {n}"); e(f"s_mov_b32 s{d+3}, 0x20000")

def unpack9(p, p8):
    for k in range(4):
        e(f"v_lshlrev_b32 v{10+2*k}, 16, v{p+k}"); e(f"v_and_b32 v{11+2*k}, s25, v{p+k}")
    e(f"v_lshlrev_b32 v18, 16, v{p8}")
LNBASE = [104]
def layernorm(outp, out8):
    D = 20
    e(f"v_add_f32 v{LNBASE[0]+0}, v10, v11"); e(f"v_add_f32 v{LNBASE[0]+1}, v12, v13"); e(f"v_add_f32 v{LNBASE[0]+2}, v14, v15"); e(f"v_add_f32 v{LNBASE[0]+3}, v16, v17")
    e(f"v_add_f32 v{LNBASE[0]+0}, v{LNBASE[0]+0}, v{LNBASE[0]+1}"); e(f"v_add_f32 v{LNBASE[0]+2}, v{LNBASE[0]+2}, v{LNBASE[0]+3}"); e(f"v_add_f32 v{LNBASE[0]+0}, v{LNBASE[0]+0}, v18"); e(f"v_add_f32 v{LNBASE[0]+0}, v{LNBASE[0]+0}, v{LNBASE[0]+2}")
    allreduce(f"v_add_f32", [LNBASE[0]], [LNBASE[0]+1])
    e(f"v_mul_f32 v{LNBASE[0]+0}, 0x3ae38e39, v{LNBASE[0]+0}")
    for k in range(9): e(f"v_sub_f32 v{D+k}, v{10+k}, v{LNBASE[0]+0}")
    e(f"v_mul_f32 v{LNBASE[0]+2}, v{D}, v{D}"); e(f"v_mul_f32 v{LNBASE[0]+3}, v{D+1}, v{D+1}"); e(f"v_mul_f32 v{LNBASE[0]+4}, v{D+2}, v{D+2}")
    for k in range(3, 9): e(f"v_fmac_f32 v{LNBASE[0]+2+k%3}, v{D+k}, v{D+k}")
    e(f"v_add_f32 v{LNBASE[0]+2}, v{LNBASE[0]+2}, v{LNBASE[0]+3}"); e(f"v_add_f32 v{LNBASE[0]+2}, v{LNBASE[0]+2}, v{LNBASE[0]+4}")
    allreduce(f"v_add_f32", [LNBASE[0]+2], [LNBASE[0]+1])
    e(f"v_mul_f32 v{LNBASE[0]+2}, 0x3ae38e39, v{LNBASE[0]+2}")
    e(f"v_cvt_pk_bf16_f32 v{LNBASE[0]+1}, v{LNBASE[0]+0}, v{LNBASE[0]+2}")
    e(f"v_lshlrev_b32 v{LNBASE[0]+0}, 16, v{LNBASE[0]+1}"); e(f"v_and_b32 v{LNBASE[0]+2}, s25, v{LNBASE[0]+1}")
    e(f"v_add_f32 v{LNBASE[0]+2}, 0x3727c5ac, v{LNBASE[0]+2}")
    e(f"v_cvt_pk_bf16_f32 v{LNBASE[0]+2}, v{LNBASE[0]+2}, v{LNBASE[0]+2}"); e(f"v_and_b32 v{LNBASE[0]+2}, s25, v{LNBASE[0]+2}")
    e(f"v_sqrt_f32 v{LNBASE[0]+2}, v{LNBASE[0]+2}"); nop(0)
    e(f"v_cvt_pk_bf16_f32 v{LNBASE[0]+2}, v{LNBASE[0]+2}, v{LNBASE[0]+2}"); e(f"v_and_b32 v{LNBASE[0]+2}, s25, v{LNBASE[0]+2}")
    e(f"v_rcp_f32 v{LNBASE[0]+3}, v{LNBASE[0]+2}")
    for k in range(9): e(f"v_sub_f32 v{D+k}, v{10+k}, v{LNBASE[0]+0}")
    for k in range(4): e(f"v_cvt_pk_bf16_f32 v{LNBASE[0]+4+k}, v{D+2*k}, v{D+1+2*k}")
    e(f"v_cvt_pk_bf16_f32 v{LNBASE[0]+8}, v{D+8}, v{D+8}")
    for k in range(4):
        e(f"v_lshlrev_b32 v{D+2*k}, 16, v{LNBASE[0]+4+k}"); e(f"v_and_b32 v{D+1+2*k}, s25, v{LNBASE[0]+4+k}")
    e(f"v_lshlrev_b32 v{D+8}, 16, v{LNBASE[0]+8}")
    for k in range(9): e(f"v_mul_f32 v{10+k}, v{D+k}, v{LNBASE[0]+3}")
    for k in range(9): e(f"v_fma_f32 v{D+k}, -v{10+k}, v{LNBASE[0]+2}, v{D+k}")
    for k in range(9): e(f"v_fmac_f32 v{10+k}, v{D+k}, v{LNBASE[0]+3}")
    for k in range(4): e(f"v_cvt_pk_bf16_f32 v{outp+k}, v{10+2*k}, v{11+2*k}")
    e(f"v_cvt_pk_bf16_f32 v{out8}, v18, v18")

def tile_products(tbl, step, n):
    for c0 in range(0, n, 12):
        m = min(12, n - c0)
        for i in range(m): e(f"ds_read_u16 v{10+i}, v2 offset:{tbl+step*(c0+i)}")
        for i in range(m):
            e(f"s_waitcnt lgkmcnt({m-1-i})")
            e(f"v_lshlrev_b32 v{28+(i&1)}, 16, v{10+i}")
            e(f"s_waitcnt vmcnt({n-1-c0-i})")
            for k in range(4):
                for z in range(2):
                    d = ACC + 2*k + z
                    c = "0" if c0 + i == 0 else f"v{d}"
                    e(f"v_dot2_f32_bf16 v{d}, v{32+4*(c0+i)+k}, v{10+i if z == 0 else 28+(i&1)}, {c}")
        nop(2)
ACC = 104

L.append(f"; @launch grid=(256,1,1) block=(768,1,1) lds={LDS_BYTES}")
L.append('.amdgcn_target "amdgcn-amd-amdhsa--gfx950"')
L.append(".text"); L.append(f".globl {NAME}_kernel"); L.append(".p2align 8")
L.append(f".type {NAME}_kernel,@function"); lab(f"{NAME}_kernel")
e("s_cmp_ge_u32 s2, 256"); e("s_cbranch_scc1 L_end")
e("s_load_dwordx16 s[36:51], s[0:1], 0"); e("s_load_dwordx8 s[52:59], s[0:1], 64"); e("s_load_dwordx2 s[60:61], s[0:1], 96")
e("v_and_b32 v1, 63, v0"); e("v_lshrrev_b32 v2, 6, v0"); nop(1); e("v_readfirstlane_b32 s3, v2")
e("s_lshr_b32 s4, s2, 4"); e("s_and_b32 s5, s2, 15")
e("s_mov_b32 s24, 0x3fb8aa3b"); e("s_mov_b32 s25, 0xffff0000")
e("s_waitcnt lgkmcnt(0)")
srd(88, 60, 1 << 30)
stamp()
if PROF: e("v_mov_b32 v112, v160")
ns0 = nstamp[0]
e("s_cmp_lt_u32 s3, 4"); e("s_cbranch_scc1 L_roles")

lab("L_kv")
nstamp[0] = ns0
SB[0] = 112
srd(64, 38, 268435456)
e("s_sub_u32 s7, s3, 4")
e("s_lshl_b32 s9, s4, 24"); e("s_lshl_b32 s10, s5, 16"); e("s_add_u32 s9, s9, s10"); e(f"s_add_u32 s9, s9, {61440*256}")
e("s_lshl_b32 s10, s7, 13"); e("s_add_u32 s9, s9, s10"); e("s_add_u32 s10, s9, 4096")
e("v_and_b32 v10, 15, v1"); e("v_lshrrev_b32 v11, 4, v1")
e("v_lshlrev_b32 v3, 8, v10"); e("v_lshl_add_u32 v3, v11, 4, v3")
e("v_lshlrev_b32 v12, 11, v11"); e("v_lshl_add_u32 v12, v10, 4, v12")
KR, VR = 16, 48
e("s_mov_b32 s14, 0"); e(f"v_mov_b32 v8, {FQ}")
NE = optint("ne", (THR if THR else 3)) if EARLY else 0
for i in range(8):
    if i == NE:
        e("s_branch L_kvb")
        mark("INS")
        lab("L_kvb")
        srd(68, 40, 268435456); srd(76, 44, 4096*576*2); srd(84, 52, 4608*576*2)
        e("s_barrier")
    thr()
    e(f"buffer_load_dwordx4 v[{KR+4*i}:{KR+3+4*i}], v12, s[64:67], s9 offen offset:{i*256}{NT}")
for i in range(8):
    thr()
    e(f"buffer_load_dwordx4 v[{VR+4*i}:{VR+3+4*i}], v12, s[68:71], s9 offen offset:{i*256}{NT}")
WR = 128
def wloads():
    e("v_subrev_u32 v13, 256, v0")
    e("s_and_b32 s15, s2, 3"); e("s_cmp_eq_u32 s15, 3")
    e("s_cselect_b32 s62, 24, 16"); e("s_cselect_b32 s63, 21, 32"); e("s_movk_i32 s12, 4096"); e("s_cselect_b32 s12, 2731, s12")
    e("v_mul_lo_u32 v14, v13, s12"); e("v_lshrrev_b32 v14, 16, v14")
    e("v_mul_lo_u32 v15, v14, s62"); e("v_sub_u32 v15, v13, v15")
    e("v_mul_u32_u24 v4, 1152, v14"); e("v_lshl_add_u32 v4, v15, 4, v4")
    e(f"v_mov_b32 v7, {INV}"); e("v_cmp_gt_u32 vcc, s63, v14"); nop(1); e("v_cndmask_b32 v4, v7, v4, vcc")
    e("s_lshr_b32 s13, s2, 2"); e("s_lshl_b32 s15, s15, 8"); e("s_mul_i32 s11, s63, 1152")
    for mtx, rows, sr, base in ((0, 72, 84, 0), (1, 64, 76, 16)):
        e(f"s_mul_i32 s9, s13, {rows*1152}"); e("s_add_u32 s9, s9, s15"); e("v_mov_b32 v5, v14")
        for i in range(4):
            e(f"v_cmp_gt_u32 vcc, {rows}, v5"); nop(1); e("v_cndmask_b32 v6, v7, v4, vcc")
            thr(); e(f"buffer_load_dwordx4 v[{WR+base+4*i}:{WR+base+3+4*i}], v6, s[{sr}:{sr+3}], s9 offen{NT}")
            if i < 3: e("s_add_u32 s9, s9, s11"); e("v_add_u32 v5, s63, v5")
    e(f"s_min_u32 s13, s2, {NRED-1}"); e("s_lshl_b32 s13, s13, 4"); e("v_and_b32 v6, 1, v1"); e("v_lshlrev_b32 v6, 3, v6"); e(f"v_add_u32 v{WR+36}, s13, v6")
    e(f"global_load_dwordx2 v[{WR+32}:{WR+33}], v{WR+36}, s[36:37]"); e(f"global_load_dwordx2 v[{WR+34}:{WR+35}], v{WR+36}, s[54:55]")

if not WLATE: wloads()
e("v_cmp_eq_u32 s[28:29], 1, v11"); e("v_cmp_eq_u32 s[30:31], 2, v11"); e("v_cmp_eq_u32 s[32:33], 3, v11")
e("s_mov_b32 s27, 0x3db504f3"); e("s_mov_b32 s34, 0x05040100"); e("s_mov_b32 s35, 0x07060302")
spin_lds(FQ, 4, 5, sleep=2)
get_nonce(4, 6)
stamp()
e("v_lshlrev_b32 v4, 4, v10")
e(f"ds_read_b128 v[96:99], v4 offset:{Q_T}"); e(f"ds_read_b128 v[100:103], v4 offset:{Q_T+256}")
e("v_and_b32 v4, 1, v1"); e("v_cmp_eq_u32 s[18:19], 1, v4")
e("s_waitcnt lgkmcnt(0)")
SR = 80
for i in range(8):
    e(f"s_waitcnt vmcnt({(8 if WLATE else 18)+7-i})")
    if i == 0: stamp()
    for k in range(4):
        for h in range(2):
            d = SR + 2*i + h
            c = "0" if k == 0 else f"v{d}"
            e(f"v_dot2_f32_bf16 v{d}, v{KR+4*i+k}, v{96+4*h+k}, {c}")
nop(2)
allreduce("v_add_f32", [SR + x for x in range(16)], [], rows=False)
for i in range(8): e(f"v_cvt_pk_bf16_f32 v{16+i}, v{SR+2*i}, v{SR+2*i+1}")
for i in range(8):
    e(f"v_lshlrev_b32 v{SR+2*i}, 16, v{16+i}"); e(f"v_and_b32 v{SR+2*i+1}, s25, v{16+i}")
for x in range(16): e(f"v_mul_f32 v{SR+x}, s27, v{SR+x}")
for i in range(8): e(f"v_cvt_pk_bf16_f32 v{16+i}, v{SR+2*i}, v{SR+2*i+1}")
for i in range(8):
    e(f"v_lshlrev_b32 v{SR+2*i}, 16, v{16+i}"); e(f"v_and_b32 v{SR+2*i+1}, s25, v{16+i}")
for h in range(2): e(f"v_max3_f32 v{24+h}, v{SR+h}, v{SR+2+h}, v{SR+4+h}")
for h in range(2): e(f"v_max3_f32 v{26+h}, v{SR+6+h}, v{SR+8+h}, v{SR+10+h}")
for h in range(2): e(f"v_max3_f32 v{24+h}, v{24+h}, v{SR+12+h}, v{SR+14+h}")
for h in range(2): e(f"v_max_f32 v{24+h}, v{24+h}, v{26+h}")
allreduce("v_max_f32", [24, 25], [26, 27], rors=())
for x in range(16): e(f"v_sub_f32 v{SR+x}, v{SR+x}, v{24+(x&1)}")
for x in range(16): e(f"v_mul_f32 v{SR+x}, s24, v{SR+x}")
for x in range(16): e(f"v_exp_f32 v{SR+x}, v{SR+x}")
nop(0)
for h in range(2): e(f"v_add_f32 v{28+h}, v{SR+h}, v{SR+2+h}"); e(f"v_add_f32 v{30+h}, v{SR+4+h}, v{SR+6+h}")
for h in range(2): e(f"v_add_f32 v{32+h}, v{SR+8+h}, v{SR+10+h}"); e(f"v_add_f32 v{34+h}, v{SR+12+h}, v{SR+14+h}")
for h in range(2): e(f"v_add_f32 v{28+h}, v{28+h}, v{30+h}"); e(f"v_add_f32 v{32+h}, v{32+h}, v{34+h}")
for h in range(2): e(f"v_add_f32 v{28+h}, v{28+h}, v{32+h}")
for t in range(4):
    e(f"v_cvt_pk_bf16_f32 v{16+t}, v{SR+4*t}, v{SR+4*t+2}"); e(f"v_cvt_pk_bf16_f32 v{36+t}, v{SR+4*t+1}, v{SR+4*t+3}")
for t in range(4): e(f"v_cndmask_b32 v{20+t}, v{16+t}, v{36+t}, s[18:19]")
allreduce("v_add_f32", [28, 29], [26, 27], rors=())
for t in range(4):
    e(f"s_waitcnt vmcnt({(6 if WLATE else 16)-2*t})")
    if t == 3 and HLATE == "fv":
        e(f"v_mov_b32 v4, {FV}"); e("v_mov_b32 v7, 1"); e("ds_write_b32 v4, v7")
    if WLATE and not WFO and t == 3: wloads()
    for d2 in range(4):
        lo, hi = VR+4*(2*t)+d2, VR+4*(2*t+1)+d2
        e(f"v_perm_b32 v{TB(2*d2, t)}, v{hi}, v{lo}, s34")
        e(f"v_perm_b32 v{TB(2*d2+1, t)}, v{hi}, v{lo}, s35")
nop(1)
for j in range(8):
    e(f"v_mfma_f32_16x16x32_bf16 v[{VR+4*j}:{VR+3+4*j}], v[20:23], v[{TB(j,0)}:{TB(j,3)}], 0")
stamp()
nop(7); nop(1)
for k in range(4): e(f"v_cndmask_b32 v{32+k}, v{VR+4*k}, v{VR+4*(k+4)}, s[28:29]")
for k in range(4): e(f"v_cndmask_b32 v{32+k}, v{32+k}, v{VR+4*k+1}, s[30:31]")
for k in range(4): e(f"v_cndmask_b32 v{32+k}, v{32+k}, v{VR+4*(k+4)+1}, s[32:33]")
e("v_lshrrev_b32 v5, 1, v11"); e("v_lshlrev_b32 v5, 9, v5"); e("v_lshl_add_u32 v5, v10, 5, v5")
e("v_and_b32 v6, 1, v11"); e("v_lshl_add_u32 v5, v6, 4, v5")
e("s_lshl_b32 s11, s7, 10"); e("v_add_u32 v5, s11, v5")
e(f"ds_write_b128 v5, v[32:35] offset:{OW}")
e("v_mov_b32 v36, v24"); e("v_mov_b32 v37, v28"); e("v_mov_b32 v38, v25"); e("v_mov_b32 v39, v29")
e("s_lshl_b32 s11, s7, 4"); e("v_mov_b32 v6, s11")
e(f"ds_write_b128 v6, v[36:39] offset:{ML_T}")
e("v_mov_b32 v7, 1"); e(f"v_mov_b32 v6, {CNT}")
e("s_waitcnt lgkmcnt(0)")
e("v_cmp_eq_u32 vcc, 0, v1"); e("s_and_saveexec_b64 s[20:21], vcc")
e("ds_add_rtn_u32 v7, v6, v7")
e("s_waitcnt lgkmcnt(0)")
e("s_mov_b64 exec, s[20:21]")
nop(0)
e("v_readfirstlane_b32 s11, v7")
e("s_cmp_lg_u32 s11, 7"); e("s_cbranch_scc1 L_kv_done")
e("v_mov_b32 v6, 0")
for w in range(8): e(f"ds_read_b128 v[{16+4*w}:{19+4*w}], v6 offset:{ML_T+16*w}")
e("v_lshlrev_b32 v5, 4, v1")
for w in range(8): e(f"ds_read_b128 v[{48+4*w}:{51+4*w}], v5 offset:{OW+1024*w}")
e("v_cmp_gt_u32 vcc, 32, v1")
e("s_waitcnt lgkmcnt(8)")
nop(0)
for w in range(8):
    e(f"v_cndmask_b32 v{80+w}, v{18+4*w}, v{16+4*w}, vcc")
    e(f"v_cndmask_b32 v{88+w}, v{19+4*w}, v{17+4*w}, vcc")
e("v_max3_f32 v8, v80, v81, v82"); e("v_max3_f32 v9, v83, v84, v85"); e("v_max3_f32 v8, v8, v86, v87"); e("v_max_f32 v8, v8, v9")
for w in range(8): e(f"v_sub_f32 v{80+w}, v{80+w}, v8")
for w in range(8): e(f"v_mul_f32 v{80+w}, s24, v{80+w}")
for w in range(8): e(f"v_exp_f32 v{80+w}, v{80+w}")
nop(0)
e("v_mul_f32 v9, v80, v88")
for w in range(1, 8): e(f"v_fmac_f32 v9, v{80+w}, v{88+w}")
e("s_waitcnt lgkmcnt(0)")
for k in range(4): e(f"v_mul_f32 v{96+k}, v80, v{48+k}")
for w in range(1, 8):
    for k in range(4): e(f"v_fmac_f32 v{96+k}, v{80+w}, v{48+4*w+k}")
gran(100, 96, 97); gran(104, 98, 99); gran(108, 8, 9)
e("s_lshl_b32 s11, s2, 12"); e(f"s_add_u32 s11, s11, {OB2}")
e("buffer_store_dwordx4 v[100:103], v5, s[88:91], s11 offen sc1")
e("buffer_store_dwordx4 v[104:107], v5, s[88:91], s11 offen offset:1024 sc1")
e("v_lshrrev_b32 v6, 5, v1"); e("v_lshlrev_b32 v6, 4, v6")
e("v_and_b32 v7, 31, v1"); e("v_cmp_eq_u32 vcc, 0, v7"); e("s_and_saveexec_b64 s[20:21], vcc")
e("buffer_store_dwordx4 v[108:111], v6, s[88:91], s11 offen offset:2048 sc1")
e("s_mov_b64 exec, s[20:21]")
set_flag(FO, 6, 7)
dbgmax(11)
lab("L_kv_done")
stamp()
if WFO:
    spin_lds(FO, 4, 5, sleep=1)
    wloads()
e("v_mov_b32 v26, v14")
for i in range(4):
    e(f"v_min_u32 v{40+i}, 95, v26"); e(f"v_lshlrev_b32 v{40+i}, 1, v{40+i}")
    if i < 3: e("v_add_u32 v26, s63, v26")
e("s_lshl_b32 s9, s62, 6"); e("s_add_u32 s9, s9, 32"); e("v_mul_lo_u32 v27, v14, s9"); e("v_lshl_add_u32 v27, v15, 5, v27")
e("s_lshl_b32 s10, s62, 5"); e("v_add_u32 v28, s10, v27")
e("v_cmp_gt_u32 s[94:95], s63, v14")
spin_lds(FH, 4, 5)
for i in range(4): e(f"ds_read_u16 v{16+i}, v{40+i} offset:{H_T}")
e("s_waitcnt lgkmcnt(0)")
for i in range(4): e(f"v_lshlrev_b32 v{32+i}, 16, v{16+i}")
e("s_waitcnt vmcnt(6)")
for i in range(4):
    for k in range(4):
        for z in range(2):
            d = 48 + 2*k + z
            c = "0" if i == 0 else f"v{d}"
            e(f"v_dot2_f32_bf16 v{d}, v{WR+4*i+k}, v{(16 if z == 0 else 32)+i}, {c}")
nop(2)
e("s_and_saveexec_b64 s[22:23], s[94:95]")
e(f"ds_write_b128 v28, v[48:51] offset:{AB}"); e(f"ds_write_b128 v28, v[52:55] offset:{AB+16}")
e("s_mov_b64 exec, s[22:23]")
e("s_waitcnt vmcnt(0)")
e("s_barrier")
stamp()
for i in range(4): e(f"ds_read_u16 v{20+i}, v{40+i} offset:{OF_T}")
e("s_waitcnt lgkmcnt(0)")
for i in range(4): e(f"v_lshlrev_b32 v{36+i}, 16, v{20+i}")
for i in range(4):
    for k in range(4):
        for z in range(2):
            d = 56 + 2*k + z
            c = "0" if i == 0 else f"v{d}"
            e(f"v_dot2_f32_bf16 v{d}, v{WR+16+4*i+k}, v{(20 if z == 0 else 36)+i}, {c}")
nop(2)
e("s_and_saveexec_b64 s[22:23], s[94:95]")
e(f"ds_write_b128 v27, v[56:59] offset:{AB}"); e(f"ds_write_b128 v27, v[60:63] offset:{AB+16}")
e("s_mov_b64 exec, s[22:23]")
e("s_waitcnt lgkmcnt(0)")
e("s_barrier")
def tail_reduce(CW, NS, TPG, SPT):
    RS = CW*64 + 32
    sh = {4: 2, 2: 1}[TPG]
    NG = CW*8
    e(f"v_cmp_gt_u32 vcc, {NG*TPG}, v13"); e("s_and_saveexec_b64 s[20:21], vcc")
    e("s_cbranch_execz L_p3skip")
    e(f"v_lshrrev_b32 v4, {sh}, v13")
    e("v_lshrrev_b32 v5, 3, v4"); e("v_lshlrev_b32 v5, 5, v5")
    e("v_and_b32 v6, 1, v4"); e("v_lshl_add_u32 v5, v6, 4, v5")
    e("v_bfe_u32 v6, v4, 1, 1"); e("v_lshl_add_u32 v5, v6, 3, v5")
    e("v_bfe_u32 v6, v4, 2, 1"); e(f"v_mul_u32_u24 v6, {CW*32}, v6"); e("v_add_u32 v5, v5, v6")
    e(f"v_and_b32 v6, {TPG-1}, v13"); e(f"v_mul_u32_u24 v7, {SPT*RS}, v6"); e("v_add_u32 v8, v5, v7")
    full = SPT if TPG*SPT == NS else SPT - 1
    for w in range(full): e(f"ds_read_b64 v[{32+2*w}:{33+2*w}], v8 offset:{AB+RS*w}")
    if full != SPT:
        e(f"v_mov_b32 v{32+2*full}, 0"); e(f"v_mov_b32 v{33+2*full}, 0")
        e("v_cmp_eq_u32 vcc, 0, v6"); e("s_and_saveexec_b64 s[22:23], vcc")
        e(f"ds_read_b64 v[{32+2*full}:{33+2*full}], v8 offset:{AB+RS*full}")
        e("s_mov_b64 exec, s[22:23]")
    e("s_waitcnt lgkmcnt(0)")
    n = SPT
    while n > 1:
        h = n // 2
        for w in range(h):
            for k in range(2): e(f"v_add_f32 v{32+2*w+k}, v{32+2*w+k}, v{32+2*(n-1-w)+k}")
        n = n - h
    nop(1)
    for k in range(2): dpp("v_add_f32", 32+k, "quad_perm:[1,0,3,2]")
    if TPG == 4:
        nop(1)
        for k in range(2): dpp("v_add_f32", 32+k, "quad_perm:[2,3,0,1]")
    gran(64, 32, 33)
    e("s_lshl_b32 s9, s2, 12"); e(f"s_add_u32 s9, s9, {OB3}"); e("v_lshlrev_b32 v3, 4, v4")
    e("v_cmp_eq_u32 vcc, 0, v6"); e("s_and_b64 exec, exec, vcc")
    e("buffer_store_dwordx4 v[64:67], v3, s[88:91], s9 offen sc1")
e("s_cmp_eq_u32 s62, 24"); e("s_cbranch_scc1 L_wide")
tail_reduce(16, 32, 4, 8)
e("s_branch L_p3skip")
lab("L_wide")
tail_reduce(24, 21, 2, 11)
lab("L_p3skip")
e("s_mov_b64 exec, s[20:21]")
lab("L_p3done")
stamp()
e(f"s_cmp_ge_u32 s2, {NRED}"); e("s_cbranch_scc1 L_fdone")
spin_lds(FC2, 4, 5)
e("s_lshr_b32 s10, s2, 4"); e("s_min_u32 s10, s10, 3"); e("s_lshl_b32 s11, s10, 4"); e("s_sub_u32 s11, s2, s11")
e("v_lshrrev_b32 v4, 3, v13"); e("v_lshrrev_b32 v6, 2, v4"); e("v_lshlrev_b32 v6, 3, v6")
e(f"ds_read_b64 v[72:73], v6 offset:{NT_T}")
e("v_lshlrev_b32 v4, 14, v4"); e("v_and_b32 v5, 7, v13"); e("v_lshl_add_u32 v4, v5, 4, v4")
e("s_lshl_b32 s9, s10, 12"); e("s_lshl_b32 s11, s11, 7"); e("s_add_u32 s9, s9, s11"); e(f"s_add_u32 s9, s9, {OB3}")
e("s_waitcnt lgkmcnt(0)")
poll(["buffer_load_dwordx4 v[48:51], v4, s[88:91], s9 offen sc1"], [48], 40, tags=[("v72", "v73")])
e("v_mov_b32 v32, v49"); e("v_mov_b32 v33, v50")
allreduce("v_add_f32", [32, 33], [64, 65], rors=(8,))
e("s_lshl_b32 s9, s7, 6"); e("v_lshl_add_u32 v5, v1, 3, s9")
e("v_cmp_gt_u32 vcc, 8, v1"); e("s_and_saveexec_b64 s[20:21], vcc")
e(f"ds_write_b64 v5, v[32:33] offset:{R3_T}")
e("s_mov_b64 exec, s[20:21]")
e("s_waitcnt lgkmcnt(0)")
e("s_barrier")
e("s_cmp_lg_u32 s7, 0"); e("s_cbranch_scc1 L_fdone")
e("v_and_b32 v5, 1, v1"); e("v_lshlrev_b32 v5, 3, v5")
for w in range(8):
    for q in range(4): e(f"ds_read_b64 v[{48+8*w+2*q}:{49+8*w+2*q}], v5 offset:{R3_T+64*w+16*q}")
for w in range(1, 8):
    e(f"s_waitcnt lgkmcnt({min(15, 28-4*w)})")
    for k in range(8): e(f"v_add_f32 v{48+k}, v{48+k}, v{48+8*w+k}")
for k in range(4): e(f"v_mov_b32 v{64+k}, v{52+k}")
def rne4(r):
    e(f"v_cvt_pk_bf16_f32 v80, v{r}, v{r+1}"); e(f"v_cvt_pk_bf16_f32 v81, v{r+2}, v{r+3}")
    e(f"v_lshlrev_b32 v{r}, 16, v80"); e(f"v_and_b32 v{r+1}, s25, v80"); e(f"v_lshlrev_b32 v{r+2}, 16, v81"); e(f"v_and_b32 v{r+3}, s25, v81")
rne4(48); rne4(64)
X, B2 = WR+32, WR+34
e(f"v_lshlrev_b32 v52, 16, v{X}"); e(f"v_and_b32 v53, s25, v{X}"); e(f"v_lshlrev_b32 v54, 16, v{X+1}"); e(f"v_and_b32 v55, s25, v{X+1}")
e(f"v_lshlrev_b32 v56, 16, v{B2}"); e(f"v_and_b32 v57, s25, v{B2}"); e(f"v_lshlrev_b32 v58, 16, v{B2+1}"); e(f"v_and_b32 v59, s25, v{B2+1}")
for k in range(4): e(f"v_add_f32 v{48+k}, v{52+k}, v{48+k}"); e(f"v_add_f32 v{64+k}, v{64+k}, v{56+k}")
rne4(48); rne4(64)
for k in range(4): e(f"v_add_f32 v{48+k}, v{48+k}, v{64+k}")
e("v_cvt_pk_bf16_f32 v80, v48, v49"); e("v_cvt_pk_bf16_f32 v81, v50, v51")
e("v_cmp_gt_u32 vcc, 2, v1"); e("s_and_saveexec_b64 s[20:21], vcc")
e(f"global_store_dwordx2 v{WR+36}, v[80:81], s[56:57]")
e("s_mov_b64 exec, s[20:21]")
dbgmax(8)
lab("L_fdone")
stamp()
stamp_store()
e("s_endpgm")
SB[0] = 160
mark("A0")
lab("L_roles")
e("s_cmp_eq_u32 s3, 2"); e("s_cbranch_scc1 L_sync")
e("s_cmp_lg_u32 s3, 0"); e("s_cbranch_scc1 L_h")
nstamp[0] = ns0
srd(72, 42, 576*4096*2)
e("v_lshlrev_b32 v3, 4, v1"); e("global_load_dwordx4 v[4:7], v3, s[36:37]")
e("v_lshlrev_b32 v9, 1, v1"); e("global_load_ushort v8, v9, s[36:37] offset:1024")
e("v_lshrrev_b32 v19, 3, v1"); e("v_and_b32 v2, 7, v1")
e("v_lshlrev_b32 v116, 13, v19"); e("v_lshl_add_u32 v116, v2, 4, v116")
e("s_and_b32 s8, s2, 3"); e("s_mul_i32 s8, s8, 144")
e("s_lshl_b32 s9, s8, 13"); e("s_lshr_b32 s10, s2, 2"); e("s_lshl_b32 s10, s10, 7"); e("s_add_u32 s9, s9, s10")
for i in range(18):
    e(f"buffer_load_dwordx4 v[{32+4*i}:{35+4*i}], v116, s[72:75], s9 offen{NT}")
    if i < 17: e("s_add_u32 s9, s9, 65536")
e("s_branch L_w0b")
mark("A1")
lab("L_w0b")
e("s_barrier")
e("s_waitcnt vmcnt(18)")
stamp()
unpack9(4, 8)
layernorm(4, 8)
e(f"ds_write_b128 v3, v[4:7] offset:{XN_T}"); e(f"ds_write_b16 v9, v8 offset:{XN_T+1024}")
e("s_lshl_b32 s9, s8, 1"); e("v_lshl_add_u32 v2, v19, 1, s9")
e("s_waitcnt lgkmcnt(0)")
get_nonce(30, 114)
tile_products(XN_T, 16, 18)
stamp()
nop(2)
for k in range(4): e(f"v_permlane32_swap_b32 v{104+k}, v{108+k}")
nop(0)
for k in range(4): e(f"v_add_f32 v{104+k}, v{104+k}, v{108+k}")
nop(1)
for k in range(2): e(f"v_permlane16_swap_b32 v{104+k}, v{106+k}")
nop(0)
for k in range(2): e(f"v_add_f32 v{104+k}, v{104+k}, v{106+k}")
nop(1)
for k in range(2): dpp("v_add_f32", 104+k, "row_ror:8")
gran(12, 104, 105)
e("v_and_b32 v2, 7, v1"); e("v_lshlrev_b32 v2, 6, v2"); e("v_lshrrev_b32 v10, 5, v1"); e("v_lshl_add_u32 v2, v10, 5, v2")
e("v_bfe_u32 v10, v1, 4, 1"); e("v_lshl_add_u32 v2, v10, 4, v2")
e("s_lshl_b32 s9, s2, 13")
e("v_and_b32 v10, 8, v1"); e("v_cmp_eq_u32 vcc, 0, v10"); e("s_and_saveexec_b64 s[20:21], vcc")
e("buffer_store_dwordx4 v[12:15], v2, s[88:91], s9 offen sc1")
if BOARD:
    e("s_lshl_b32 s9, s4, 17"); e("s_lshl_b32 s10, s5, 4"); e("v_mov_b32 v2, s10")
    e("v_cmp_eq_u32 vcc, 0, v1"); e("s_and_b64 exec, exec, vcc")
    e("buffer_store_dwordx4 v[12:15], v2, s[88:91], s9 offen offset:3840 sc1")
e("s_mov_b64 exec, s[20:21]")
stamp()
dbgmax(13)
if BOARD:
    e("v_and_b32 v2, 15, v1"); e("v_lshlrev_b32 v2, 4, v2")
    poll(["buffer_load_dwordx4 v[32:35], v2, s[88:91], s9 offen offset:3840 sc1"], [32], 20, sleep=BSLEEP)
e("s_lshl_b32 s9, s4, 17"); e("v_and_b32 v3, 31, v1"); e("v_lshlrev_b32 v3, 4, v3"); e("v_lshrrev_b32 v10, 5, v1"); e("v_lshl_add_u32 v3, v10, 15, v3")
loads = []
for i2 in range(2):
    for rb in range(4):
        n = 4*i2 + rb
        loads.append(f"s_add_u32 s10, s9, {8192*(8*i2+rb)}")
        loads.append(f"buffer_load_dwordx4 v[{32+4*n}:{35+4*n}], v3, s[88:91], s10 offen sc1")
poll(loads, [32+4*x for x in range(8)], 20)
stamp()
for i2 in range(2):
    b0 = 32 + 16*i2
    for k in (1, 2): e(f"v_add_f32 v{b0+k}, v{b0+k}, v{b0+4+k}"); e(f"v_add_f32 v{b0+8+k}, v{b0+8+k}, v{b0+12+k}")
for i2 in range(2):
    b0 = 32 + 16*i2
    for k in (1, 2): e(f"v_add_f32 v{b0+k}, v{b0+k}, v{b0+8+k}")
e("v_cvt_pk_bf16_f32 v32, v33, v34"); e("v_cvt_pk_bf16_f32 v33, v49, v50")
e("v_lshlrev_b32 v4, 2, v1")
e(f"ds_write_b32 v4, v32 offset:{Q_T}"); e(f"ds_write_b32 v4, v33 offset:{Q_T+256}")
e("s_waitcnt lgkmcnt(0)")
set_flag(FQ, 10, 11)
stamp()
dbgmax(10)
e("v_lshrrev_b32 v4, 4, v1"); e("v_lshlrev_b32 v4, 14, v4")
e("v_and_b32 v5, 15, v1"); e("v_lshl_add_u32 v5, v5, 4, v4")
e("s_lshl_b32 s9, s4, 16"); e(f"s_add_u32 s9, s9, {OB2}")
e("s_lshr_b32 s11, s5, 2"); e("s_lshl_b32 s10, s11, 8"); e("s_add_u32 s10, s10, s9")
e("s_lshr_b32 s11, s5, 3"); e("s_lshl_b32 s11, s11, 4"); e("s_add_u32 s11, s11, s9")
spin_lds(FO, 10, 11, sleep=2)
loads = []
for i in range(4):
    loads.append(f"s_add_u32 s13, s10, {4096*i}"); loads.append(f"s_add_u32 s15, s11, {4096*i}")
    loads.append(f"buffer_load_dwordx4 v[{32+12*i}:{35+12*i}], v5, s[88:91], s13 offen sc1")
    loads.append(f"buffer_load_dwordx4 v[{36+12*i}:{39+12*i}], v5, s[88:91], s13 offen offset:1024 sc1")
    loads.append(f"buffer_load_dwordx4 v[{40+12*i}:{43+12*i}], v4, s[88:91], s15 offen offset:2048 sc1")
poll(loads, [32+4*x for x in range(12)], 20, sleep=X2SLEEP)
stamp()
e("v_max3_f32 v84, v41, v53, v65"); e("v_max_f32 v84, v84, v77")
allreduce("v_max_f32", [84], [85], rors=())
for i in range(4): e(f"v_sub_f32 v{41+12*i}, v{41+12*i}, v84")
for i in range(4): e(f"v_mul_f32 v{41+12*i}, s24, v{41+12*i}")
for i in range(4): e(f"v_exp_f32 v{41+12*i}, v{41+12*i}")
nop(0)
for n, k in enumerate((33, 34, 37, 38, 42)): e(f"v_mul_f32 v{86+n}, v41, v{k}")
for i in range(1, 4):
    for n, k in enumerate((33, 34, 37, 38, 42)): e(f"v_fmac_f32 v{86+n}, v{41+12*i}, v{k+12*i}")
allreduce("v_add_f32", [86, 87, 88, 89, 90], [91, 92, 93, 94, 95], rors=())
e("v_rcp_f32 v90, v90"); nop(0)
for k in range(4): e(f"v_mul_f32 v{86+k}, v90, v{86+k}")
e("v_cvt_pk_bf16_f32 v86, v86, v87"); e("v_cvt_pk_bf16_f32 v87, v88, v89")
e("v_cmp_gt_u32 vcc, 16, v1"); nop(1); e("v_cndmask_b32 v86, 0, v86, vcc"); e("v_cndmask_b32 v87, 0, v87, vcc")
e("v_lshlrev_b32 v4, 3, v1")
e("v_cmp_gt_u32 vcc, 24, v1"); e("s_and_saveexec_b64 s[20:21], vcc")
e(f"ds_write_b64 v4, v[86:87] offset:{OF_T}")
e("s_mov_b64 exec, s[20:21]")
e("s_waitcnt lgkmcnt(0)")
e("s_barrier")
dbgmax(12)
stamp()
stamp_store()
e("s_endpgm")

mark("B0")
lab("L_h")
nstamp[0] = ns0
e("s_cmp_eq_u32 s3, 1"); e("s_cbranch_scc1 L_h1")
if PF:
    e("s_cmp_ge_u32 s2, 16"); e("s_cbranch_scc1 L_nopf")
    e("s_getpc_b64 s[10:11]")
    lab("L_pc")
    e(f"s_sub_u32 s10, s10, L_pc-{NAME}_kernel"); e("s_subb_u32 s11, s11, 0")
    e("v_lshlrev_b32 v3, 4, v1")
    e("s_mov_b32 s12, 0")
    lab("L_pf")
    e("global_load_dwordx4 v[4:7], v3, s[10:11]")
    e("v_add_u32 v3, 1024, v3"); e("s_add_u32 s12, s12, 1024")
    e(f"s_cmp_lt_u32 s12, L_end-{NAME}_kernel-1024"); e("s_cbranch_scc1 L_pf")
    lab("L_nopf")
if TOUCH:
    e("v_lshlrev_b32 v3, 17, v1")
    e("v_cmp_gt_u32 vcc, 48, v1"); e("s_and_saveexec_b64 s[20:21], vcc")
    e("buffer_load_dword v4, v3, s[88:91], 0 offen")
    e("s_mov_b64 exec, s[20:21]")
    e("v_lshlrev_b32 v3, 16, v1")
    e("global_load_dword v5, v3, s[44:45]"); e("global_load_dword v6, v3, s[52:53]")
    e("v_mov_b32 v3, 0")
    e("v_cmp_eq_u32 vcc, 0, v1"); e("s_and_saveexec_b64 s[20:21], vcc")
    e("global_load_dword v7, v3, s[56:57]"); e("global_load_dword v8, v3, s[54:55]"); e("global_load_dword v9, v3, s[50:51]")
    e("s_lshl_b32 s9, s4, 24"); e("s_lshl_b32 s10, s5, 16"); e("s_add_u32 s9, s9, s10"); e(f"s_add_u32 s9, s9, {61440*256}"); e("v_mov_b32 v3, s9")
    e("global_load_dword v10, v3, s[40:41]")
    e("v_mov_b32 v3, 0x480000"); e("global_load_dword v11, v3, s[52:53]")
    e("s_mov_b64 exec, s[20:21]")
e("s_barrier")
e("s_endpgm")
lab("L_h1")
srd(80, 48, 576*4608*2)
e("v_lshlrev_b32 v3, 4, v1"); e("global_load_dwordx4 v[4:7], v3, s[36:37]")
e("v_lshlrev_b32 v9, 1, v1"); e("global_load_ushort v8, v9, s[36:37] offset:1024")
e("v_mul_u32_u24 v140, 3641, v1"); e("v_lshrrev_b32 v140, 16, v140")
e("v_mul_u32_u24 v141, 18, v140"); e("v_sub_u32 v141, v1, v141")
e("s_movk_i32 s12, 9216"); e("v_mul_lo_u32 v142, v140, s12"); e("v_lshl_add_u32 v142, v141, 4, v142")
e(f"v_mov_b32 v2, {INV}"); e("v_cmp_gt_u32 vcc, 54, v1"); nop(1); e("v_cndmask_b32 v142, v2, v142, vcc")
e("s_and_b32 s8, s5, 7"); e("s_mul_i32 s8, s8, 72")
e("s_mul_i32 s9, s8, 9216"); e("s_mul_i32 s10, s4, 576"); e("s_add_u32 s9, s9, s10"); e("s_lshr_b32 s10, s5, 3"); e("s_mul_i32 s10, s10, 288"); e("s_add_u32 s9, s9, s10")
def hloads():
    for i in range(24):
        e(f"buffer_load_dwordx4 v[{32+4*i}:{35+4*i}], v142, s[80:83], s18 offen{NT}")
        if i < 23: e(f"s_add_u32 s18, s18, {3*9216}")
e("s_mov_b32 s18, s9")
if not HLATE: hloads()
e("s_branch L_w1b")
mark("B1")
lab("L_w1b")
e("s_barrier")
e(f"s_waitcnt vmcnt({0 if HLATE else 24})")
stamp()
LNBASE[0] = 144
unpack9(4, 8); layernorm(4, 8); unpack9(4, 8); layernorm(4, 8)
LNBASE[0] = 104
e(f"ds_write_b128 v3, v[4:7] offset:{Y_T}"); e(f"ds_write_b16 v9, v8 offset:{Y_T+1024}")
e("s_lshl_b32 s9, s8, 1"); e("v_min_u32 v2, 2, v140"); e("v_lshl_add_u32 v2, v2, 1, s9")
e("s_waitcnt lgkmcnt(0)")
get_nonce(30, 144)
if HLATE:
    spin_lds({"fv": FV, "fo": FO, "fq": FQ}[HLATE], 30, 31, sleep=4)
    hloads()
ACC = 128
tile_products(Y_T, 6, 24)
stamp()
e("v_lshlrev_b32 v2, 5, v1")
e(f"ds_write_b128 v2, v[{ACC}:{ACC+3}] offset:{HR}"); e(f"ds_write_b128 v2, v[{ACC+4}:{ACC+7}] offset:{HR+16}")
ACC = 104
e("v_lshlrev_b32 v2, 3, v1")
e("s_waitcnt lgkmcnt(0)")
for n in range(2):
    for sub in range(3): e(f"ds_read_b64 v[{32+8*n+2*sub}:{33+8*n+2*sub}], v2 offset:{HR+512*n+576*sub}")
e("s_waitcnt lgkmcnt(0)")
for n in range(2):
    for k in range(2): e(f"v_add_f32 v{32+8*n+k}, v{32+8*n+k}, v{34+8*n+k}"); e(f"v_add_f32 v{32+8*n+k}, v{32+8*n+k}, v{36+8*n+k}")
gran(12, 32, 33); gran(16, 40, 41)
e("v_lshlrev_b32 v2, 4, v1")
e("s_lshl_b32 s9, s2, 13")
e("buffer_store_dwordx4 v[12:15], v2, s[88:91], s9 offen offset:1024 sc1")
e("v_cmp_gt_u32 vcc, 8, v1"); e("s_and_saveexec_b64 s[20:21], vcc")
e("buffer_store_dwordx4 v[16:19], v2, s[88:91], s9 offen offset:2048 sc1")
e("s_mov_b64 exec, s[20:21]")
e("v_min_u32 v7, 35, v1")
e("s_lshr_b32 s8, s5, 2")
e("s_mul_i32 s9, s4, 576"); e("s_mul_i32 s10, s8, 144"); e("s_add_u32 s9, s9, s10"); e("v_lshl_add_u32 v6, v7, 2, s9")
e("global_load_dword v30, v6, s[50:51]")
stamp()
e("v_lshlrev_b32 v7, 4, v7")
e("s_lshl_b32 s9, s4, 17"); e("s_lshr_b32 s10, s5, 3"); e("s_lshl_b32 s10, s10, 16"); e("s_add_u32 s9, s9, s10")
e("s_and_b32 s10, s8, 1"); e("s_mul_i32 s10, s10, 576"); e("s_add_u32 s9, s9, s10")
spin_lds(FQ, 10, 11, sleep=4)
loads = []
for i in range(8):
    loads.append(f"s_add_u32 s10, s9, {8192*i + 1024}")
    loads.append(f"buffer_load_dwordx4 v[{32+4*i}:{35+4*i}], v7, s[88:91], s10 offen sc1")
poll(loads, [32+4*i for i in range(8)], 20, sleep=2)
stamp()
for st in (4, 2, 1):
    for p in range(st):
        for k in (1, 2): e(f"v_add_f32 v{32+4*p+k}, v{32+4*p+k}, v{32+4*(p+st)+k}")
e("v_cvt_pk_bf16_f32 v35, v33, v34"); e("v_lshlrev_b32 v33, 16, v35"); e("v_and_b32 v34, s25, v35")
e("v_lshlrev_b32 v36, 16, v30"); e("v_and_b32 v37, s25, v30")
e("v_add_f32 v33, v33, v36"); e("v_add_f32 v34, v34, v37")
e("v_cvt_pk_bf16_f32 v35, v33, v34"); e("v_lshlrev_b32 v33, 16, v35"); e("v_and_b32 v34, s25, v35")
for r in (33, 34):
    t = r + 7
    u = r + 9
    e(f"v_mul_f32 v{t}, v{r}, v{r}"); e(f"v_mul_f32 v{t}, v{t}, v{r}"); e(f"v_mov_b32 v{u}, v{r}"); e(f"v_fmac_f32 v{u}, 0x3d372713, v{t}")
    e(f"v_mul_f32 v{u}, 0x40135761, v{u}"); e(f"v_exp_f32 v{u}, v{u}"); nop(0); e(f"v_add_f32 v{u}, 1.0, v{u}"); e(f"v_rcp_f32 v{u}, v{u}"); nop(0)
    e(f"v_fma_f32 v{u}, -2.0, v{u}, 1.0")
    e(f"v_add_f32 v{u}, 1.0, v{u}"); e(f"v_mul_f32 v{t}, 0.5, v{r}"); e(f"v_mul_f32 v{u}, v{t}, v{u}")
e("v_cvt_pk_bf16_f32 v35, v42, v43")
e("v_cmp_gt_u32 vcc, 36, v1"); nop(1); e("v_cndmask_b32 v35, 0, v35, vcc")
e("v_lshlrev_b32 v4, 2, v1")
e("v_cmp_gt_u32 vcc, 48, v1"); e("s_and_saveexec_b64 s[20:21], vcc")
e(f"ds_write_b32 v4, v35 offset:{H_T}")
e("s_mov_b64 exec, s[20:21]")
e("s_waitcnt lgkmcnt(0)")
set_flag(FH, 10, 11)
stamp()
stamp_store()
e("s_endpgm")

mark("C0")
lab("L_sync")
nstamp[0] = ns0
dbgmax(9, inv=True); dbgmax(14)
e("s_memrealtime s[16:17]")
e("s_and_b32 s9, s4, 3"); e("s_lshl_b32 s9, s9, 6"); e("s_lshr_b32 s10, s4, 2"); e("s_lshl_b32 s10, s10, 3"); e("s_add_u32 s9, s9, s10")
e("v_mov_b32 v2, s9"); e("v_mov_b32 v6, 0"); e("v_mov_b32 v7, 0")
for k in range(4): e(f"v_mov_b32 v{8+k}, 0")
e(f"v_mov_b32 v12, {FLG}")
e("s_waitcnt lgkmcnt(0)")
e("s_or_b32 s16, s16, 1")
e("v_mov_b32 v4, s16"); e("v_mov_b32 v5, s17")
e("v_cmp_eq_u32 vcc, 0, v1"); e("s_and_saveexec_b64 s[20:21], vcc")
e("global_atomic_cmpswap_x2 v[14:15], v2, v[4:7], s[58:59] sc0")
e("s_mov_b64 exec, s[20:21]")
e("ds_write_b128 v12, v[8:11]"); e("ds_write_b128 v12, v[8:11] offset:16")
e("s_waitcnt lgkmcnt(0)")
e("s_branch L_w2b")
mark("C1")
lab("L_w2b")
e("s_barrier")
e("s_waitcnt vmcnt(0)")
nop(0)
e("v_readfirstlane_b32 s10, v14"); e("v_readfirstlane_b32 s11, v15")
e("s_cmp_eq_u32 s10, 0"); e("s_cselect_b32 s16, s16, s10"); e("s_cselect_b32 s17, s17, s11")
e("v_mov_b32 v4, s16"); e("v_mov_b32 v5, s17"); e(f"v_mov_b32 v12, {NONCE}")
e("ds_write_b64 v12, v[4:5]")
e("s_waitcnt lgkmcnt(0)")
stamp()
e(f"s_cmp_ge_u32 s2, {NRED}"); e("s_cbranch_scc1 L_w2end")
spin_lds(FQ, 12, 13, sleep=8)
e("v_and_b32 v2, 15, v1"); e("v_and_b32 v3, 3, v2"); e("v_lshlrev_b32 v3, 6, v3"); e("v_lshrrev_b32 v4, 2, v2"); e("v_lshl_add_u32 v3, v4, 3, v3")
l_, d_ = newlab("np"), newlab("npd")
e("s_mov_b32 s12, 0")
lab(l_)
e("global_load_dwordx2 v[4:5], v3, s[58:59] sc1")
e("s_add_u32 s12, s12, 1")
e("s_waitcnt vmcnt(0)")
e("v_cmp_eq_u32 vcc, 0, v4")
e(f"s_cmp_gt_u32 s12, {SPINMAX}"); e(f"s_cbranch_scc1 {d_}")
e(f"s_cbranch_vccz {d_}")
e("s_sleep 8"); e(f"s_branch {l_}")
lab(d_)
e("v_lshlrev_b32 v2, 3, v2")
e(f"ds_write_b64 v2, v[4:5] offset:{NT_T}")
e("s_waitcnt lgkmcnt(0)")
set_flag(FC2, 10, 11)
lab("L_w2end")
stamp()
stamp_store()
e("s_endpgm")

lab("L_end")
e("s_endpgm")
L += ['.section .rodata,"a"', ".p2align 6", f".amdhsa_kernel {NAME}_kernel", "  .amdhsa_next_free_vgpr 168", "  .amdhsa_next_free_sgpr 102",
      "  .amdhsa_accum_offset 168", "  .amdhsa_group_segment_fixed_size 0", "  .amdhsa_kernarg_size 104", "  .amdhsa_user_sgpr_count 2",
      "  .amdhsa_user_sgpr_kernarg_segment_ptr 1", "  .amdhsa_system_sgpr_workgroup_id_x 1", ".end_amdhsa_kernel"]
def cut(a, b):
    i = L.index(";;MARK " + a); j = L.index(";;MARK " + b)
    blk = L[i+1:j]; del L[i:j+1]
    return blk
blocks = cut("A0", "A1") + cut("B0", "B1") + cut("C0", "C1")
k = L.index(";;MARK INS"); L[k:k+1] = blocks
open(out, "w").write("\n".join(L) + "\n")
```
